```python
import torch

def _softmax(x, axis=-1):
    return torch.softmax(x, dim=axis)
def _gelu(x):
    return torch.nn.functional.gelu(x, approximate="tanh")
def _silu(x):
    return torch.nn.functional.silu(x)
def _sigmoid(x):
    return torch.sigmoid(x)
def _layernorm(x, axis=-1, eps=1e-5):
    m = x.mean(dim=axis, keepdim=True)
    v = x.var(dim=axis, keepdim=True, unbiased=False)
    return (x - m) / torch.sqrt(v + eps)
def _scatter_add(tgt, idx, src, axis=0):
    return tgt.clone().index_add_(axis, idx, src)
def _segment_sum(src, seg, n):
    out = torch.zeros((n,) + src.shape[1:], dtype=src.dtype)
    return out.index_add_(0, seg, src)
def _pad(x, pw):
    flat = tuple(v for pair in reversed(pw) for v in pair)
    return torch.nn.functional.pad(x, flat)

kernel_name = 'concat_heads__grouped_kv_mqa__ssm_conv_s4__prompt'

def setup_inputs():

    _w = (lambda a: (lambda t: t.to(torch.bfloat16) if t.is_floating_point() else t)(torch.as_tensor(a)))
    def _A_setup():
        B, S, D, H = 1, 2048, 576, 32
        Dh = D // H
        return {
            "x": _w((lambda *s: torch.randn(*s, dtype=torch.bfloat16) * 0.05)(B, S, D)),
            "wq": _w((lambda *s: torch.randn(*s, dtype=torch.bfloat16) * 0.8)(D, H * Dh)),
            "wk": _w((lambda *s: torch.randn(*s, dtype=torch.bfloat16) * 0.8)(D, Dh)),
            "wv": _w((lambda *s: torch.randn(*s, dtype=torch.bfloat16) * 0.05)(D, Dh)),
            "wo": _w((lambda *s: torch.randn(*s, dtype=torch.bfloat16) * 0.05)(H * Dh, D)),
        }
    _A_in = _A_setup()

    def _B_setup():
        B, L, D, N = 1, 2048, 576, 128
        A_re = -(lambda _x: torch.exp(torch.as_tensor(_x)))((lambda *s: torch.randn(*s, dtype=torch.bfloat16) * 6.4)(D, N))
        A_im = torch.pi * (lambda *s: torch.randn(*s, dtype=torch.bfloat16) * 0.05)(D, N)
        B_re = (lambda *s: torch.randn(*s, dtype=torch.bfloat16) * 0.05)(D, N)
        B_im = (lambda *s: torch.randn(*s, dtype=torch.bfloat16) * 0.05)(D, N)
        C_re = (lambda *s: torch.randn(*s, dtype=torch.bfloat16) * 0.05)(D, N)
        C_im = (lambda *s: torch.randn(*s, dtype=torch.bfloat16) * 0.05)(D, N)
        log_dt = (lambda *s: torch.randn(*s, dtype=torch.bfloat16) * 0.05)(D) * 0.5 - 4.0
        Dskip = (lambda *s: torch.randn(*s, dtype=torch.bfloat16) * 0.05)(D)
        return {
            "u": _w((lambda *s: torch.randn(*s, dtype=torch.bfloat16) * 0.05)(B, L, D)),
            "A_re": _w(A_re),
            "A_im": _w(A_im),
            "B_re": _w(B_re),
            "B_im": _w(B_im),
            "C_re": _w(C_re),
            "C_im": _w(C_im),
            "log_dt": _w(log_dt),
            "Dskip": _w(Dskip),
        }
    _B_in = _B_setup()

    return {
        "A_x": _A_in["x"],
        "A_wq": _A_in["wq"],
        "A_wk": _A_in["wk"],
        "A_wv": _A_in["wv"],
        "A_wo": _A_in["wo"],
        "B_u": _B_in["u"],
        "B_A_re": _B_in["A_re"],
        "B_A_im": _B_in["A_im"],
        "B_B_re": _B_in["B_re"],
        "B_B_im": _B_in["B_im"],
        "B_C_re": _B_in["C_re"],
        "B_C_im": _B_in["C_im"],
        "B_log_dt": _B_in["log_dt"],
        "B_Dskip": _B_in["Dskip"],
    }

def reference(A_x, A_wq, A_wk, A_wv, A_wo, B_u, B_A_re, B_A_im, B_B_re, B_B_im, B_C_re, B_C_im, B_log_dt, B_Dskip):
    def _A_ref(x, wq, wk, wv, wo):
        B, S, D = x.shape
        H = 32
        Dh = D // H
        q = (lambda x, *d: x.permute(*d))((x @ wq).reshape(B, S, H, Dh), 0, 2, 1, 3)
        k = x @ wk
        v = x @ wv
        scores = torch.einsum("bhqd,bkd->bhqk", q, k) * (Dh ** -0.5)
        p = _softmax(scores, axis=-1)
        o = torch.einsum("bhqk,bkd->bhqd", p, v)
        return (lambda x, *d: x.permute(*d))(o, 0, 2, 1, 3).reshape(B, S, H * Dh) @ wo

    def _B_ref(u, A_re, A_im, B_re, B_im, C_re, C_im, log_dt, Dskip):
        Bsz, L, D = u.shape
        dt = torch.exp(log_dt)[:, None]
        A = A_re + 1j * A_im
        Bc = B_re + 1j * B_im
        Cc = C_re + 1j * C_im
        logdA = dt * A
        dB = dt * Bc
        l = (lambda x, dt: x.to(dt))(torch.arange(L), A_re.dtype)
        P = torch.exp(logdA[:, :, None] * l[None, None, :])
        K = torch.einsum("dn,dnl,dn->dl", Cc, P, dB).real
        L2 = 2 * L
        Kp = _pad(K, ((0, 0), (0, L)))
        up = (lambda x, *d: x.permute(*d))(u, 0, 2, 1)
        up = _pad(up, ((0, 0), (0, 0), (0, L)))
        Kf = (lambda x, axes=(-2,-1): torch.fft.rfft2(x.float(), dim=axes))(Kp[:, None, :], axes=(-2, -1))
        Uf = (lambda x, axes=(-2,-1): torch.fft.rfft2(x.float(), dim=axes))(up[:, :, None, :], axes=(-2, -1))
        Yf = Uf * Kf[None, :, :, :]
        y = (lambda x, s, axes=(-2,-1): torch.fft.irfft2(x, s=s, dim=axes).to(torch.bfloat16))(Yf, (1, L2), axes=(-2, -1))[:, :, 0, :L]
        y = (lambda x, *d: x.permute(*d))(y, 0, 2, 1) + u * Dskip[None, None, :]
        return y

    a = _A_ref(A_x, A_wq, A_wk, A_wv, A_wo)
    b = _B_ref(B_u, B_A_re, B_A_im, B_B_re, B_B_im, B_C_re, B_C_im, B_log_dt, B_Dskip)
    return torch.concatenate([a, b], axis=-1)
```

```python
import re

TRANS = ("v_exp_f32", "v_log_f32", "v_rcp_f32", "v_rsq_f32", "v_sqrt_f32", "v_sin_f32", "v_cos_f32",
         "v_exp_f16", "v_rcp_iflag_f32")


def v(b, n=1):
    return f"v{b}" if n == 1 else f"v[{b}:{b+n-1}]"


def s(b, n=1):
    return f"s{b}" if n == 1 else f"s[{b}:{b+n-1}]"


def _regs(tok):
    tok = tok.strip()
    tok = re.sub(r"^-", "", tok)
    m = re.match(r"^abs\((.*)\)$", tok)
    if m:
        tok = m.group(1)
    tok = tok.strip("|")
    m = re.match(r"^([vsa])(\d+)$", tok)
    if m:
        return {(m.group(1), int(m.group(2)))}
    m = re.match(r"^([vsa])\[(\d+):(\d+)\]$", tok)
    if m:
        return {(m.group(1), i) for i in range(int(m.group(2)), int(m.group(3)) + 1)}
    if tok in ("vcc", "vcc_lo", "vcc_hi"):
        return {("vcc", 0)}
    if tok in ("exec", "exec_lo", "exec_hi"):
        return {("exec", 0)}
    if tok == "m0":
        return {("m0", 0)}
    return set()


class Ins:
    def __init__(self, text):
        self.text = text
        t = text.split(";")[0].strip()
        self.is_label = t.endswith(":") and " " not in t
        self.is_dir = t.startswith(".")
        self.op = ""
        self.dst = set()
        self.src = set()
        self.srcC = set()
        self.srcAB = set()
        self.kind = "none"
        self.passes = 0
        self.states = 0
        if not t or self.is_label or self.is_dir:
            return
        parts = t.split(None, 1)
        self.op = parts[0]
        ops = []
        if len(parts) > 1:
            body = re.sub(r"\s\w+:\[[^\]]*\]", "", parts[1])
            ops = [x.strip() for x in body.split(",")]
            if ops:
                last = ops[-1].split()
                ops[-1] = last[0] if last else ""
                self.mods = last[1:]
        self.ops = ops
        op = self.op
        self.states = 1
        if op == "s_nop":
            self.kind = "salu"
            self.states = int(ops[0], 0) + 1
        elif op.startswith("v_mfma") or op.startswith("v_smfmac"):
            self.kind = "mfma"
            self.dst = _regs(ops[0])
            self.srcAB = _regs(ops[1]) | _regs(ops[2])
            if op.startswith("v_smfmac"):
                self.srcC = _regs(ops[0])
                self.srcAB |= _regs(ops[3])
            else:
                self.srcC = _regs(ops[3])
            self.src = self.srcAB | self.srcC
            if "_2b_" in op:
                self.passes = 16
            elif "32x32" in op or "_4b_" in op:
                self.passes = 8
            elif "16x16" in op:
                self.passes = 4
            else:
                self.passes = 2
        elif op.startswith("v_"):
            self.kind = "valu"
            self.dst = _regs(ops[0])
            rest = ops[1:]
            if op.startswith(("v_add_co", "v_sub_co", "v_addc_co", "v_subb_co", "v_mad_u64_u32", "v_div_scale")):
                self.dst |= _regs(ops[1])
                rest = ops[2:]
            for o in rest:
                self.src |= _regs(o)
            if op.startswith(("v_fmac", "v_pk_fmac", "v_dot2c", "v_writelane")):
                self.src |= _regs(ops[0])
            if op.startswith("v_permlane") and "swap" in op:
                self.dst |= _regs(ops[1])
                self.src |= _regs(ops[0])
            if op.startswith("v_cmpx"):
                self.dst |= {("exec", 0)}
        elif op.startswith("ds_"):
            self.kind = "ds"
            if op.startswith(("ds_read", "ds_bpermute", "ds_permute", "ds_swizzle")) or "_rtn" in op:
                self.dst = _regs(ops[0])
                for o in ops[1:]:
                    self.src |= _regs(o)
            else:
                for o in ops:
                    self.src |= _regs(o)
        elif op.startswith(("global_", "buffer_", "flat_")):
            self.kind = "vmem"
            mods = getattr(self, "mods", [])
            self.lds = ("_lds_" in op) or ("lds" in mods)
            if "_load" in op and not self.lds:
                self.dst = _regs(ops[0])
                for o in ops[1:]:
                    self.src |= _regs(o)
            else:
                for o in ops:
                    self.src |= _regs(o)
            self.wide_store = ("_store_dwordx3" in op or "_store_dwordx4" in op)
            if self.wide_store:
                self.data = _regs(ops[1]) if op.startswith("global_") else _regs(ops[0])
        elif op.startswith("s_"):
            self.kind = "salu"
            if op.startswith(("s_cmp", "s_cbranch", "s_branch", "s_waitcnt", "s_barrier", "s_endpgm", "s_setprio",
                              "s_sleep", "s_bitcmp", "s_setpc")):
                for o in ops:
                    self.src |= _regs(o)
            else:
                if ops:
                    self.dst = _regs(ops[0])
                for o in ops[1:]:
                    self.src |= _regs(o)
                if "saveexec" in op:
                    self.dst |= {("exec", 0)}


def _vg(rs):
    return {r for r in rs if r[0] in ("v", "a")}


def _sg(rs):
    return {r for r in rs if r[0] in ("s", "vcc")}


def need(p, c):
    n = 0
    if p.kind == "valu":
        pv = _vg(p.dst)
        ps = _sg(p.dst)
        if c.kind == "mfma" and pv & c.src:
            n = max(n, 2)
        if c.kind == "valu":
            if p.op.startswith(TRANS) and not c.op.startswith(TRANS) and pv & c.src:
                n = max(n, 1)
            if c.op.startswith(("v_readfirstlane", "v_readlane")) and pv & _vg(c.src):
                n = max(n, 1)
            if c.op.startswith("v_permlane") and pv & c.src:
                n = max(n, 2)
            if ("dpp" in c.op or "quad_perm" in c.text or "row_" in c.text) and pv & c.src:
                n = max(n, 2)
            if ps & _sg(c.src):
                n = max(n, 4 if c.op.startswith(("v_readlane", "v_writelane")) else 2)
            if ("sdwa" in p.op or "op_sel" in p.text and not p.op.startswith("v_pk")) and pv & (c.src | c.dst):
                n = max(n, 1)
        if c.kind == "vmem" and ps & _sg(c.src):
            n = max(n, 5)
        if ("exec", 0) in p.dst:
            n = max(n, 5)
    if p.kind == "mfma":
        big = {2: 5, 4: 8, 8: 12, 16: 20}[p.passes]
        ov = {2: 4, 4: 6, 8: 10, 16: 18}[p.passes]
        war = {2: 1, 4: 3, 8: 7, 16: 15}[p.passes]
        if c.kind == "mfma":
            if p.dst & c.srcAB:
                n = max(n, big)
            if p.dst & c.srcC:
                if p.dst == c.srcC and p.passes == c.passes:
                    n = max(n, 2 if p.passes == 2 else 0)
                else:
                    n = max(n, ov)
            elif p.dst & c.dst:
                if c.passes < p.passes:
                    n = max(n, ov)
        elif c.kind in ("valu", "ds", "vmem"):
            if p.dst & (c.src | c.dst):
                n = max(n, big)
            if c.kind == "valu" and p.srcC & c.dst:
                n = max(n, war)
            if c.kind in ("ds", "vmem") and p.srcC & c.dst:
                n = max(n, war)
    if p.kind == "salu" and ("m0", 0) in p.dst:
        if c.kind == "vmem" and getattr(c, "lds", False):
            n = max(n, 1)
    if p.kind == "vmem" and getattr(p, "wide_store", False):
        if c.kind == "valu" and p.data & c.dst:
            n = max(n, 2)
        elif p.data & c.dst:
            n = max(n, 1)
    return n


def fix_hazards(lines, verbose=False):
    out = []
    window = []
    inserted = 0
    for text in lines:
        ins = Ins(text)
        if ins.kind == "none":
            out.append(text)
            continue
        dist = 0
        req = 0
        for p in reversed(window):
            r = need(p, ins)
            if r > dist:
                req = max(req, r - dist)
            dist += p.states
            if dist >= 20:
                break
        while req > 0:
            k = min(req, 16)
            nop = f"    s_nop {k-1}"
            out.append(nop)
            window.append(Ins(nop))
            inserted += k
            if verbose:
                print("nop", k, "before", text.strip())
            req -= k
        out.append(text)
        window.append(ins)
        if ins.op in ("s_branch", "s_endpgm", "s_setpc_b64"):
            window = []
        window = window[-24:]
    return out, inserted


class Asm:
    def __init__(self):
        self.L = []
        self._lab = 0

    def __call__(self, text):
        for ln in text.split("\n"):
            ln = ln.strip()
            if not ln:
                continue
            if ln.endswith(":") or ln.startswith("."):
                self.L.append(ln)
            else:
                self.L.append("    " + ln)

    def label(self, base="L"):
        self._lab += 1
        return f"{base}_{self._lab}"

    def comment(self, t):
        self.L.append("    ; " + t)


def text_size(txt):
    import subprocess, tempfile, os
    d = tempfile.mkdtemp()
    open(d + "/t.s", "w").write(txt)
    r = subprocess.run(["clang", "-x", "assembler", "-target", "amdgcn-amd-amdhsa", "-mcpu=gfx950",
                        "-c", d + "/t.s", "-o", d + "/t.o"], capture_output=True, text=True)
    if r.returncode != 0:
        print(r.stderr[:4000])
        raise SystemExit(1)
    o = subprocess.run(["llvm-readelf", "-S", d + "/t.o"], capture_output=True, text=True).stdout
    for ln in o.splitlines():
        if " .text " in ln:
            f = ln.split("]")[1].split()
            return int(f[4], 16)
    raise SystemExit("no text")
```

```python
import sys, os, math, struct
sys.path.insert(0, os.path.dirname(os.path.abspath(__file__)))
from asmlib import *

NAME = "concat_heads__grouped_kv_mqa__ssm_conv_s4__prompt"
REF = f"cdna_kernels/{NAME}.s.ref"


def f32(x):
    return "0x%08x" % struct.unpack("<I", struct.pack("<f", x))[0]


LOG2E = 1.4426950408889634
QSCALE = LOG2E * (18 ** -0.5)

S_SZ = 17408
XW = 52224
WX = 125952
WK = 135424
FL = 163072
QI = 152320
QST = 168
UI = 52224
U_SZ = 4608
CB = 66048
OD = 107008
OD_T = 2816
OD_W = 2 * OD_T
WO_M = 0
WO_X = 73728
OT = 107008
LDS_TOTAL = 163840
CST = 4160

WS_FKV = 4096
WS_FO = 40960
WS_K = 0x20000
WS_KX = 0x30000
WS_V = 0x32000
WS_O = 0x50000
WS_DBG = 0x400000

sWV, sQB, sG, sCID, sTAG = 3, 4, 5, 6, 7
SRA, SRB = 8, 12
pX, pWQ, pWK, pWV, pWO, pU, pARE, pAIM, pBRE, pBIM, pCRE, pCIM, pLDT, pDSK, pOUT, pDBG, pWS = range(16, 50, 2)
sCH0, sCHS, sJJ = 50, 51, 52
T0 = 54

vL = 1
SX, SY = 16, 48
OA, OB = 80, 96
QA, QB, QX = 112, 116, 120
IDX = 122
UR = 124
KR, VR, XR = 152, 184, 248


def gen(opts):
    a = Asm()
    dbg = opts.get("dbg", 0)
    stamps = opts.get("stamps", 0)
    nst = [0]

    def stamp(i):
        if stamps:
            a(f"s_memrealtime {s(80+2*i,2)}")

    def lds_wait(addr, val, vt, st, cmp="ge"):
        lab = a.label("Lspin")
        a(f"v_mov_b32 {v(vt+1)}, {addr}")
        a(f"{lab}:")
        a(f"ds_read_b32 {v(vt)}, {v(vt+1)}")
        a("s_waitcnt lgkmcnt(0)")
        a(f"v_readfirstlane_b32 {s(st)}, {v(vt)}")
        a(f"s_cmp_lt_u32 {s(st)}, {val}")
        a(f"s_cbranch_scc1 {lab}")

    def lds_add(addr, vt):
        a(f"v_mov_b32 {v(vt)}, {addr}")
        a(f"v_mov_b32 {v(vt+1)}, 1")
        a("s_mov_b64 exec, 1")
        a(f"ds_add_u32 {v(vt)}, {v(vt+1)}")
        a("s_mov_b64 exec, -1")

    def srd(r, p, nbytes):
        a(f"s_mov_b32 {s(r)}, {s(p)}")
        a(f"s_and_b32 {s(r+1)}, {s(p+1)}, 0xffff")
        a(f"s_mov_b32 {s(r+2)}, {nbytes}")
        a(f"s_mov_b32 {s(r+3)}, 0x20000")

    kname = NAME + "_kernel"
    a(f"{kname}:")
    stamp(0)
    a("s_cmp_ge_u32 s2, 256")
    a("s_cbranch_scc1 L_exit")
    a("s_load_dwordx16 s[16:31], s[0:1], 0")
    a("s_load_dwordx16 s[32:47], s[0:1], 64")
    a("s_load_dwordx2 s[48:49], s[0:1], 128")
    a(f"v_lshrrev_b32 v2, 6, v0")
    a(f"v_and_b32 {v(vL)}, 63, v0")
    a(f"v_readfirstlane_b32 {s(sWV)}, v2")
    a(f"s_and_b32 {s(T0)}, s2, 7")
    a(f"s_lshr_b32 {s(T0+1)}, s2, 3")
    a(f"s_and_b32 {s(T0+2)}, {s(T0+1)}, 3")
    a(f"s_lshl_b32 {s(sQB)}, {s(T0)}, 2")
    a(f"s_add_u32 {s(sQB)}, {s(sQB)}, {s(T0+2)}")
    a(f"s_lshr_b32 {s(sG)}, {s(T0+1)}, 2")
    a(f"s_lshl_b32 {s(sCID)}, {s(T0)}, 5")
    a(f"s_add_u32 {s(sCID)}, {s(sCID)}, {s(T0+1)}")
    a(f"s_cmp_lg_u32 {s(sWV)}, 7")
    a("s_cbranch_scc1 L_e1")
    a(f"s_getpc_b64 {s(T0+4,2)}")
    a(f"s_lshl_b32 {s(T0+3)}, {s(T0+2)}, 13")
    a(f"v_lshlrev_b32 v2, 7, {v(vL)}")
    a(f"v_add_u32 v2, {s(T0+3)}, v2")
    a(f"v_min_u32 v2, CODE_END_OFF, v2")
    a(f"global_load_dword v3, v2, {s(T0+4,2)}")
    a(f"v_lshlrev_b32 v2, 2, {v(vL)}")
    a(f"v_add_u32 v2, {FL}, v2")
    a("v_mov_b32 v4, 0")
    a("ds_write_b32 v2, v4")
    a("L_e1:")
    a(f"s_lshr_b32 {s(T0)}, {s(sCID)}, 2")
    a(f"s_and_b32 {s(sJJ)}, {s(sCID)}, 3")
    a(f"s_mul_i32 {s(T0+1)}, {s(T0)}, 9")
    a(f"s_and_b32 {s(T0+2)}, {s(T0)}, 1")
    a(f"s_lshl_b32 {s(sCH0)}, {s(sJJ)}, 1")
    a(f"s_add_u32 {s(sCH0)}, {s(sCH0)}, {s(T0+1)}")
    a(f"s_add_u32 {s(sCH0)}, {s(sCH0)}, {s(T0+2)}")
    a(f"s_cmp_eq_u32 {s(T0+2)}, 0")
    a(f"s_cselect_b32 {s(sCHS)}, 8, 0")
    a(f"s_add_u32 {s(sCHS)}, {s(sCHS)}, {s(T0+1)}")
    a("s_waitcnt lgkmcnt(0)")
    a(f"s_load_dword {s(sTAG)}, {s(pWS,2)}, 0")
    a("s_barrier")
    a(f"s_cmp_ge_u32 {s(sWV)}, 4")
    a("s_cbranch_scc1 L_swave")

    def init_kv_regs():
        a(f"v_and_b32 v2, 31, {v(vL)}")
        a("v_cmp_eq_u32 vcc, 20, v2")
        a("v_mov_b32 v3, 0x3f803f80")
        a(f"v_cndmask_b32 v2, 0, v3, vcc")
        for i in range(64):
            a(f"v_mov_b32 {v(VR+i)}, v2")
        for p in range(4):
            a(f"v_mov_b32 {v(XR+2*p+1)}, v3")

    def w_dma(srdreg, ldsM, ldsX, permuted):
        a(f"v_lshrrev_b32 v2, 3, {v(vL)}")
        a(f"v_and_b32 v3, 7, {v(vL)}")
        a("v_and_b32 v4, 2, v2")
        a("v_xor_b32 v3, v3, v4")
        a("v_lshlrev_b32 v3, 4, v3")
        a(f"s_movk_i32 {s(T0)}, 1152")
        a(f"v_mad_u32_u24 v5, v2, {s(T0)}, v3")
        a("v_xor_b32 v6, 64, v5")
        if permuted:
            a("v_lshrrev_b32 v7, 1, v2")
            a("v_mul_u32_u24 v7, 18, v7")
            a("v_and_b32 v8, 1, v2")
            a("v_add_u32 v7, v7, v8")
            a(f"v_mad_u32_u24 v7, v7, {s(T0)}, v3")
            a("v_xor_b32 v8, 64, v7")
        a(f"s_mul_i32 {s(T0+1)}, {s(sWV)}, {144*1152}")
        a(f"s_mul_i32 {s(T0+2)}, {s(sG)}, 144")
        a(f"s_add_u32 {s(T0+1)}, {s(T0+1)}, {s(T0+2)}")
        a(f"s_mul_i32 {s(T0+3)}, {s(sWV)}, 18432")
        a(f"s_add_u32 {s(T0+3)}, {s(T0+3)}, {ldsM}")
        a(f"s_mul_i32 {s(T0+4)}, {s(sWV)}, 2304")
        a(f"s_add_u32 {s(T0+4)}, {s(T0+4)}, {ldsX}")
        for jj in range(18):
            if not permuted:
                rowbase = 8 * jj
                vr = 5 + (jj & 1)
            else:
                gp, idx = divmod(jj, 9)
                if idx < 8:
                    rowbase = 72 * gp + 18 * (idx >> 1) + 8 * (idx & 1)
                    vr = 5 + (jj & 1)
                else:
                    rowbase = 72 * gp + 16
                    vr = 7 + (jj & 1)
            a(f"s_add_u32 m0, {s(T0+3)}, {1024*jj}")
            a(f"s_add_u32 {s(T0+5)}, {s(T0+1)}, {rowbase*1152}")
            a(f"buffer_load_dwordx4 v{vr}, {s(srdreg,4)}, {s(T0+5)} offen lds")
            if jj % 6 == 2:
                e = jj // 6
                a(f"v_add_u32 v9, {48*e}, {v(vL)}")
                if permuted:
                    a("v_mul_u32_u24 v10, 911, v9")
                    a("v_lshrrev_b32 v10, 16, v10")
                    a("v_mul_u32_u24 v10, 72, v10")
                    a("v_sub_u32 v9, v9, v10")
                    a("v_lshrrev_b32 v11, 4, v9")
                    a("v_mul_u32_u24 v11, 18, v11")
                    a("v_and_b32 v12, 15, v9")
                    a("v_add_u32 v11, v11, v12")
                    a("v_lshrrev_b32 v13, 1, v12")
                    a("v_mul_u32_u24 v13, 18, v13")
                    a("v_and_b32 v12, 1, v9")
                    a("v_add3_u32 v13, v13, v12, 16")
                    a("v_cmp_le_u32 vcc, 64, v9")
                    a("v_cndmask_b32 v9, v11, v13, vcc")
                    a("v_add_u32 v9, v9, v10")
                a(f"v_mul_u32_u24 v9, 1152, v9")
                a(f"s_add_u32 m0, {s(T0+4)}, {768*e}")
                a(f"s_add_u32 {s(T0+5)}, {s(T0+1)}, 128")
                a(f"buffer_load_dwordx4 v9, {s(srdreg,4)}, {s(T0+5)} offen lds")

    def proj(XF, ACC, ST, ldsM, ldsX, wait_fn):
        a(f"v_lshrrev_b32 v2, 4, {v(vL)}")
        a(f"v_bfe_u32 v3, {v(vL)}, 2, 2")
        a(f"v_and_b32 v4, 3, {v(vL)}")
        a("v_lshl_add_u32 v5, v2, 3, v3")
        a("v_lshrrev_b32 v6, 1, v3")
        a("v_and_b32 v7, 1, v2")
        a("v_lshl_or_b32 v6, v7, 1, v6")
        a("v_lshlrev_b32 v7, 7, v5")
        a("v_lshl_add_u32 v7, v4, 3, v7")
        a(f"v_add_u32 v7, {ldsM}, v7")
        a("v_and_b32 v4, 1, v4")
        a("v_lshlrev_b32 v4, 3, v4")
        a("v_lshl_add_u32 v12, v5, 4, v4")
        a(f"v_add_u32 v12, {ldsX}, v12")
        for ct in range(4):
            a(f"v_xor_b32 v2, {ct}, v6")
            a(f"v_lshl_add_u32 v{8+ct}, v2, 5, v7")
        for i in range(20):
            a(f"v_mov_b32 {v(ACC+i)}, 0")

        def reads(st_):
            half = (st_ & 1) * 20
            off = 4096 * (st_ % 9)
            for ct in range(4):
                a(f"ds_read_b64_tr_b16 {v(ST+half+4*ct,2)}, v{8+ct} offset:{off}")
                a(f"ds_read_b64_tr_b16 {v(ST+half+4*ct+2,2)}, v{8+ct} offset:{off+512}")
            a(f"ds_read_b64_tr_b16 {v(ST+half+16,2)}, v12 offset:{512*st_}")
            a(f"ds_read_b64_tr_b16 {v(ST+half+18,2)}, v12 offset:{512*st_+64}")

        wait_fn(0, "r")
        reads(0)
        for st_ in range(18):
            if st_ + 1 < 18:
                wait_fn(st_ + 1, "r")
                if st_ + 1 == 9:
                    for ct in range(4):
                        a(f"v_add_u32 v{8+ct}, {4096*9}, v{8+ct}")
                reads(st_ + 1)
                a("s_waitcnt lgkmcnt(10)")
            else:
                a("s_waitcnt lgkmcnt(0)")
            wait_fn(st_, "m")
            half = (st_ & 1) * 20
            for ct in range(5):
                a(f"v_mfma_f32_16x16x32_bf16 {v(ACC+4*ct,4)}, {v(ST+half+4*ct,4)}, {v(XF+4*st_,4)}, {v(ACC+4*ct,4)}")

    XF, ACC, ST = 16, 88, 108
    srd(SRA, pX, 2048 * 1152)
    srd(SRB, pWQ, 576 * 1152)
    a(f"v_lshrrev_b32 v2, 3, {v(vL)}")
    a(f"v_xor_b32 v2, v2, {v(vL)}")
    a("v_lshlrev_b32 v2, 4, v2")
    a(f"s_lshl_b32 {s(T0)}, {s(sQB)}, 2")
    a(f"s_add_u32 {s(T0)}, {s(T0)}, {s(sWV)}")
    a(f"s_mul_i32 {s(T0)}, {s(T0)}, 18432")
    a(f"s_mul_i32 {s(T0+1)}, {s(sWV)}, 18432")
    a(f"s_add_u32 {s(T0+1)}, {s(T0+1)}, {XW}")
    a(f"s_lshl_b32 {s(T0+2)}, {s(sG)}, 11")
    for j in range(18):
        a(f"s_add_u32 m0, {s(T0+1)}, {s(T0+2)}")
        a(f"s_add_u32 {s(T0+3)}, {s(T0)}, {s(T0+2)}")
        a(f"buffer_load_dwordx4 v2, {s(SRA,4)}, {s(T0+3)} offen lds")
        if j < 17:
            a(f"s_add_u32 {s(T0+2)}, {s(T0+2)}, 1024")
            a(f"s_cmp_eq_u32 {s(T0+2)}, 18432")
            a(f"s_cselect_b32 {s(T0+2)}, 0, {s(T0+2)}")
    init_kv_regs()
    a(f"v_and_b32 v2, 15, {v(vL)}")
    a(f"v_lshrrev_b32 v3, 4, {v(vL)}")
    a(f"v_mul_u32_u24 v4, 1152, v2")
    a(f"v_add_u32 v4, {s(T0+1)}, v4")
    for t in range(8):
        a(f"v_add_u32 v5, {t}, v2")
        a("v_and_b32 v5, 7, v5")
        a("v_xor_b32 v5, v5, v3")
        a(f"v_lshl_add_u32 {v(ST+t)}, v5, 4, v4")
        a(f"v_xor_b32 {v(ST+8+t)}, 64, {v(ST+t)}")
    a("s_waitcnt vmcnt(0) lgkmcnt(0)")
    stamp(1)
    for st_ in range(18):
        t = st_ >> 1
        a(f"ds_read_b128 {v(XF+4*st_,4)}, {v(ST+8*(st_&1)+(t&7))} offset:{128*t}")
    a("s_waitcnt lgkmcnt(0)")
    a(f"s_mul_i32 {s(sTAG)}, {s(sTAG)}, 0x9E3779B1")
    a(f"s_add_u32 {s(sTAG)}, {s(sTAG)}, 0x632BE5AB")
    a(f"s_lshr_b32 {s(T0)}, {s(sG)}, 1")
    a(f"s_cmp_lg_u32 {s(T0)}, {s(sWV)}")
    a("s_cbranch_scc1 L_p_dma")
    a(f"v_lshrrev_b32 v2, 4, {v(vL)}")
    a(f"v_bfe_u32 v3, {v(vL)}, 2, 2")
    a(f"v_and_b32 v4, 3, {v(vL)}")
    a("v_lshl_add_u32 v5, v2, 3, v3")
    a("v_mul_u32_u24 v5, 48, v5")
    a(f"v_add_u32 v5, {WK}, v5")
    a("v_lshl_add_u32 v6, v4, 3, v5")
    a("v_add_u32 v7, 40, v5")
    for i in range(8):
        a(f"v_mov_b32 {v(ACC+i)}, 0")
    lds_wait(FL + 0, 1, 8, T0)
    a(f"s_and_b32 {s(T0)}, {s(sG)}, 1")
    a(f"s_cmp_eq_u32 {s(T0)}, 1")
    a("s_cbranch_scc1 L_pv")

    def kvproj(isV):
        def rd(st_):
            b = ST + 8 * (st_ % 4)
            o = 48 * 32 * st_
            a(f"ds_read_b64_tr_b16 {v(b,2)}, v6 offset:{o}")
            a(f"ds_read_b64_tr_b16 {v(b+2,2)}, v6 offset:{o+192}")
            a(f"ds_read_b64_tr_b16 {v(b+4,2)}, v7 offset:{o}")
            a(f"ds_read_b64_tr_b16 {v(b+6,2)}, v7 offset:{o+192}")
        for st_ in range(3):
            rd(st_)
        for st_ in range(18):
            if st_ + 3 < 18:
                rd(st_ + 3)
            a(f"s_waitcnt lgkmcnt({4*min(3, 17-st_)})")
            b = ST + 8 * (st_ % 4)
            for tl in range(2):
                w_, x_ = v(b + 4 * tl, 4), v(XF + 4 * st_, 4)
                A_, B_ = (x_, w_) if isV else (w_, x_)
                a(f"v_mfma_f32_16x16x32_bf16 {v(ACC+4*tl,4)}, {A_}, {B_}, {v(ACC+4*tl,4)}")

    kvproj(False)
    a(f"v_and_b32 v3, 15, {v(vL)}")
    a("v_lshrrev_b32 v4, 1, v2")
    a("v_lshlrev_b32 v4, 9, v4")
    a("v_and_b32 v5, 1, v2")
    a("v_lshl_add_u32 v4, v5, 3, v4")
    a("v_lshl_add_u32 v4, v3, 4, v4")
    a(f"s_lshl_b32 {s(T0)}, {s(sQB)}, 11")
    a(f"s_lshr_b32 {s(T0+1)}, {s(sWV)}, 1")
    a(f"s_lshl_b32 {s(T0+1)}, {s(T0+1)}, 10")
    a(f"s_add_u32 {s(T0)}, {s(T0)}, {s(T0+1)}")
    a(f"s_and_b32 {s(T0+1)}, {s(sWV)}, 1")
    a(f"s_lshl_b32 {s(T0+1)}, {s(T0+1)}, 8")
    a(f"s_add_u32 {s(T0)}, {s(T0)}, {s(T0+1)}")
    a(f"s_add_u32 {s(T0)}, {s(T0)}, {WS_K}")
    a(f"v_add_u32 v4, {s(T0)}, v4")
    a(f"s_lshl_b32 {s(T0)}, {s(sQB)}, 8")
    a(f"s_lshl_b32 {s(T0+1)}, {s(sWV)}, 6")
    a(f"s_add_u32 {s(T0)}, {s(T0)}, {s(T0+1)}")
    a(f"s_add_u32 {s(T0)}, {s(T0)}, {WS_KX}")
    a("v_lshlrev_b32 v5, 2, v3")
    a(f"v_add_u32 v5, {s(T0)}, v5")
    a(f"v_cvt_pk_bf16_f32 v8, {v(ACC)}, {v(ACC+1)}")
    a(f"v_cvt_pk_bf16_f32 v9, {v(ACC+2)}, {v(ACC+3)}")
    a(f"v_cvt_pk_bf16_f32 v10, {v(ACC+6)}, {v(ACC+7)}")
    a(f"global_store_dwordx2 v4, v[8:9], {s(pWS,2)} sc1")
    a("s_mov_b64 exec, 0xffff")
    a(f"global_store_dword v5, v10, {s(pWS,2)} sc1")
    a("s_mov_b64 exec, -1")
    a("s_branch L_pub")
    a("L_pv:")
    kvproj(True)
    a(f"v_and_b32 v3, 15, {v(vL)}")
    a("v_lshrrev_b32 v4, 1, v2")
    a("v_mul_u32_u24 v4, 288, v4")
    a("v_and_b32 v5, 1, v2")
    a("v_lshl_add_u32 v4, v5, 3, v4")
    a("v_lshl_add_u32 v4, v3, 4, v4")
    a(f"s_lshl_b32 {s(T0)}, {s(sQB)}, 2")
    a(f"s_add_u32 {s(T0)}, {s(T0)}, {s(sWV)}")
    a(f"s_mul_i32 {s(T0)}, {s(T0)}, 576")
    a(f"s_add_u32 {s(T0)}, {s(T0)}, {WS_V}")
    a(f"v_add_u32 v4, {s(T0)}, v4")
    a(f"v_cvt_pk_bf16_f32 v8, {v(ACC)}, {v(ACC+1)}")
    a(f"v_cvt_pk_bf16_f32 v9, {v(ACC+2)}, {v(ACC+3)}")
    a(f"v_cvt_pk_bf16_f32 v10, {v(ACC+4)}, {v(ACC+5)}")
    a(f"v_cvt_pk_bf16_f32 v11, {v(ACC+6)}, {v(ACC+7)}")
    a(f"global_store_dwordx2 v4, v[8:9], {s(pWS,2)} sc1")
    a(f"s_mov_b32 exec_lo, 0x000c000c")
    a(f"s_mov_b32 exec_hi, 0x000c000c")
    a(f"global_store_dwordx2 v4, v[10:11], {s(pWS,2)} offset:224 sc1")
    a("s_mov_b64 exec, -1")
    a("L_pub:")
    a(f"s_lshl_b32 {s(T0)}, {s(sQB)}, 3")
    a(f"s_add_u32 {s(T0)}, {s(T0)}, {s(sG)}")
    a(f"s_lshl_b32 {s(T0)}, {s(T0)}, 7")
    a(f"s_add_u32 {s(T0)}, {s(T0)}, {WS_FKV}")
    a(f"v_mov_b32 v4, {s(T0)}")
    a(f"v_mov_b32 v5, {s(sTAG)}")
    a("s_waitcnt vmcnt(0)")
    a("s_mov_b64 exec, 1")
    a(f"global_store_dword v4, v5, {s(pWS,2)} sc1")
    a("s_mov_b64 exec, -1")
    stamp(2)
    a("L_p_dma:")
    w_dma(SRB, XW, WX, False)
    a("s_waitcnt vmcnt(0)")
    lds_add(FL + 4, 2)
    lds_wait(FL + 4, 4, 2, T0)
    stamp(3)
    proj(XF, ACC, ST, XW, WX, lambda st_, k: None)
    a(f"v_and_b32 v2, 15, {v(vL)}")
    a(f"v_lshrrev_b32 v3, 4, {v(vL)}")
    a(f"v_mul_u32_u24 v2, {QST}, v2")
    a("v_lshl_add_u32 v2, v3, 3, v2")
    a(f"s_mul_i32 {s(T0)}, {s(sWV)}, {16*QST}")
    a(f"s_add_u32 {s(T0)}, {s(T0)}, {QI}")
    a(f"v_add_u32 v2, {s(T0)}, v2")
    a(f"s_mov_b32 {s(T0)}, {f32(QSCALE)}")
    a(f"s_mov_b32 {s(T0+1)}, {f32(QSCALE)}")
    for ct in range(5):
        b = ACC + 4 * ct
        a(f"v_pk_mul_f32 {v(b,2)}, {v(b,2)}, {s(T0,2)}")
        a(f"v_pk_mul_f32 {v(b+2,2)}, {v(b+2,2)}, {s(T0,2)}")
        a(f"v_cvt_pk_bf16_f32 {v(b)}, {v(b)}, {v(b+1)}")
        a(f"v_cvt_pk_bf16_f32 {v(b+1)}, {v(b+2)}, {v(b+3)}")
        a(f"ds_write_b64 v2, {v(b,2)} offset:{32*ct}")
    a("s_branch L_phase2")

    a("L_swave:")
    a(f"s_cmp_lg_u32 {s(sWV)}, 7")
    a("s_cbranch_scc1 L_kgen")
    a(f"s_and_b32 {s(T0)}, {s(sG)}, 1")
    a(f"s_cmp_eq_u32 {s(T0)}, 1")
    a(f"s_cselect_b32 {s(T0+2)}, {s(pWV)}, {s(pWK)}")
    a(f"s_cselect_b32 {s(T0+3)}, {s(pWV+1)}, {s(pWK+1)}")
    for i in range(3):
        a(f"v_add_u32 v2, {64*i}, {v(vL)}")
        a("v_mul_u32_u24 v4, 21846, v2")
        a("v_lshrrev_b32 v4, 16, v4")
        a("v_mul_u32_u24 v5, 3, v4")
        a("v_sub_u32 v5, v2, v5")
        a("v_lshlrev_b32 v5, 4, v5")
        a("v_min_u32 v5, 20, v5")
        a(f"v_mad_u32_u24 v{6+i}, v4, 36, v5")
    for j in range(27):
        a(f"s_mov_b32 m0, {WK + 1024*j}")
        a(f"global_load_lds_dwordx4 v{6 + j % 3}, {s(T0+2,2)}")
        if j % 3 == 2 and j < 26:
            a(f"s_add_u32 {s(T0+2)}, {s(T0+2)}, {64*36}")
            a(f"s_addc_u32 {s(T0+3)}, {s(T0+3)}, 0")
    a(f"s_lshr_b32 {s(T0)}, s2, 3")
    a(f"s_mul_i32 {s(T0)}, {s(T0)}, 20736")
    a(f"v_lshlrev_b32 v2, 7, {v(vL)}")
    for i in range(3):
        a(f"v_add_u32 v4, {8192*i}, v2")
        a(f"v_min_u32 v4, {20736-128}, v4")
        a(f"v_add_u32 v4, {s(T0)}, v4")
        a(f"global_load_dword v{10+i}, v4, {s(pWQ,2)}")
    a("s_waitcnt vmcnt(3)")
    lds_add(FL + 0, 2)
    init_kv_regs()
    a("s_waitcnt lgkmcnt(0)")
    a(f"s_mul_i32 {s(sTAG)}, {s(sTAG)}, 0x9E3779B1")
    a(f"s_add_u32 {s(sTAG)}, {s(sTAG)}, 0x632BE5AB")
    a("s_branch L_phase2")

    a("L_kgen:")
    a(f"s_sub_u32 {s(T0)}, {s(sWV)}, 4")
    a(f"s_add_u32 {s(T0+1)}, {s(sCH0)}, {s(T0)}")
    a(f"s_cmp_eq_u32 {s(T0)}, 2")
    a(f"s_cselect_b32 {s(T0+1)}, {s(sCHS)}, {s(T0+1)}")
    a(f"s_lshl_b32 {s(T0+2)}, {s(T0+1)}, 8")
    a(f"v_lshlrev_b32 v2, 2, {v(vL)}")
    a(f"v_add_u32 v3, {s(T0+2)}, v2")
    PR = 4
    for i, p in enumerate((pARE, pAIM, pBRE, pBIM, pCRE, pCIM)):
        a(f"global_load_dword v{PR+i}, v3, {s(p,2)}")
    a(f"s_lshl_b32 {s(T0+2)}, {s(T0+1)}, 1")
    a(f"v_mov_b32 v3, {s(T0+2)}")
    a(f"global_load_ushort v10, v3, {s(pLDT,2)}")
    a(f"s_mul_i32 {s(T0+3)}, {s(T0)}, {S_SZ}")
    a(f"v_add_u32 v11, {s(T0+3)}, v2")
    a(f"v_and_b32 v12, 31, {v(vL)}")
    a(f"v_lshrrev_b32 v13, 5, {v(vL)}")
    a("v_mul_u32_u24 v14, 272, v12")
    a("v_lshl_add_u32 v14, v13, 4, v14")
    a(f"v_add_u32 v14, {s(T0+3)}, v14")
    init_kv_regs()
    KD = 16
    for i in range(16):
        a(f"v_mov_b32 {v(KD+i)}, 0")
    a("s_waitcnt vmcnt(0) lgkmcnt(0)")
    a(f"s_mul_i32 {s(sTAG)}, {s(sTAG)}, 0x9E3779B1")
    a(f"s_add_u32 {s(sTAG)}, {s(sTAG)}, 0x632BE5AB")
    stamp(1)
    a("v_lshlrev_b32 v10, 16, v10")
    a(f"v_mul_f32 v10, {f32(LOG2E)}, v10")
    a("v_exp_f32 v10, v10")
    a("v_cvt_pk_bf16_f32 v10, v10, v10")
    a("v_lshlrev_b32 v10, 16, v10")
    a(f"s_mov_b32 {s(T0+4)}, 0")
    a("L_kround:")
    U0 = 32
    for i in range(6):
        a(f"v_lshlrev_b32 {v(U0+i)}, 16, v{PR+i}")
    for i in range(6):
        a(f"v_lshrrev_b32 v{PR+i}, 16, v{PR+i}")
    a(f"v_mul_f32 {v(U0)}, v10, {v(U0)}")
    a(f"v_mul_f32 {v(U0+1)}, v10, {v(U0+1)}")
    a(f"v_mul_f32 {v(U0+2)}, v10, {v(U0+2)}")
    a(f"v_mul_f32 {v(U0+3)}, v10, {v(U0+3)}")
    a(f"v_mul_f32 {v(U0)}, {f32(LOG2E)}, {v(U0)}")
    a(f"v_mul_f32 {v(U0+1)}, 0.15915494, {v(U0+1)}")
    Z1, Z8, Z256 = 38, 40, 42
    TT = 44

    def cmul(r, x, y):
        a(f"v_pk_mul_f32 {v(r,2)}, {v(x,2)}, {v(y,2)} op_sel:[0,0] op_sel_hi:[0,1]")
        a(f"v_pk_fma_f32 {v(r,2)}, {v(x,2)}, {v(y,2)}, {v(r,2)} op_sel:[1,1,0] op_sel_hi:[1,0,1] neg_lo:[0,1,0]")

    for z, pw in ((Z1, 1.0), (Z8, 8.0), (Z256, 256.0)):
        a(f"v_mul_f32 {v(TT)}, {f32(pw)}, {v(U0)}")
        a(f"v_mul_f32 {v(TT+1)}, {f32(pw)}, {v(U0+1)}")
        a(f"v_exp_f32 {v(TT)}, {v(TT)}")
        a(f"v_fract_f32 {v(TT+1)}, {v(TT+1)}")
        a(f"v_cos_f32 {v(z)}, {v(TT+1)}")
        a(f"v_sin_f32 {v(z+1)}, {v(TT+1)}")
        a(f"v_mul_f32 {v(z)}, {v(TT)}, {v(z)}")
        a(f"v_mul_f32 {v(z+1)}, {v(TT)}, {v(z+1)}")
    H = 46
    G1 = 64
    G2 = 74
    LO = 84
    CV = 88
    cvn = [0]

    def put(row, r, neg):
        t = CV + (cvn[0] % 8)
        cvn[0] += 1
        a(f"v_cvt_pk_bf16_f32 {v(t)}, {v(r)}, {'-' if neg else ''}{v(r+1)}")
        rows = row if isinstance(row, (list, tuple)) else [row]
        for rw in rows:
            a(f"ds_write_b32 v11, {v(t)} offset:{rw*272}")

    def mrow(r, h):
        return (r % 4) + 4 * h + 8 * (r // 4)

    hi_ops = []
    hi_ops.append(lambda: (cmul(H, U0 + 4, U0 + 2), put(mrow(0, 0), H, True)))
    for e in range(1, 9):
        if e < 8:
            hi_ops.append(lambda e=e: (cmul(H + 2 * e, H + 2 * e - 2, Z1), put(mrow(e, 0), H + 2 * e, True)))
        else:
            hi_ops.append(lambda e=e: cmul(H + 2 * e, H + 2 * e - 2, Z1))
    s1rows = {0: [0, 1], 2: [2], 4: [3, 4, 5], 6: [6], 8: [7]}
    for n, e in enumerate((0, 2, 4, 6, 8)):
        hi_ops.append(lambda n=n, e=e: (cmul(G1 + 2 * n, H + 2 * e, Z256), put([mrow(r, 1) for r in s1rows[e]], G1 + 2 * n, True)))
    for n, src in enumerate((0, 2, 4)):
        hi_ops.append(lambda n=n, src=src: (cmul(G2 + 2 * n, G1 + 2 * src, Z256), put(mrow(8 + n, 0), G2 + 2 * n, True)))
    for n in range(3):
        hi_ops.append(lambda n=n: (cmul(G1 + 2 * n, G2 + 2 * n, Z256), put(mrow(8 + n, 1), G1 + 2 * n, True)))
    for n, src in enumerate((0, 2)):
        hi_ops.append(lambda n=n, src=src: (cmul(G2 + 2 * n, G1 + 2 * src, Z256), put(mrow(11 + n, 0), G2 + 2 * n, True)))
    for n in range(2):
        hi_ops.append(lambda n=n: (cmul(G1 + 2 * n, G2 + 2 * n, Z256), put(mrow(11 + n, 1), G1 + 2 * n, True)))
    for n in range(2):
        hi_ops.append(lambda n=n: (cmul(G2 + 2 * n, G1 + 2 * n, Z256), put(mrow(13 + n, 0), G2 + 2 * n, True)))
    for n in range(2):
        hi_ops.append(lambda n=n: (cmul(G1 + 2 * n, G2 + 2 * n, Z256), put(mrow(13 + n, 1), G1 + 2 * n, True)))
    lo_ops = []

    def lo0():
        a(f"v_mov_b32 {v(CV)}, 0x3f80")
        a(f"ds_write_b32 v11, {v(CV)} offset:{32*272}")
        cvn[0] = 1
        put(33, Z8, False)
    lo_ops.append(lo0)
    for j in range(2, 32):
        src = Z8 if j == 2 else LO + 2 * ((j - 1) & 1)
        lo_ops.append(lambda j=j, src=src: (cmul(LO + 2 * (j & 1), src, Z8), put(32 + j, LO + 2 * (j & 1), False)))
    for i in range(max(len(hi_ops), len(lo_ops))):
        if i < len(lo_ops):
            lo_ops[i]()
        if i < len(hi_ops):
            hi_ops[i]()
    FR = 96
    for ks in range(8):
        b = FR + 8 * (ks % 6)
        if ks >= 6:
            a(f"s_waitcnt lgkmcnt(10)")
            bb = FR + 8 * ((ks - 6) % 6)
            a(f"v_mfma_f32_32x32x16_bf16 {v(KD,16)}, {v(bb,4)}, {v(bb+4,4)}, {v(KD,16)}")
        a(f"ds_read_b128 {v(b,4)}, v14 offset:{32*ks}")
        a(f"ds_read_b128 {v(b+4,4)}, v14 offset:{32*272+32*ks}")
    for ks in range(2, 8):
        a(f"s_waitcnt lgkmcnt({2*(7-ks)})")
        bb = FR + 8 * (ks % 6)
        a(f"v_mfma_f32_32x32x16_bf16 {v(KD,16)}, {v(bb,4)}, {v(bb+4,4)}, {v(KD,16)}")
    a(f"s_add_u32 {s(T0+4)}, {s(T0+4)}, 1")
    a(f"s_cmp_lt_u32 {s(T0+4)}, 2")
    a("s_cbranch_scc1 L_kround")
    E = 32
    a("v_lshlrev_b32 v2, 4, v12")
    a("v_lshl_add_u32 v2, v13, 9, v2")
    a(f"v_add_u32 v2, {s(T0+3)}, v2")
    a("v_and_b32 v3, 1, v12")
    a("v_cmp_eq_u32 vcc, 1, v3")
    for i in range(4):
        a(f"v_mov_b32 {v(E+16+i)}, 0")
    a("s_nop 7")
    for i in range(4):
        a(f"v_cvt_pk_bf16_f32 {v(E+i)}, {v(KD+2*i)}, {v(KD+2*i+1)}")
    a(f"ds_write_b128 v2, {v(E,4)} offset:32")
    a(f"v_cvt_pk_bf16_f32 {v(E+4)}, {v(KD+8)}, {v(KD+8)}")
    a(f"v_cvt_pk_bf16_f32 {v(E+5)}, {v(KD+8)}, {v(KD+9)}")
    a(f"v_cvt_pk_bf16_f32 {v(E+6)}, {v(KD+9)}, {v(KD+9)}")
    a(f"v_cvt_pk_bf16_f32 {v(E+7)}, {v(KD+10)}, {v(KD+10)}")
    a(f"ds_write_b128 v2, {v(E+4,4)} offset:{32+1024}")
    for n, r0 in enumerate((11, 13)):
        b = E + 8 + 4 * n
        a(f"v_cndmask_b32 v3, {v(KD+r0)}, {v(KD+r0+1)}, vcc")
        a(f"v_cvt_pk_bf16_f32 {v(b)}, {v(KD+r0)}, {v(KD+r0)}")
        a(f"v_mov_b32 {v(b+1)}, {v(b)}")
        a(f"v_cvt_pk_bf16_f32 {v(b+2)}, v3, {v(KD+r0+1)}")
        a(f"v_cvt_pk_bf16_f32 {v(b+3)}, {v(KD+r0+1)}, {v(KD+r0+1)}")
        a(f"ds_write_b128 v2, {v(b,4)} offset:{32+2048+1024*n}")
    a(f"v_mov_b32 v3, {s(T0+3)}")
    a("s_mov_b64 exec, 1")
    a(f"ds_write_b128 v3, {v(E+16,4)}")
    a(f"ds_write_b128 v3, {v(E+16,4)} offset:16")
    for c in range(1, 4):
        a(f"ds_write_b128 v3, {v(E+16,4)} offset:{CST*c}")
    a("s_mov_b64 exec, -1")
    a(f"v_lshlrev_b32 v2, 4, {v(vL)}")
    a(f"v_add_u32 v2, {s(T0+3)}, v2")
    goffs = (1, 65, 129, 193, 194)
    D0 = 56
    for n, go in enumerate(goffs):
        a(f"ds_read_b128 {v(D0+6*n,4)}, v2 offset:{16*go}")
        a(f"ds_read_b64 {v(D0+6*n+4,2)}, v2 offset:{16*go+16}")
    for n, go in enumerate(goffs):
        d = D0 + 6 * n
        t = 96 + 12 * (n % 4)
        a(f"s_waitcnt lgkmcnt({min(15, 2*(4-n) + 3*n)})")
        for i in range(4):
            a(f"v_alignbit_b32 {v(t+i)}, {v(d+i+1)}, {v(d+i)}, 16")
        for i in range(4):
            a(f"v_mov_b32 {v(t+4+i)}, {v(d+1+i)}")
        for i in range(4):
            a(f"v_alignbit_b32 {v(t+8+i)}, {v(d+i+2)}, {v(d+i+1)}, 16")
        for c in range(1, 4):
            a(f"ds_write_b128 v2, {v(t+4*(c-1),4)} offset:{CST*c+16*go}")
    stamp(2)

    a("L_phase2:")
    stamp(4)
    a(f"v_mov_b32 {v(IDX)}, 0xdddd")
    a(f"v_mov_b32 {v(QX+1)}, 0")
    a(f"v_and_b32 v2, 31, {v(vL)}")
    a("v_lshlrev_b32 v3, 7, v2")
    a(f"s_lshl_b32 {s(T0)}, {s(sWV)}, 12")
    a(f"s_add_u32 {s(T0)}, {s(T0)}, {WS_FKV}")
    a(f"v_add_u32 v3, {s(T0)}, v3")

    def poll(vaddr, lab):
        a(f"s_mov_b32 {s(T0)}, 0")
        a(f"{lab}:")
        a(f"global_load_dword v4, v{vaddr}, {s(pWS,2)} sc1")
        a(f"s_add_u32 {s(T0)}, {s(T0)}, 1")
        a("s_waitcnt vmcnt(0)")
        a(f"v_cmp_ne_u32 vcc, {s(sTAG)}, v4")
        a(f"s_cmp_gt_u32 {s(T0)}, 0x200000")
        a(f"s_cbranch_scc1 {lab}_d")
        a(f"s_cbranch_vccnz {lab}")
        a(f"{lab}_d:")
    poll(3, "L_pollkv")
    stamp(5)
    a(f"v_lshlrev_b32 v3, 4, {v(vL)}")
    a(f"v_lshlrev_b32 v4, 2, {v(vL)}")
    a("v_and_b32 v5, 19, v2")
    a("v_bfe_u32 v6, v2, 2, 1")
    a("v_lshl_or_b32 v5, v6, 3, v5")
    a("v_bfe_u32 v6, v2, 3, 1")
    a("v_lshl_or_b32 v5, v6, 2, v5")
    a("v_lshlrev_b32 v5, 4, v5")
    a(f"v_lshrrev_b32 v6, 5, {v(vL)}")
    a(f"s_movk_i32 {s(T0)}, 288")
    a(f"v_mad_u32_u24 v5, v6, {s(T0)}, v5")
    a(f"s_lshl_b32 {s(T0)}, {s(sWV)}, 13")
    a(f"s_add_u32 {s(T0)}, {s(T0)}, {WS_K}")
    a(f"v_add_u32 v3, {s(T0)}, v3")
    a(f"v_add_u32 v7, 4096, v3")
    a(f"s_lshl_b32 {s(T0)}, {s(sWV)}, 10")
    a(f"s_add_u32 {s(T0)}, {s(T0)}, {WS_KX}")
    a(f"v_add_u32 v4, {s(T0)}, v4")
    a(f"s_mul_i32 {s(T0)}, {s(sWV)}, {16*576}")
    a(f"s_add_u32 {s(T0)}, {s(T0)}, {WS_V + 3456}")
    a(f"v_add_u32 v5, {s(T0)}, v5")
    a(f"v_add_u32 v6, {8*576}, v5")
    for p in range(4):
        a(f"global_load_dword {v(XR+2*p)}, v4, {s(pWS,2)} offset:{256*p} sc1")
    for t in range(8):
        a(f"global_load_dwordx4 {v(KR+4*t,4)}, v{3 if t < 4 else 7}, {s(pWS,2)} offset:{1024*(t%4)} sc1")
    a("s_mov_b32 exec_lo, 0x3ffff")
    a("s_mov_b32 exec_hi, 0x3ffff")
    for ht in range(16):
        a(f"global_load_dwordx4 {v(VR+4*ht,4)}, v{5 if ht < 8 else 6}, {s(pWS,2)} offset:{576*(ht%8)-3456} sc1")
    a("s_mov_b64 exec, -1")
    vQ, vQX, vOD, vRM, vRL, vRX, vOS, vOX = 140, 141, 142, 143, 144, 145, 146, 147
    a(f"v_lshrrev_b32 v6, 5, {v(vL)}")
    a(f"v_mul_u32_u24 {v(vQ)}, {QST}, v2")
    a(f"v_add_u32 {v(vQ)}, {QI}, {v(vQ)}")
    a(f"v_mad_u32_u24 {v(vQX)}, v6, 36, {v(vQ)}")
    a(f"v_lshl_add_u32 {v(vQ)}, v6, 4, {v(vQ)}")
    a(f"s_mul_i32 {s(T0)}, {s(sWV)}, {OD_W}")
    a(f"s_add_u32 {s(T0)}, {s(T0)}, {OD}")
    a(f"v_lshlrev_b32 {v(vOD)}, 4, {v(vL)}")
    a(f"v_add_u32 {v(vOD)}, {s(T0)}, {v(vOD)}")
    a(f"v_lshlrev_b32 v148, 3, {v(vL)}")
    a(f"v_add_u32 v148, {s(T0)}, v148")
    a(f"s_lshr_b32 {s(T0)}, {s(sWV)}, 2")
    a(f"s_bfe_u32 {s(T0+1)}, {s(sWV)}, 0x10001")
    a(f"s_and_b32 {s(T0+2)}, {s(sWV)}, 1")
    a(f"v_lshrrev_b32 v6, 2, {v(vL)}")
    a(f"v_bfe_u32 v7, {v(vL)}, 1, 1")
    a(f"v_and_b32 v8, 1, {v(vL)}")
    a(f"v_mul_u32_u24 v7, 1152, v7")
    a("v_lshl_add_u32 v7, v8, 3, v7")
    a("v_lshl_add_u32 v7, v6, 4, v7")
    a(f"s_mul_i32 {s(T0+3)}, {s(T0)}, {OD_T}")
    a(f"s_add_u32 {s(T0+3)}, {s(T0+3)}, {OD}")
    a(f"s_lshl_b32 {s(T0+4)}, {s(T0+1)}, 9")
    a(f"s_lshl_b32 {s(T0+5)}, {s(T0+2)}, 8")
    a(f"s_add_u32 {s(T0+4)}, {s(T0+4)}, {s(T0+5)}")
    a(f"s_add_u32 {s(T0+4)}, {s(T0+4)}, {s(T0+3)}")
    a(f"v_add_u32 {v(vRM)}, {s(T0+4)}, v7")
    a(f"s_lshl_b32 {s(T0+5)}, {s(T0+2)}, 7")
    a(f"s_add_u32 {s(T0+4)}, {s(T0+3)}, {s(T0+5)}")
    a(f"s_add_u32 {s(T0+4)}, {s(T0+4)}, 2304")
    a(f"v_lshlrev_b32 {v(vRX)}, 3, v6")
    a(f"v_add_u32 {v(vRX)}, {s(T0+4)}, {v(vRX)}")
    a(f"s_lshl_b32 {s(T0+3)}, {s(sQB)}, 2")
    a(f"s_add_u32 {s(T0+3)}, {s(T0+3)}, {s(T0+2)}")
    a(f"s_mul_i32 {s(T0+3)}, {s(T0+3)}, 72")
    a(f"s_mul_i32 {s(T0+4)}, {s(sG)}, 9")
    a(f"s_add_u32 {s(T0+3)}, {s(T0+3)}, {s(T0+4)}")
    a(f"s_lshl_b32 {s(T0+3)}, {s(T0+3)}, 8")
    a(f"s_add_u32 {s(T0+3)}, {s(T0+3)}, {WS_O}")
    a(f"s_lshl_b32 {s(T0+4)}, {s(T0)}, 1")
    a(f"s_add_u32 {s(T0+4)}, {s(T0+4)}, {s(T0+1)}")
    a(f"s_lshl_b32 {s(T0+4)}, {s(T0+4)}, 8")
    a(f"s_add_u32 {s(T0+4)}, {s(T0+4)}, {s(T0+3)}")
    a(f"v_lshlrev_b32 {v(vOS)}, 2, {v(vL)}")
    a(f"v_add_u32 {v(vOS)}, {s(T0+4)}, {v(vOS)}")
    a(f"s_lshl_b32 {s(T0+4)}, {s(T0)}, 2")
    a(f"s_add_u32 {s(T0+4)}, {s(T0+4)}, {s(T0+3)}")
    a(f"s_add_u32 {s(T0+4)}, {s(T0+4)}, 2048")
    a(f"v_lshlrev_b32 {v(vOX)}, 4, v6")
    a(f"v_add_u32 {v(vOX)}, {s(T0+4)}, {v(vOX)}")
    sH = 53
    a(f"s_mov_b32 {s(sH)}, {s(T0+1)}")
    a("s_waitcnt vmcnt(0) lgkmcnt(0)")
    a("s_barrier")
    stamp(6)
    a(f"s_cmp_lt_u32 {s(sWV)}, 4")
    a("s_cbranch_scc1 L_nou")
    a("v_subrev_u32 v2, 256, v0")
    a("v_mul_u32_u24 v2, 1152, v2")
    a(f"s_lshl_b32 {s(T0)}, {s(sCH0)}, 1")
    a(f"s_lshl_b32 {s(T0+1)}, {s(sCHS)}, 1")
    a(f"v_add_u32 v3, {s(T0+1)}, v2")
    a(f"v_add_u32 v2, {s(T0)}, v2")
    a(f"s_mov_b64 {s(T0+2,2)}, {s(pU,2)}")
    for r in range(8):
        a(f"global_load_dword {v(UR+r)}, v2, {s(T0+2,2)}")
        a(f"global_load_ushort {v(UR+8+r)}, v3, {s(T0+2,2)}")
        if r < 7:
            a(f"s_add_u32 {s(T0+2)}, {s(T0+2)}, {256*1152}")
            a(f"s_addc_u32 {s(T0+3)}, {s(T0+3)}, 0")
    a("L_nou:")
    sSTEP = 79
    a(f"s_mov_b32 {s(sSTEP)}, 0")
    a("L_step:")
    a(f"ds_read2_b32 {v(QA,2)}, {v(vQ)} offset0:0 offset1:1")
    a(f"ds_read2_b32 {v(QA+2,2)}, {v(vQ)} offset0:2 offset1:3")
    a(f"ds_read2_b32 {v(QB,2)}, {v(vQ)} offset0:9 offset1:10")
    a(f"ds_read2_b32 {v(QB+2,2)}, {v(vQ)} offset0:11 offset1:12")
    a(f"ds_read_b32 {v(QX)}, {v(vQX)} offset:32")
    for i in range(32):
        a(f"v_mov_b32 {v(OA+i)}, 0")
    a("s_waitcnt lgkmcnt(0)")

    def m2b(D, t):
        return f"v_mfma_f32_32x32x4_2b_bf16 {v(D,32)}, {v(XR+2*(t//2),2)}, {v(QX,2)}, 0 cbsz:1 abid:{t%2}"

    def mS(D, t, Q):
        return f"v_mfma_f32_32x32x16_bf16 {v(D,16)}, {v(KR+4*t,4)}, {v(Q,4)}, {v(D,16)}"

    def smf(O, ht, P):
        return f"v_smfmac_f32_32x32x32_bf16 {v(O,16)}, {v(VR+4*ht,4)}, {v(P,8)}, {v(IDX)}"

    a(m2b(SX, 0))
    a(mS(SX, 0, QA))
    a(mS(SX + 16, 0, QB))
    for t in range(8):
        cur, nxt = (SX, SY) if t % 2 == 0 else (SY, SX)
        ex = [f"v_exp_f32 {v(cur+i)}, {v(cur+i)}" for i in range(32)]
        last = t == 7
        seq = []
        seq += ex[0:2]
        if t > 0:
            seq.append(smf(OB, 2 * (t - 1) + 1, nxt + 24))
        seq += ex[2:5]
        if not last:
            seq.append(m2b(nxt, t + 1))
        seq += ex[5:13]
        seq.append(smf(OA, 2 * t, cur))
        seq += ex[13:18]
        seq.append(smf(OA, 2 * t + 1, cur + 8))
        seq += ex[18:22]
        if not last:
            seq.append(mS(nxt, t + 1, QA))
        seq += ex[22:26]
        seq.append(smf(OB, 2 * t, cur + 16))
        seq += ex[26:29]
        if not last:
            seq.append(mS(nxt + 16, t + 1, QB))
        seq += ex[29:32]
        if last:
            seq.append(smf(OB, 2 * t + 1, cur + 24))
        for x in seq:
            a(x)
    for T, O in enumerate((OA, OB)):
        a(f"ds_write_b128 {v(vOD)}, {v(O,4)} offset:{OD_T*T}")
        a(f"ds_write_b128 {v(vOD)}, {v(O+4,4)} offset:{OD_T*T+1152}")
        a(f"ds_write_b64 v148, {v(O+8,2)} offset:{OD_T*T+2304}")
    a("s_waitcnt lgkmcnt(0)")
    a("s_barrier")
    RM, RL, RX = 16, 32, 40
    for p in range(8):
        a(f"ds_read_b64 {v(RM+2*p,2)}, {v(vRM)} offset:{OD_W*p}")
    for p in range(8):
        a(f"ds_read_b32 {v(RL+p)}, {v(vRX)} offset:{OD_W*p+256}")
    for p in range(8):
        a(f"ds_read_b64 {v(RX+2*p,2)}, {v(vRX)} offset:{OD_W*p}")
    a("s_waitcnt lgkmcnt(0)")
    a("s_barrier")
    for base in (RM, RX):
        for stp in (2, 4, 8):
            for p in range(0, 16, 2 * stp):
                a(f"v_pk_add_f32 {v(base+p,2)}, {v(base+p,2)}, {v(base+p+stp,2)}")
    a(f"v_pk_add_f32 {v(RL,2)}, {v(RL,2)}, {v(RL+2,2)}")
    a(f"v_pk_add_f32 {v(RL+4,2)}, {v(RL+4,2)}, {v(RL+6,2)}")
    a(f"v_pk_add_f32 {v(RL,2)}, {v(RL,2)}, {v(RL+4,2)}")
    a(f"v_add_f32 {v(RL)}, {v(RL)}, {v(RL+1)}")
    a(f"v_rcp_f32 {v(RL+1)}, {v(RL)}")
    a(f"v_mul_f32 {v(RM)}, {v(RM)}, {v(RL+1)}")
    a(f"v_mul_f32 {v(RM+1)}, {v(RM+1)}, {v(RL+1)}")
    a(f"v_mul_f32 {v(RX)}, {v(RX)}, {v(RL+1)}")
    a(f"v_mul_f32 {v(RX+1)}, {v(RX+1)}, {v(RL+1)}")
    a(f"v_cvt_pk_bf16_f32 v2, {v(RM)}, {v(RM+1)}")
    a(f"v_cvt_pk_bf16_f32 v3, {v(RX)}, {v(RX+1)}")
    a(f"global_store_dword {v(vOS)}, v2, {s(pWS,2)} sc1")
    a(f"s_cmp_lg_u32 {s(sH)}, 0")
    a("s_cbranch_scc1 L_nox")
    a("s_mov_b32 exec_lo, 0x11111111")
    a("s_mov_b32 exec_hi, 0x11111111")
    a(f"global_store_dword {v(vOX)}, v3, {s(pWS,2)} sc1")
    a("s_mov_b64 exec, -1")
    a("L_nox:")
    a(f"s_movk_i32 {s(T0)}, 72")
    a(f"s_movk_i32 {s(T0+1)}, 1024")
    a(f"s_cmp_eq_u32 {s(sSTEP)}, 1")
    a(f"s_cselect_b32 {s(T0)}, {32*QST-72}, {s(T0)}")
    a(f"s_cselect_b32 {s(T0+1)}, {2*72*256-1024}, {s(T0+1)}")
    a(f"s_cselect_b32 {s(T0+2)}, {2*72*256-8}, 8")
    a(f"v_add_u32 {v(vQ)}, {s(T0)}, {v(vQ)}")
    a(f"v_add_u32 {v(vQX)}, {s(T0)}, {v(vQX)}")
    a(f"v_add_u32 {v(vOS)}, {s(T0+1)}, {v(vOS)}")
    a(f"v_add_u32 {v(vOX)}, {s(T0+2)}, {v(vOX)}")
    a(f"s_add_u32 {s(sSTEP)}, {s(sSTEP)}, 1")
    a(f"s_cmp_eq_u32 {s(sSTEP)}, 4")
    a("s_cbranch_scc1 L_phase3")
    a(f"s_cmp_eq_u32 {s(sSTEP)}, 1")
    a("s_cbranch_scc1 L_step")
    a(f"s_cmp_eq_u32 {s(sSTEP)}, 2")
    a("s_cbranch_scc1 L_conv")
    a(f"s_cmp_ge_u32 {s(sWV)}, 4")
    a("s_cbranch_scc1 L_step")
    srd(SRB, pWO, 576 * 1152)
    w_dma(SRB, WO_M, WO_X, True)
    a("s_branch L_step")

    a("L_conv:")
    a(f"s_cmp_lt_u32 {s(sWV)}, 4")
    a("s_cbranch_scc1 L_step")
    stamp(7)
    sS = T0 + 10
    a(f"s_sub_u32 {s(sS)}, {s(sWV)}, 4")
    a(f"s_lshl_b32 {s(T0)}, {s(sCH0)}, 1")
    a(f"v_mov_b32 v2, {s(T0)}")
    a(f"global_load_dword v149, v2, {s(pDSK,2)}")
    a(f"s_lshl_b32 {s(T0)}, {s(sCHS)}, 1")
    a(f"v_mov_b32 v2, {s(T0)}")
    a(f"global_load_ushort v150, v2, {s(pDSK,2)}")
    a("v_sub_u32 v2, 511, v0")
    a("v_lshlrev_b32 v2, 1, v2")
    a(f"v_add_u32 v2, {UI}, v2")
    a(f"s_mul_i32 {s(T0)}, {s(sS)}, {U_SZ}")
    a(f"s_min_u32 {s(T0)}, {s(T0)}, {2*U_SZ}")
    a(f"s_add_u32 {s(T0)}, {s(T0)}, {UI+4096}")
    a(f"v_lshlrev_b32 v3, 3, {v(vL)}")
    a(f"v_add_u32 v3, {s(T0)}, v3")
    a("v_mov_b32 v4, 0")
    a("v_mov_b32 v5, 0")
    a("ds_write_b64 v3, v[4:5]")
    a("s_waitcnt vmcnt(0)")
    for r in range(8):
        a(f"ds_write_b16 v2, {v(UR+r)} offset:{512*(7-r)}")
        a(f"ds_write_b16_d16_hi v2, {v(UR+r)} offset:{U_SZ+512*(7-r)}")
        a(f"ds_write_b16 v2, {v(UR+8+r)} offset:{2*U_SZ+512*(7-r)}")
    a("s_waitcnt lgkmcnt(0)")
    lds_add(FL + 8, 2)
    a(f"v_and_b32 v6, 15, {v(vL)}")
    a(f"v_lshrrev_b32 v7, 4, {v(vL)}")
    a("v_add_u32 v8, 1, v6")
    a("v_and_b32 v9, 3, v8")
    a("v_sub_u32 v8, v8, v9")
    a("v_lshlrev_b32 v8, 1, v8")
    a(f"s_movk_i32 {s(T0)}, {CST}")
    a(f"v_mad_u32_u24 v8, v9, {s(T0)}, v8")
    a("v_lshl_add_u32 v8, v7, 4, v8")
    a("v_lshlrev_b32 v9, 5, v6")
    a(f"v_sub_u32 v9, {UI+480}, v9")
    a("v_lshl_add_u32 v9, v7, 4, v9")
    a(f"s_lshr_b32 {s(T0)}, {s(sS)}, 1")
    a(f"s_and_b32 {s(T0+1)}, {s(sS)}, 1")
    a(f"s_lshl_b32 {s(T0+1)}, {s(T0+1)}, 8")
    a(f"s_mul_i32 {s(T0+2)}, {s(T0)}, {S_SZ}")
    a(f"s_add_u32 {s(T0+2)}, {s(T0+2)}, {s(T0+1)}")
    a(f"v_add_u32 v10, {s(T0+2)}, v8")
    a(f"s_mul_i32 {s(T0+2)}, {s(T0)}, {U_SZ}")
    a(f"s_add_u32 {s(T0+2)}, {s(T0+2)}, {s(T0+1)}")
    a(f"v_add_u32 v11, {s(T0+2)}, v9")
    a(f"s_lshl_b32 {s(T0+1)}, {s(sS)}, 7")
    a(f"s_add_u32 {s(T0+2)}, {s(T0+1)}, {2*S_SZ}")
    a(f"v_add_u32 v12, {s(T0+2)}, v8")
    a(f"s_add_u32 {s(T0+2)}, {s(T0+1)}, {2*U_SZ}")
    a(f"v_add_u32 v13, {s(T0+2)}, v9")
    CA, CBf, CC, CS = 16, 48, 80, 112
    for i in range(40):
        a(f"v_mov_b32 {v(CC+i)}, 0")
    lds_wait(FL + 8, 4, 2, T0)
    a(f"s_mov_b32 {s(T0+1)}, 4")
    a("L_cl:")

    def conv_block(va, vb, off, kmax, pairs):
        done = 0
        LOOK = 4
        function = {}
        for k in range(kmax + 1 + LOOK):
            if k <= kmax:
                a(f"ds_read_b128 {v(CBf+4*k,4)}, v{vb} offset:{off+512*(7-k)}")
                a(f"ds_read_b64 {v(CA+4*k,2)}, v{va} offset:{off+512*k}")
                a(f"ds_read_b64 {v(CA+4*k+2,2)}, v{va} offset:{off+512*k+8}")
            kk = k - LOOK
            if kk >= 0:
                todo = [p for p in pairs if max(p[1], p[2]) == kk]
                if todo:
                    a(f"s_waitcnt lgkmcnt({3*(min(k, kmax)-kk)})")
                for acc, aa, jj_ in todo:
                    a(f"v_mfma_f32_16x16x32_bf16 {v(acc,4)}, {v(CA+4*aa,4)}, {v(CBf+4*jj_,4)}, {v(acc,4)}")

    conv_block(10, 11, 0, 7, [(CC + 4 * (x + y), x, y) for x in range(8) for y in range(8 - x)])
    a("v_add_u32 v10, 64, v10")
    a("v_add_u32 v11, 64, v11")
    a(f"s_sub_u32 {s(T0+1)}, {s(T0+1)}, 1")
    a(f"s_cmp_lg_u32 {s(T0+1)}, 0")
    a("s_cbranch_scc1 L_cl")
    for jj in range(4):
        if jj < 3:
            a(f"s_cmp_lg_u32 {s(sJJ)}, {jj}")
            a(f"s_cbranch_scc1 L_cs{jj+1}")
        i1, i2 = jj, 7 - jj
        pairs = [(CS + 4, x, i2 - x) for x in range(i2 + 1)] + [(CS, x, i1 - x) for x in range(i1 + 1)]
        for rr in range(2):
            conv_block(12, 13, 64 * rr, i2, pairs)
        if jj < 3:
            a("s_branch L_csd")
            a(f"L_cs{jj+1}:")
    a("L_csd:")
    a(f"v_lshlrev_b32 v2, 4, {v(vL)}")
    a(f"s_lshl_b32 {s(T0)}, {s(sS)}, 13")
    a(f"s_add_u32 {s(T0)}, {s(T0)}, {CB}")
    a(f"v_add_u32 v3, {s(T0)}, v2")
    a(f"s_lshl_b32 {s(T0)}, {s(sS)}, 11")
    a(f"s_add_u32 {s(T0+1)}, {s(T0)}, {CB+32768}")
    a(f"v_add_u32 v4, {s(T0+1)}, v2")
    a(f"s_add_u32 {s(T0+1)}, {s(T0)}, {CB}")
    a(f"v_add_u32 v5, {s(T0+1)}, v2")
    a("s_nop 7")
    for i in range(8):
        a(f"ds_write_b128 v3, {v(CC+4*i,4)} offset:{1024*i}")
    for i in range(2):
        a(f"ds_write_b128 v4, {v(CS+4*i,4)} offset:{1024*i}")
    a("s_waitcnt lgkmcnt(0)")
    lds_add(FL + 12, 14)
    a(f"s_lshr_b32 {s(T0)}, {s(sS)}, 1")
    a(f"s_and_b32 {s(T0+1)}, {s(sS)}, 1")
    a(f"s_lshl_b32 {s(T0+2)}, {s(T0)}, 10")
    a(f"s_lshl_b32 {s(T0+3)}, {s(T0+1)}, 3")
    a(f"s_add_u32 {s(T0+2)}, {s(T0+2)}, {s(T0+3)}")
    a(f"s_add_u32 {s(T0+2)}, {s(T0+2)}, {CB+32768}")
    a(f"v_add_u32 v4, {s(T0+2)}, v2")
    a("v_lshlrev_b32 v8, 5, v6")
    a("v_lshl_add_u32 v8, v7, 3, v8")
    a(f"s_lshl_b32 {s(T0+2)}, {s(sS)}, 10")
    a(f"s_sub_u32 {s(T0+2)}, {UI+4088-512}, {s(T0+2)}")
    a(f"v_sub_u32 v9, {s(T0+2)}, v8")
    a(f"s_sub_u32 {s(T0+2)}, 7, {s(sJJ)}")
    a(f"s_cmp_eq_u32 {s(T0)}, 0")
    a(f"s_cselect_b32 {s(T0+4)}, {s(sJJ)}, {s(T0+2)}")
    a(f"s_lshl_b32 {s(T0+2)}, {s(T0+4)}, 9")
    a(f"s_lshl_b32 {s(T0+3)}, {s(T0+1)}, 2")
    a(f"s_add_u32 {s(T0+2)}, {s(T0+2)}, {s(T0+3)}")
    a(f"s_sub_u32 {s(T0+2)}, {UI+2*U_SZ+4092}, {s(T0+2)}")
    a(f"v_sub_u32 v10, {s(T0+2)}, v8")
    a(f"s_movk_i32 {s(T0+2)}, 1152")
    a(f"v_mul_lo_u32 v11, v8, {s(T0+2)}")
    srd(SRA, pOUT, 2048 * 2304)
    a(f"s_mul_i32 {s(T0+5)}, {s(sS)}, {512*2304}")
    a(f"s_lshl_b32 {s(T0+2)}, {s(sCH0)}, 1")
    a(f"s_add_u32 {s(T0+5)}, {s(T0+5)}, {s(T0+2)}")
    a(f"s_add_u32 {s(T0+5)}, {s(T0+5)}, 1152")
    a(f"s_mul_i32 {s(T0+6)}, {s(T0+4)}, {256*2304}")
    a(f"s_mul_i32 {s(T0+2)}, {s(T0+1)}, {2*2304}")
    a(f"s_add_u32 {s(T0+6)}, {s(T0+6)}, {s(T0+2)}")
    a(f"s_lshl_b32 {s(T0+2)}, {s(sCHS)}, 1")
    a(f"s_add_u32 {s(T0+6)}, {s(T0+6)}, {s(T0+2)}")
    a(f"s_add_u32 {s(T0+6)}, {s(T0+6)}, 1152")
    a("v_lshlrev_b32 v12, 16, v149")
    a("v_and_b32 v13, 0xffff0000, v149")
    a("v_lshlrev_b32 v150, 16, v150")
    lds_wait(FL + 12, 4, 14, T0)
    Y = 16
    for tl in range(2):
        for src in range(4):
            a(f"ds_read_b128 {v(Y+16*tl+4*src,4)}, v5 offset:{8192*src+1024*tl}")
    UU = 48
    for tl in range(2):
        for ch in range(2):
            a(f"ds_read_b64 {v(UU+4*tl+2*ch,2)}, v9 offset:{U_SZ*ch+512*(1-tl)}")
    a("s_waitcnt lgkmcnt(0)")
    YS = 56
    for src in range(4):
        a(f"ds_read_b64 {v(YS+2*src,2)}, v4 offset:{2048*src}")
    a("ds_read_b32 v64, v10")
    for tl in range(2):
        for ch in range(2):
            y = Y + 16 * tl + 8 * ch
            a(f"v_pk_add_f32 {v(y,2)}, {v(y,2)}, {v(y+4,2)}")
            a(f"v_pk_add_f32 {v(y+2,2)}, {v(y+2,2)}, {v(y+6,2)}")
            u_ = UU + 4 * tl + 2 * ch
            a(f"v_and_b32 {v(y+4)}, 0xffff0000, {v(u_+1)}")
            a(f"v_lshlrev_b32 {v(y+5)}, 16, {v(u_+1)}")
            a(f"v_and_b32 {v(y+6)}, 0xffff0000, {v(u_)}")
            a(f"v_lshlrev_b32 {v(y+7)}, 16, {v(u_)}")
            for r in range(4):
                a(f"v_fmac_f32 {v(y+r)}, {v(y+4+r)}, v{12+ch}")
        for r in range(4):
            y = Y + 16 * tl
            a(f"v_cvt_pk_bf16_f32 {v(y+4+r)}, {v(y+r)}, {v(y+8+r)}")
            a(f"s_add_u32 {s(T0+2)}, {s(T0+5)}, {(256*tl+r)*2304}")
            a(f"buffer_store_dword {v(y+4+r)}, v11, {s(SRA,4)}, {s(T0+2)} offen")
    a("s_waitcnt lgkmcnt(0)")
    a(f"v_pk_add_f32 {v(YS,2)}, {v(YS,2)}, {v(YS+2,2)}")
    a(f"v_pk_add_f32 {v(YS+4,2)}, {v(YS+4,2)}, {v(YS+6,2)}")
    a(f"v_pk_add_f32 {v(YS,2)}, {v(YS,2)}, {v(YS+4,2)}")
    a(f"v_and_b32 v65, 0xffff0000, v64")
    a(f"v_lshlrev_b32 v64, 16, v64")
    a(f"v_fmac_f32 {v(YS)}, v65, v150")
    a(f"v_fmac_f32 {v(YS+1)}, v64, v150")
    a(f"v_cvt_pk_bf16_f32 v66, {v(YS)}, {v(YS+1)}")
    a(f"buffer_store_short v66, v11, {s(SRA,4)}, {s(T0+6)} offen")
    a(f"buffer_store_short_d16_hi v66, v11, {s(SRA,4)}, {s(T0+6)} offen offset:2304")
    a(f"v_mov_b32 {v(QX+1)}, 0")
    stamp(8)
    a("s_branch L_step")

    a("L_phase3:")
    stamp(9)
    a("s_waitcnt vmcnt(0) lgkmcnt(0)")
    a("s_barrier")
    a(f"s_cmp_ge_u32 {s(sWV)}, 4")
    a("s_cbranch_scc1 L_fin")
    a(f"s_lshl_b32 {s(T0+1)}, {s(sQB)}, 10")
    a(f"s_add_u32 {s(T0+1)}, {s(T0+1)}, {WS_FO}")
    a(f"s_cmp_lg_u32 {s(sWV)}, 0")
    a("s_cbranch_scc1 L_nosig")
    a(f"s_lshl_b32 {s(T0)}, {s(sG)}, 7")
    a(f"s_add_u32 {s(T0)}, {s(T0)}, {s(T0+1)}")
    a(f"v_mov_b32 v4, {s(T0)}")
    a(f"v_mov_b32 v5, {s(sTAG)}")
    a("s_mov_b64 exec, 1")
    a(f"global_store_dword v4, v5, {s(pWS,2)} sc1")
    a("s_mov_b64 exec, -1")
    a("L_nosig:")
    a(f"v_and_b32 v3, 7, {v(vL)}")
    a("v_lshlrev_b32 v3, 7, v3")
    a(f"v_add_u32 v3, {s(T0+1)}, v3")
    poll(3, "L_pollo")
    a(f"s_lshl_b32 {s(T0)}, {s(sQB)}, 2")
    a(f"s_add_u32 {s(T0)}, {s(T0)}, {s(sWV)}")
    a(f"s_mul_i32 {s(T0)}, {s(T0)}, 18432")
    a(f"s_add_u32 {s(T0)}, {s(T0)}, {WS_O}")
    a(f"v_lshlrev_b32 v2, 4, {v(vL)}")
    a(f"v_add_u32 v2, {s(T0)}, v2")
    for st_ in range(18):
        a(f"global_load_dwordx4 {v(XF+4*st_,4)}, v2, {s(pWS,2)} offset:{1024*(st_%4)} sc1")
        if st_ % 4 == 3:
            a("v_add_u32 v2, 4096, v2")

    def wf(st_, k):
        if k == "m":
            a(f"s_waitcnt vmcnt({17-st_})")
    proj(XF, ACC, ST, WO_M, WO_X, wf)
    a(f"v_and_b32 v2, 15, {v(vL)}")
    a(f"v_lshrrev_b32 v3, 4, {v(vL)}")
    a(f"v_mul_u32_u24 v2, 160, v2")
    a("v_lshl_add_u32 v2, v3, 3, v2")
    a(f"s_mul_i32 {s(T0)}, {s(sWV)}, 2560")
    a(f"s_add_u32 {s(T0)}, {s(T0)}, {OT}")
    a(f"v_add_u32 v2, {s(T0)}, v2")
    for i in range(3):
        a(f"v_add_u32 v4, {64*i}, {v(vL)}")
        a("v_mul_u32_u24 v5, 7282, v4")
        a("v_lshrrev_b32 v5, 16, v5")
        a("v_mul_u32_u24 v6, 9, v5")
        a("v_sub_u32 v6, v4, v6")
        a("v_lshlrev_b32 v6, 4, v6")
        a(f"v_mul_u32_u24 v7, 160, v5")
        a(f"v_add3_u32 v{8+i}, v7, v6, {s(T0)}")
        a(f"v_mul_u32_u24 v7, 2304, v5")
        a(f"v_add_u32 v{11+i}, v7, v6")
    for ct in range(5):
        b = ACC + 4 * ct
        a(f"v_cvt_pk_bf16_f32 {v(b)}, {v(b)}, {v(b+1)}")
        a(f"v_cvt_pk_bf16_f32 {v(b+1)}, {v(b+2)}, {v(b+3)}")
        a(f"ds_write_b64 v2, {v(b,2)} offset:{32*ct}")
    srd(SRA, pOUT, 2048 * 2304)
    a(f"s_lshl_b32 {s(T0)}, {s(sQB)}, 2")
    a(f"s_add_u32 {s(T0)}, {s(T0)}, {s(sWV)}")
    a(f"s_mul_i32 {s(T0)}, {s(T0)}, {16*2304}")
    a(f"s_mul_i32 {s(T0+1)}, {s(sG)}, 144")
    a(f"s_add_u32 {s(T0)}, {s(T0)}, {s(T0+1)}")
    for i in range(3):
        a(f"ds_read_b128 {v(16+4*i,4)}, v{8+i}")
    for i in range(3):
        a(f"s_waitcnt lgkmcnt({2-i})")
        if i == 2:
            a("s_mov_b64 exec, 0xffff")
        a(f"buffer_store_dwordx4 {v(16+4*i,4)}, v{11+i}, {s(SRA,4)}, {s(T0)} offen")
    a("s_mov_b64 exec, -1")
    a(f"s_or_b32 {s(T0)}, s2, {s(sWV)}")
    a(f"s_cmp_lg_u32 {s(T0)}, 0")
    a("s_cbranch_scc1 L_fin")
    a("v_mov_b32 v4, 0")
    a(f"v_mov_b32 v5, {s(sTAG)}")
    a("s_mov_b64 exec, 1")
    a(f"global_store_dword v4, v5, {s(pWS,2)}")
    a("s_mov_b64 exec, -1")
    a("L_fin:")
    if stamps:
        a("s_waitcnt vmcnt(0)")
        stamp(10)
        a("s_waitcnt lgkmcnt(0)")
        a(f"s_lshl_b32 {s(T0)}, s2, 3")
        a(f"s_add_u32 {s(T0)}, {s(T0)}, {s(sWV)}")
        a(f"s_lshl_b32 {s(T0)}, {s(T0)}, 6")
        a(f"s_add_u32 {s(T0)}, {s(T0)}, {WS_DBG}")
        a(f"v_mov_b32 v4, {s(T0)}")
        a("s_mov_b64 exec, 1")
        for i in range(11):
            a(f"v_mov_b32 v5, {s(80+2*i)}")
            a(f"global_store_dword v4, v5, {s(pWS,2)} offset:{4*i}")
    a("L_exit:")
    a("s_endpgm")
    a("L_code_end:")

    lines, nins = fix_hazards(a.L, verbose=opts.get("verbose", False))
    hdr = [ln.rstrip("\n") for ln in open(REF) if ln.startswith(";") and "@launch" not in ln]
    txt = "\n".join(hdr) + f"\n; @launch grid=(256,1,1) block=(512,1,1) lds={LDS_TOTAL}\n"
    txt += '.amdgcn_target "amdgcn-amd-amdhsa--gfx950"\n.text\n'
    txt += f".globl {kname}\n.p2align 8\n.type {kname},@function\n"
    txt += "\n".join(lines) + "\n"
    txt += f""".section .rodata,"a"
.p2align 6
.amdhsa_kernel {kname}
  .amdhsa_next_free_vgpr 256
  .amdhsa_next_free_sgpr 102
  .amdhsa_accum_offset 256
  .amdhsa_group_segment_fixed_size 0
  .amdhsa_kernarg_size 136
  .amdhsa_user_sgpr_count 2
  .amdhsa_user_sgpr_kernarg_segment_ptr 1
  .amdhsa_system_sgpr_workgroup_id_x 1
.end_amdhsa_kernel
"""
    size = text_size(txt.replace("CODE_END_OFF", "0x12345"))
    txt = txt.replace("CODE_END_OFF", str((size - 256) & ~3))
    print("code bytes", size)
    return txt, nins


if __name__ == "__main__":
    out = sys.argv[1] if len(sys.argv) > 1 else f"cdna_kernels/{NAME}.s"
    opts = {}
    for x in sys.argv[2:]:
        k, _, val = x.partition("=")
        opts[k] = int(val) if val else 1
    txt, n = gen(opts)
    open(out, "w").write(txt)
    print("wrote", out, "bytes", len(txt), "nop states inserted", n)
```

```python
import sys, os, math, struct
sys.path.insert(0, os.path.dirname(os.path.abspath(__file__)))
from asmlib import *

NAME = "concat_heads__grouped_kv_mqa__ssm_conv_s4__prompt"
REF = f"cdna_kernels/{NAME}.s.ref"


def f32(x):
    return "0x%08x" % struct.unpack("<I", struct.pack("<f", x))[0]


LOG2E = 1.4426950408889634
QSCALE = LOG2E * (18 ** -0.5)

S_SZ = 17408
XW = 52224
WX = 125952
WK = 135424
QI = 135424
QST = 144
FL = 163584
UI = 52224
U_SZ = 4608
CB = 0
CH_SZ = 18944
SLOT0 = 68864
SLOTSEQ = [4, 0, 1, 2, 3, 4, 1, 2]
WO_M = 0
WO_X = 73728
OT = 125696
LDS_TOTAL = 163840
CST = 4160
F_WK, F_XP, F_KVD, F_WQ, F_QW, F_QD, F_RDY, F_U, F_C1, F_C2, F_WO = [FL + 4 * i for i in range(11)]
F_CONS = FL + 48

WS_FKV = 4096
WS_FO = 40960
WS_KV = 0x20000
WS_O = 0x50000
WS_DBG = 0x400000

sWV, sQB, sG, sCID, sTAG = 3, 4, 5, 6, 7
SRA, SRB = 8, 12
pX, pWQ, pWK, pWV, pWO, pU, pARE, pAIM, pBRE, pBIM, pCRE, pCIM, pLDT, pDSK, pOUT, pDBG, pWS = range(16, 50, 2)
sCH0, sCHS, sJJ, sXCD = 50, 51, 52, 53
T0 = 54

vL = 1


def gen(opts):
    a = Asm()
    stamps = opts.get("stamps", 0)
    SLP = opts.get("sleep", 1)

    def stamp(i, dyn=None):
        if stamps:
            a("s_memrealtime s[100:101]")
            if dyn is not None:
                a(f"s_add_u32 s99, {s(dyn)}, {i}")
            a("s_waitcnt lgkmcnt(0)")
            if dyn is not None:
                a("s_mov_b32 m0, s99")
                a("v_writelane_b32 v255, s100, m0")
            else:
                a(f"v_writelane_b32 v255, s100, {i}")

    def lds_wait(addr, val, vt, st):
        lab = a.label("Lspin")
        a(f"v_mov_b32 {v(vt+1)}, {addr}")
        a(f"s_branch {lab}_e")
        a(f"{lab}:")
        a(f"s_sleep {SLP}")
        a(f"{lab}_e:")
        a(f"ds_read_b32 {v(vt)}, {v(vt+1)}")
        a("s_waitcnt lgkmcnt(0)")
        a(f"v_readfirstlane_b32 {s(st)}, {v(vt)}")
        a(f"s_cmp_lt_u32 {s(st)}, {val}")
        a(f"s_cbranch_scc1 {lab}")

    def lds_wait4(addr, val, vt):
        lab = a.label("Lspin")
        a(f"v_and_b32 {v(vt+1)}, 3, {v(vL)}")
        a(f"v_lshlrev_b32 {v(vt+1)}, 2, {v(vt+1)}")
        a(f"v_add_u32 {v(vt+1)}, {addr}, {v(vt+1)}")
        a(f"s_branch {lab}_e")
        a(f"{lab}:")
        a(f"s_sleep {4*SLP}")
        a(f"{lab}_e:")
        a(f"ds_read_b32 {v(vt)}, {v(vt+1)}")
        a("s_waitcnt lgkmcnt(0)")
        a(f"v_cmp_gt_u32 vcc, {val}, {v(vt)}")
        a(f"s_cbranch_vccnz {lab}")

    def lds_add(addr, vt):
        a(f"v_mov_b32 {v(vt)}, {addr}")
        a(f"v_mov_b32 {v(vt+1)}, 1")
        a("s_mov_b64 exec, 1")
        a(f"ds_add_u32 {v(vt)}, {v(vt+1)}")
        a("s_mov_b64 exec, -1")

    def srd(r, p, nbytes):
        a(f"s_mov_b32 {s(r)}, {s(p)}")
        a(f"s_and_b32 {s(r+1)}, {s(p+1)}, 0xffff")
        a(f"s_mov_b32 {s(r+2)}, {nbytes}")
        a(f"s_mov_b32 {s(r+3)}, 0x20000")

    def poll(vaddr, vt, lab, n=1, stride=0):
        a(f"s_mov_b32 {s(T0)}, 0")
        a(f"s_branch {lab}_e")
        a(f"{lab}:")
        a("s_sleep 2")
        a(f"{lab}_e:")
        for i in range(n):
            a(f"global_load_dword {v(vt+i)}, {v(vaddr+i)}, {s(pWS,2)} sc1")
        a(f"s_add_u32 {s(T0)}, {s(T0)}, 1")
        a("s_waitcnt vmcnt(0)")
        for i in range(n):
            a(f"v_xor_b32 {v(vt+i)}, {s(sTAG)}, {v(vt+i)}")
        for i in range(1, n):
            a(f"v_or_b32 {v(vt)}, {v(vt)}, {v(vt+i)}")
        a(f"v_cmp_ne_u32 vcc, 0, {v(vt)}")
        a(f"s_cmp_gt_u32 {s(T0)}, 0x100000")
        a(f"s_cbranch_scc1 {lab}_d")
        a(f"s_cbranch_vccnz {lab}")
        a(f"{lab}_d:")

    def mktag():
        a(f"s_mul_i32 {s(sTAG)}, {s(sTAG)}, 0x9E3779B1")
        a(f"s_add_u32 {s(sTAG)}, {s(sTAG)}, 0x632BE5AB")

    def w_dma(srdreg, ldsM, ldsX, permuted, sW):
        a(f"v_lshrrev_b32 v2, 3, {v(vL)}")
        a(f"v_and_b32 v3, 7, {v(vL)}")
        a("v_and_b32 v4, 2, v2")
        a("v_xor_b32 v3, v3, v4")
        a("v_lshlrev_b32 v3, 4, v3")
        a(f"s_movk_i32 {s(T0)}, 1152")
        a(f"v_mad_u32_u24 v5, v2, {s(T0)}, v3")
        a("v_xor_b32 v6, 64, v5")
        if permuted:
            a("v_lshrrev_b32 v7, 1, v2")
            a("v_mul_u32_u24 v7, 18, v7")
            a("v_and_b32 v8, 1, v2")
            a("v_add_u32 v7, v7, v8")
            a(f"v_mad_u32_u24 v7, v7, {s(T0)}, v3")
            a("v_xor_b32 v8, 64, v7")
        a(f"s_mul_i32 {s(T0+1)}, {s(sW)}, {144*1152}")
        a(f"s_mul_i32 {s(T0+2)}, {s(sG)}, 144")
        a(f"s_add_u32 {s(T0+1)}, {s(T0+1)}, {s(T0+2)}")
        a(f"s_mul_i32 {s(T0+3)}, {s(sW)}, 18432")
        a(f"s_add_u32 {s(T0+3)}, {s(T0+3)}, {ldsM}")
        a(f"s_mul_i32 {s(T0+4)}, {s(sW)}, 2304")
        a(f"s_add_u32 {s(T0+4)}, {s(T0+4)}, {ldsX}")
        if not permuted:
            lab = a.label("Lwd")
            a(f"v_mul_u32_u24 v9, 1152, {v(vL)}")
            a("v_add_u32 v9, 128, v9")
            a(f"s_mov_b32 {s(T0+2)}, 3")
            a(f"{lab}:")
            for jj in range(6):
                a(f"s_add_u32 m0, {s(T0+3)}, {1024*jj}")
                a(f"s_add_u32 {s(T0+5)}, {s(T0+1)}, {8*jj*1152}")
                a(f"buffer_load_dwordx4 v{5+(jj&1)}, {s(srdreg,4)}, {s(T0+5)} offen lds")
                if jj == 2:
                    a(f"s_mov_b32 m0, {s(T0+4)}")
                    a(f"s_add_u32 {s(T0+4)}, {s(T0+4)}, 768")
                    a(f"buffer_load_dwordx4 v9, {s(srdreg,4)}, {s(T0+1)} offen lds")
            a(f"s_add_u32 {s(T0+3)}, {s(T0+3)}, 6144")
            a(f"s_add_u32 {s(T0+1)}, {s(T0+1)}, {48*1152}")
            a(f"s_sub_u32 {s(T0+2)}, {s(T0+2)}, 1")
            a(f"s_cmp_lg_u32 {s(T0+2)}, 0")
            a(f"s_cbranch_scc1 {lab}")
            return
        for jj in range(18):
            gp, idx = divmod(jj, 9)
            if idx < 8:
                rowbase = 72 * gp + 18 * (idx >> 1) + 8 * (idx & 1)
                vr = 5 + (jj & 1)
            else:
                rowbase = 72 * gp + 16
                vr = 7 + (jj & 1)
            a(f"s_add_u32 m0, {s(T0+3)}, {1024*jj}")
            a(f"s_add_u32 {s(T0+5)}, {s(T0+1)}, {rowbase*1152}")
            a(f"buffer_load_dwordx4 v{vr}, {s(srdreg,4)}, {s(T0+5)} offen lds")
            if jj % 6 == 2:
                e = jj // 6
                a(f"v_add_u32 v9, {48*e}, {v(vL)}")
                a("v_mul_u32_u24 v10, 911, v9")
                a("v_lshrrev_b32 v10, 16, v10")
                a("v_mul_u32_u24 v10, 72, v10")
                a("v_sub_u32 v9, v9, v10")
                a("v_lshrrev_b32 v11, 4, v9")
                a("v_mul_u32_u24 v11, 18, v11")
                a("v_and_b32 v12, 15, v9")
                a("v_add_u32 v11, v11, v12")
                a("v_cmp_le_u32 vcc, 64, v9")
                a("v_lshrrev_b32 v13, 1, v12")
                a("v_mul_u32_u24 v13, 18, v13")
                a("v_and_b32 v12, 1, v9")
                a("v_add3_u32 v13, v13, v12, 16")
                a("v_cndmask_b32 v9, v11, v13, vcc")
                a("v_add_u32 v9, v9, v10")
                a(f"v_mul_u32_u24 v9, 1152, v9")
                a(f"s_add_u32 m0, {s(T0+4)}, {768*e}")
                a(f"s_add_u32 {s(T0+5)}, {s(T0+1)}, 128")
                a(f"buffer_load_dwordx4 v9, {s(srdreg,4)}, {s(T0+5)} offen lds")

    def proj_setup(ACC, ldsM, ldsX):
        a(f"v_lshrrev_b32 v2, 4, {v(vL)}")
        a(f"v_bfe_u32 v3, {v(vL)}, 2, 2")
        a(f"v_and_b32 v4, 3, {v(vL)}")
        a("v_lshl_add_u32 v5, v2, 3, v3")
        a("v_lshrrev_b32 v6, 1, v3")
        a("v_and_b32 v7, 1, v2")
        a("v_lshl_or_b32 v6, v7, 1, v6")
        a("v_lshlrev_b32 v7, 7, v5")
        a("v_lshl_add_u32 v7, v4, 3, v7")
        a(f"v_add_u32 v7, {ldsM}, v7")
        a("v_and_b32 v4, 1, v4")
        a("v_lshlrev_b32 v4, 3, v4")
        a("v_lshl_add_u32 v248, v5, 4, v4")
        a(f"v_add_u32 v248, {ldsX}, v248")
        for ct in range(4):
            a(f"v_xor_b32 v2, {ct}, v6")
            a(f"v_lshl_add_u32 v{240+ct}, v2, 5, v7")
            a(f"v_add_u32 v{244+ct}, {4096*9}, v{240+ct}")
        for i in range(20):
            a(f"v_mov_b32 {v(ACC+i)}, 0")

    def proj_run(XF, ACC, ST, NST, pre, wait_fn):
        def rd(f):
            st_, ct = divmod(f, 5)
            b = ST + 4 * (f % NST)
            if ct < 4:
                ar = (240 if st_ < 9 else 244) + ct
                off = 4096 * (st_ % 9)
                return [f"ds_read_b64_tr_b16 {v(b,2)}, v{ar} offset:{off}",
                        f"ds_read_b64_tr_b16 {v(b+2,2)}, v{ar} offset:{off+512}"]
            return [f"ds_read_b64_tr_b16 {v(b,2)}, v248 offset:{512*st_}",
                    f"ds_read_b64_tr_b16 {v(b+2,2)}, v248 offset:{512*st_+64}"]
        for f in range(pre):
            for x in rd(f):
                a(x)
        wait_fn(-1)
        for f in range(90):
            st_, ct = divmod(f, 5)
            out = min(pre - 1, 89 - f)
            if ct == 0:
                wait_fn(st_)
            a(f"s_waitcnt lgkmcnt({min(15, 2*out)})")
            b = ST + 4 * (f % NST)
            a(f"v_mfma_f32_16x16x32_bf16 {v(ACC+4*ct,4)}, {v(b,4)}, {v(XF+4*st_,4)}, {v(ACC+4*ct,4)}")
            if f + pre < 90:
                for x in rd(f + pre):
                    a(x)

    kname = NAME + "_kernel"
    a(f"{kname}:")
    if stamps:
        a("v_mov_b32 v255, 0")
    stamp(0)
    a("s_cmp_ge_u32 s2, 256")
    a("s_cbranch_scc1 L_exit")
    a("s_load_dwordx16 s[16:31], s[0:1], 0")
    a("s_load_dwordx16 s[32:47], s[0:1], 64")
    a("s_load_dwordx2 s[48:49], s[0:1], 128")
    a(f"v_lshrrev_b32 v2, 6, v0")
    a(f"v_and_b32 {v(vL)}, 63, v0")
    a(f"v_readfirstlane_b32 {s(sWV)}, v2")
    a(f"s_and_b32 {s(sXCD)}, s2, 7")
    a(f"s_lshr_b32 {s(T0+1)}, s2, 3")
    a(f"s_and_b32 {s(T0+2)}, {s(T0+1)}, 3")
    a(f"s_lshl_b32 {s(sQB)}, {s(sXCD)}, 2")
    a(f"s_add_u32 {s(sQB)}, {s(sQB)}, {s(T0+2)}")
    a(f"s_lshr_b32 {s(sG)}, {s(T0+1)}, 2")
    a(f"s_lshl_b32 {s(sCID)}, {s(sXCD)}, 5")
    a(f"s_add_u32 {s(sCID)}, {s(sCID)}, {s(T0+1)}")
    a(f"s_cmp_lg_u32 {s(sWV)}, 6")
    a("s_cbranch_scc1 L_e1")
    a(f"s_getpc_b64 {s(T0+4,2)}")
    a(f"s_lshl_b32 {s(T0+3)}, {s(T0+2)}, 13")
    a(f"v_lshlrev_b32 v2, 7, {v(vL)}")
    a(f"v_add_u32 v2, {s(T0+3)}, v2")
    a(f"v_min_u32 v2, CODE_END_OFF, v2")
    a(f"global_load_dword v15, v2, {s(T0+4,2)}")
    a(f"v_lshlrev_b32 v2, 2, {v(vL)}")
    a(f"v_add_u32 v2, {FL}, v2")
    a("v_mov_b32 v4, 0")
    a("ds_write_b32 v2, v4")
    a("L_e1:")
    a(f"s_lshr_b32 {s(T0)}, {s(sCID)}, 2")
    a(f"s_and_b32 {s(sJJ)}, {s(sCID)}, 3")
    a(f"s_mul_i32 {s(T0+1)}, {s(T0)}, 9")
    a(f"s_and_b32 {s(T0+2)}, {s(T0)}, 1")
    a(f"s_lshl_b32 {s(sCH0)}, {s(sJJ)}, 1")
    a(f"s_add_u32 {s(sCH0)}, {s(sCH0)}, {s(T0+1)}")
    a(f"s_add_u32 {s(sCH0)}, {s(sCH0)}, {s(T0+2)}")
    a(f"s_cmp_eq_u32 {s(T0+2)}, 0")
    a(f"s_cselect_b32 {s(sCHS)}, 8, 0")
    a(f"s_add_u32 {s(sCHS)}, {s(sCHS)}, {s(T0+1)}")
    sPW = T0 + 20
    a(f"s_lshr_b32 {s(sPW)}, {s(sG)}, 1")
    a(f"s_cmp_ge_u32 {s(sWV)}, 4")
    a("s_cbranch_scc1 L_h0")
    a(f"v_lshrrev_b32 v2, 3, {v(vL)}")
    a(f"v_xor_b32 v2, v2, {v(vL)}")
    a("v_lshlrev_b32 v2, 4, v2")
    a(f"s_lshl_b32 {s(T0)}, {s(sQB)}, 2")
    a(f"s_add_u32 {s(T0)}, {s(T0)}, {s(sWV)}")
    a(f"s_mul_i32 {s(T0)}, {s(T0)}, 18432")
    a(f"s_mul_i32 {s(T0+1)}, {s(sWV)}, 18432")
    a(f"s_add_u32 {s(T0+1)}, {s(T0+1)}, {XW}")
    a(f"s_and_b32 {s(T0+2)}, {s(sG)}, 1")
    a(f"s_mul_i32 {s(T0+2)}, {s(T0+2)}, 9216")
    a("s_waitcnt lgkmcnt(0)")
    a(f"s_load_dword {s(sTAG)}, {s(pWS,2)}, 0")
    srd(SRA, pX, 2048 * 1152)
    a(f"s_cmp_eq_u32 {s(sWV)}, {s(sPW)}")
    a("s_cbranch_scc1 L_xdma")
    a(f"s_sub_u32 {s(T0+4)}, {s(sWV)}, {s(sPW)}")
    a(f"s_and_b32 {s(T0+4)}, {s(T0+4)}, 3")
    a(f"s_mul_i32 {s(T0+4)}, {s(T0+4)}, 6912")
    a(f"s_lshr_b32 {s(T0+5)}, s2, 3")
    a(f"s_mul_i32 {s(T0+5)}, {s(T0+5)}, 20736")
    a(f"s_add_u32 {s(T0+4)}, {s(T0+4)}, {s(T0+5)}")
    a(f"s_sub_u32 {s(T0+4)}, {s(T0+4)}, 6912")
    a(f"v_min_u32 v3, 53, {v(vL)}")
    a("v_lshlrev_b32 v3, 7, v3")
    a(f"v_add_u32 v3, {s(T0+4)}, v3")
    a(f"global_load_dword v4, v3, {s(pWQ,2)}")
    a("s_waitcnt lgkmcnt(0)")
    a("s_barrier")
    a("s_waitcnt vmcnt(0)")
    a("L_xdma:")
    a(f"s_mov_b32 {s(T0+4)}, 6")
    a("L_xl:")
    a(f"s_add_u32 m0, {s(T0+1)}, {s(T0+2)}")
    a(f"s_add_u32 {s(T0+3)}, {s(T0)}, {s(T0+2)}")
    for j in range(3):
        a(f"buffer_load_dwordx4 v2, {s(SRA,4)}, {s(T0+3)} offen offset:{1024*j} lds")
    a(f"s_add_u32 {s(T0+2)}, {s(T0+2)}, 3072")
    a(f"s_cmp_eq_u32 {s(T0+2)}, 18432")
    a(f"s_cselect_b32 {s(T0+2)}, 0, {s(T0+2)}")
    a(f"s_sub_u32 {s(T0+4)}, {s(T0+4)}, 1")
    a(f"s_cmp_lg_u32 {s(T0+4)}, 0")
    a("s_cbranch_scc1 L_xl")
    a(f"s_cmp_lg_u32 {s(sWV)}, {s(sPW)}")
    a("s_cbranch_scc1 L_a1")
    a("s_waitcnt lgkmcnt(0)")
    a("s_barrier")
    a("s_branch L_a1")
    a("L_h0:")
    a("s_setprio 2")
    a(f"s_cmp_eq_u32 {s(sWV)}, 7")
    a("s_cbranch_scc1 L_ld0")
    a(f"s_sub_u32 {s(T0)}, {s(sWV)}, 4")
    a(f"s_add_u32 {s(T0+1)}, {s(sCH0)}, {s(T0)}")
    a(f"s_cmp_eq_u32 {s(T0)}, 2")
    a(f"s_cselect_b32 {s(T0+1)}, {s(sCHS)}, {s(T0+1)}")
    a(f"s_lshl_b32 {s(T0+2)}, {s(T0+1)}, 8")
    a(f"v_lshlrev_b32 v2, 2, {v(vL)}")
    a(f"v_add_u32 v3, {s(T0+2)}, v2")
    a(f"s_lshl_b32 {s(T0+2)}, {s(T0+1)}, 1")
    a(f"v_mov_b32 v11, {s(T0+2)}")
    a("s_waitcnt lgkmcnt(0)")
    a(f"s_load_dword {s(sTAG)}, {s(pWS,2)}, 0")
    PR = 4
    a(f"global_load_ushort v10, v11, {s(pLDT,2)}")
    for i, p in enumerate((pARE, pAIM, pBRE, pBIM, pCRE, pCIM)):
        a(f"global_load_dword v{PR+i}, v3, {s(p,2)}")
    a("s_waitcnt lgkmcnt(0)")
    a("s_barrier")
    a("s_branch L_kgen")
    a("L_ld0:")
    for i in range(3):
        a(f"v_add_u32 v2, {64*i}, {v(vL)}")
        a("v_mul_u32_u24 v4, 21846, v2")
        a("v_lshrrev_b32 v4, 16, v4")
        a("v_mul_u32_u24 v5, 3, v4")
        a("v_sub_u32 v5, v2, v5")
        a("v_lshlrev_b32 v5, 4, v5")
        a("v_min_u32 v5, 20, v5")
        a(f"v_mad_u32_u24 v{6+i}, v4, 36, v5")
    a(f"s_lshr_b32 {s(T0+4)}, s2, 3")
    a(f"s_and_b32 {s(T0+4)}, {s(T0+4)}, 3")
    a(f"s_lshl_b32 {s(T0+4)}, {s(T0+4)}, 1")
    a(f"s_lshr_b32 {s(T0+5)}, {s(sG)}, 2")
    a(f"s_add_u32 {s(T0+4)}, {s(T0+4)}, {s(T0+5)}")
    a(f"s_and_b32 {s(T0)}, {s(sG)}, 1")
    a("s_waitcnt lgkmcnt(0)")
    a(f"s_load_dword {s(sTAG)}, {s(pWS,2)}, 0")
    a(f"s_cmp_eq_u32 {s(T0)}, 1")
    a(f"s_cselect_b32 {s(T0+2)}, {s(pWV)}, {s(pWK)}")
    a(f"s_cselect_b32 {s(T0+3)}, {s(pWV+1)}, {s(pWK+1)}")
    srd(SRA, T0 + 2, 576 * 36)
    a(f"s_mov_b32 {s(T0+5)}, 9")
    a("L_wkl:")
    a(f"s_mul_i32 {s(T0+6)}, {s(T0+4)}, 3072")
    a(f"s_add_u32 {s(T0+6)}, {s(T0+6)}, {WK}")
    a(f"s_mul_i32 {s(T0+7)}, {s(T0+4)}, 2304")
    for j in range(3):
        a(f"s_add_u32 m0, {s(T0+6)}, {1024*j}")
        a(f"s_add_u32 {s(T0+4)}, {s(T0+4)}, {1 if j == 0 else 0}")
        a(f"buffer_load_dwordx4 v{6+j}, {s(SRA,4)}, {s(T0+7)} offen lds")
    a(f"s_cmp_eq_u32 {s(T0+4)}, 9")
    a(f"s_cselect_b32 {s(T0+4)}, 0, {s(T0+4)}")
    a(f"s_sub_u32 {s(T0+5)}, {s(T0+5)}, 1")
    a(f"s_cmp_lg_u32 {s(T0+5)}, 0")
    a("s_cbranch_scc1 L_wkl")
    a("s_waitcnt lgkmcnt(0)")
    a("s_barrier")
    a("s_branch L_loader")

    XF, ACC, ST = 16, 88, 108
    a("L_a1:")
    stamp(12)
    mktag()
    srd(SRB, pWQ, 576 * 1152)
    a(f"v_and_b32 v2, 15, {v(vL)}")
    a(f"v_lshrrev_b32 v3, 4, {v(vL)}")
    a(f"v_mul_u32_u24 v4, 1152, v2")
    a(f"v_add_u32 v4, {s(T0+1)}, v4")
    for t in range(8):
        a(f"v_add_u32 v5, {t}, v2")
        a("v_and_b32 v5, 7, v5")
        a("v_xor_b32 v5, v5, v3")
        a(f"v_lshl_add_u32 {v(ST+t)}, v5, 4, v4")
        a(f"v_xor_b32 {v(ST+8+t)}, 64, {v(ST+t)}")
    a("s_waitcnt vmcnt(0)")
    stamp(1)
    for st_ in range(18):
        t = st_ >> 1
        a(f"ds_read_b128 {v(XF+4*st_,4)}, {v(ST+8*(st_&1)+(t&7))} offset:{128*t}")
    a(f"s_cmp_lg_u32 {s(sPW)}, {s(sWV)}")
    a("s_cbranch_scc1 L_p_dma")
    lds_add(F_XP, 2)
    a(f"v_lshrrev_b32 v2, 4, {v(vL)}")
    a(f"v_bfe_u32 v3, {v(vL)}, 2, 2")
    a(f"v_and_b32 v4, 3, {v(vL)}")
    a("v_lshl_add_u32 v5, v2, 3, v3")
    a("v_mul_u32_u24 v5, 48, v5")
    a(f"v_add_u32 v5, {WK}, v5")
    a("v_lshl_add_u32 v6, v4, 3, v5")
    a("v_add_u32 v7, 40, v5")
    for i in range(8):
        a(f"v_mov_b32 {v(ACC+i)}, 0")
    a(f"s_lshr_b32 {s(T0+1)}, {s(sQB)}, 2")
    a(f"s_mul_i32 {s(T0+1)}, {s(T0+1)}, {CH_SZ}")
    a(f"s_add_u32 {s(T0+1)}, {s(T0+1)}, {WS_KV}")
    a(f"s_and_b32 {s(T0+2)}, {s(sQB)}, 3")
    a(f"s_lshl_b32 {s(T0+3)}, {s(T0+2)}, 1")
    a(f"s_lshr_b32 {s(T0+4)}, {s(sWV)}, 1")
    a(f"s_add_u32 {s(T0+3)}, {s(T0+3)}, {s(T0+4)}")
    a(f"s_mul_i32 {s(T0+3)}, {s(T0+3)}, 2240")
    a(f"s_add_u32 {s(T0+3)}, {s(T0+3)}, {s(T0+1)}")
    a(f"s_and_b32 {s(T0+4)}, {s(sWV)}, 1")
    a(f"v_and_b32 v3, 15, {v(vL)}")
    a("v_lshrrev_b32 v12, 1, v2")
    a("v_and_b32 v13, 1, v2")
    a("v_lshlrev_b32 v13, 3, v13")
    a("v_lshl_add_u32 v13, v3, 4, v13")
    stamp(13)
    lds_wait(F_WK, 1, 8, T0)
    stamp(14)
    a(f"s_and_b32 {s(T0)}, {s(sG)}, 1")
    a(f"s_cmp_eq_u32 {s(T0)}, 1")
    a("s_cbranch_scc1 L_pv")

    def kvproj(isV):
        NR, PRE = 8, 7

        def rd(f):
            st_, tl = divmod(f, 2)
            b = ST + 4 * (f % NR)
            o = 48 * 32 * st_
            a(f"ds_read_b64_tr_b16 {v(b,2)}, v{6+tl} offset:{o}")
            a(f"ds_read_b64_tr_b16 {v(b+2,2)}, v{6+tl} offset:{o+192}")
        for f in range(PRE):
            rd(f)
        for f in range(36):
            st_, tl = divmod(f, 2)
            a(f"s_waitcnt lgkmcnt({2*min(PRE-1, 35-f)})")
            w_, x_ = v(ST + 4 * (f % NR), 4), v(XF + 4 * st_, 4)
            A_, B_ = (x_, w_) if isV else (w_, x_)
            a(f"v_mfma_f32_16x16x32_bf16 {v(ACC+4*tl,4)}, {A_}, {B_}, {v(ACC+4*tl,4)}")
            if f + PRE < 36:
                rd(f + PRE)

    kvproj(False)
    a("v_lshl_add_u32 v4, v12, 9, v13")
    a(f"s_lshl_b32 {s(T0+4)}, {s(T0+4)}, 8")
    a(f"s_add_u32 {s(T0+3)}, {s(T0+3)}, {s(T0+4)}")
    a(f"v_add_u32 v4, {s(T0+3)}, v4")
    a(f"s_lshl_b32 {s(T0+2)}, {s(T0+2)}, 2")
    a(f"s_lshl_b32 {s(T0+4)}, {s(sWV)}, 8")
    a(f"s_add_u32 {s(T0+2)}, {s(T0+2)}, {s(T0+4)}")
    a(f"s_add_u32 {s(T0+2)}, {s(T0+2)}, {s(T0+1)}")
    a(f"s_add_u32 {s(T0+2)}, {s(T0+2)}, 17920")
    a("v_lshlrev_b32 v5, 4, v3")
    a(f"v_add_u32 v5, {s(T0+2)}, v5")
    a(f"v_cvt_pk_bf16_f32 v8, {v(ACC)}, {v(ACC+1)}")
    a(f"v_cvt_pk_bf16_f32 v9, {v(ACC+2)}, {v(ACC+3)}")
    a(f"v_cvt_pk_bf16_f32 v10, {v(ACC+6)}, {v(ACC+7)}")
    a(f"global_store_dwordx2 v4, v[8:9], {s(pWS,2)} sc1")
    a("s_mov_b64 exec, 0xffff")
    a(f"global_store_dword v5, v10, {s(pWS,2)} sc1")
    a("s_mov_b64 exec, -1")
    a("s_branch L_pub")
    a("L_pv:")
    kvproj(True)
    a(f"s_movk_i32 {s(T0)}, 288")
    a(f"v_mad_u32_u24 v4, v12, {s(T0)}, v13")
    a(f"s_mul_i32 {s(T0+4)}, {s(T0+4)}, 608")
    a(f"s_add_u32 {s(T0+3)}, {s(T0+3)}, {s(T0+4)}")
    a(f"s_add_u32 {s(T0+3)}, {s(T0+3)}, 1024")
    a(f"v_add_u32 v4, {s(T0+3)}, v4")
    a("v_cmp_eq_u32 vcc, 4, v3")
    a("v_mov_b32 v5, 0x3f803f80")
    a("v_cndmask_b32 v5, 0, v5, vcc")
    a("v_cmp_le_u32 vcc, 4, v3")
    a(f"v_cvt_pk_bf16_f32 v8, {v(ACC)}, {v(ACC+1)}")
    a(f"v_cvt_pk_bf16_f32 v9, {v(ACC+2)}, {v(ACC+3)}")
    a(f"v_cvt_pk_bf16_f32 v10, {v(ACC+4)}, {v(ACC+5)}")
    a(f"v_cvt_pk_bf16_f32 v11, {v(ACC+6)}, {v(ACC+7)}")
    a(f"global_store_dwordx2 v4, v[8:9], {s(pWS,2)} sc1")
    a("v_cndmask_b32 v10, v10, v5, vcc")
    a("v_cndmask_b32 v11, v11, v5, vcc")
    a(f"s_mov_b32 exec_lo, 0x000c000c")
    a(f"s_mov_b32 exec_hi, 0x003c003c")
    a(f"global_store_dwordx2 v4, v[10:11], {s(pWS,2)} offset:224 sc1")
    a("s_mov_b64 exec, -1")
    a("L_pub:")
    stamp(15)
    lds_add(F_KVD, 2)
    a(f"s_lshl_b32 {s(T0)}, {s(sQB)}, 3")
    a(f"s_add_u32 {s(T0)}, {s(T0)}, {s(sG)}")
    a(f"s_lshl_b32 {s(T0)}, {s(T0)}, 7")
    a(f"s_add_u32 {s(T0)}, {s(T0)}, {WS_FKV}")
    a(f"v_mov_b32 v14, {s(T0)}")
    a(f"v_mov_b32 v15, {s(sTAG)}")
    proj_setup(ACC, XW, WX)
    a("s_waitcnt vmcnt(0)")
    a("s_mov_b64 exec, 1")
    a(f"global_store_dword v14, v15, {s(pWS,2)} sc1")
    a("s_mov_b64 exec, -1")
    stamp(2)
    a("s_branch L_qproj")
    a("L_p_dma:")
    a("s_waitcnt lgkmcnt(0)")
    w_dma(SRB, XW, WX, False, sWV)
    stamp(16)
    proj_setup(ACC, XW, WX)
    a("s_waitcnt vmcnt(0)")
    stamp(17)
    lds_add(F_WQ, 2)
    a("L_qproj:")
    lds_wait(F_WQ, 4, 2, T0)
    stamp(3)
    proj_run(XF, ACC, ST, 8, 7, lambda st_: None)
    stamp(18)
    a(f"v_and_b32 v2, 15, {v(vL)}")
    a(f"v_lshrrev_b32 v3, 4, {v(vL)}")
    a(f"v_mul_u32_u24 v2, {QST}, v2")
    a("v_lshl_add_u32 v2, v3, 3, v2")
    a(f"s_mul_i32 {s(T0)}, {s(sWV)}, {16*QST}")
    a(f"s_add_u32 {s(T0)}, {s(T0)}, {QI}")
    a(f"v_add_u32 v2, {s(T0)}, v2")
    lds_wait(F_KVD, 1, 4, T0)
    a(f"s_mov_b32 {s(T0)}, {f32(QSCALE)}")
    a(f"s_mov_b32 {s(T0+1)}, {f32(QSCALE)}")
    for ct in range(5):
        b = ACC + 4 * ct
        a(f"v_pk_mul_f32 {v(b,2)}, {v(b,2)}, {s(T0,2)}")
        a(f"v_pk_mul_f32 {v(b+2,2)}, {v(b+2,2)}, {s(T0,2)}")
        a(f"v_cvt_pk_bf16_f32 {v(b)}, {v(b)}, {v(b+1)}")
        a(f"v_cvt_pk_bf16_f32 {v(b+1)}, {v(b+2)}, {v(b+3)}")
        if ct == 4:
            a("s_mov_b32 exec_hi, 0")
        a(f"ds_write_b64 v2, {v(b,2)} offset:{32*ct}")
    a("s_mov_b64 exec, -1")
    lds_add(F_QW, 2)

    SX, SY, OA, OB = 16, 48, 80, 96
    QA, QB, QX0, QX1, IDX = 112, 116, 120, 122, 124
    KF, V0F, V1F, KXF = 128, 136, 144, 152
    vK, vV, vKl, vVl, vFl, vCo, vCv, vFa = 156, 157, 158, 159, 160, 161, 162, 163
    sI, sSEQ, sNB = T0 + 10, T0 + 11, T0 + 12
    a(f"v_and_b32 v2, 31, {v(vL)}")
    a(f"v_lshrrev_b32 v3, 5, {v(vL)}")
    a(f"v_mul_u32_u24 v4, {QST}, v2")
    a(f"s_lshr_b32 {s(T0)}, {s(sWV)}, 1")
    a(f"s_mul_i32 {s(T0)}, {s(T0)}, {32*QST}")
    a(f"s_and_b32 {s(T0+1)}, {s(sWV)}, 1")
    a(f"s_mul_i32 {s(T0+1)}, {s(T0+1)}, 72")
    a(f"s_add_u32 {s(T0)}, {s(T0)}, {s(T0+1)}")
    a(f"s_add_u32 {s(T0)}, {s(T0)}, {QI}")
    a(f"v_add_u32 v4, {s(T0)}, v4")
    a("v_mad_u32_u24 v5, v3, 36, v4")
    a("v_lshl_add_u32 v4, v3, 4, v4")
    a(f"v_lshlrev_b32 {v(vKl)}, 4, {v(vL)}")
    a("v_and_b32 v6, 19, v2")
    a("v_bfe_u32 v7, v2, 2, 1")
    a("v_lshl_or_b32 v6, v7, 3, v6")
    a("v_bfe_u32 v7, v2, 3, 1")
    a("v_lshl_or_b32 v6, v7, 2, v6")
    a("v_mad_u32_u24 v6, v3, 18, v6")
    a("v_and_b32 v7, 27, v2")
    a("v_cmp_eq_u32 vcc, 18, v7")
    a("v_mov_b32 v8, 36")
    a("v_cndmask_b32 v7, 37, v8, vcc")
    a("v_cmp_gt_u32 vcc, 18, v2")
    a(f"v_mov_b32 {v(IDX)}, 0xdddd")
    a("v_cndmask_b32 v6, v7, v6, vcc")
    a(f"v_lshlrev_b32 {v(vVl)}, 4, v6")
    a(f"v_add_u32 {v(vVl)}, 1024, {v(vVl)}")
    b0 = SLOT0 + CH_SZ * SLOTSEQ[0]
    a(f"v_add_u32 {v(vK)}, {b0}, {v(vKl)}")
    a(f"v_add_u32 {v(vV)}, {b0}, {v(vVl)}")
    a(f"v_mov_b32 {v(vFa)}, {F_RDY}")
    a(f"s_lshl_b32 {s(T0)}, {s(sWV)}, 2")
    a(f"s_add_u32 {s(T0)}, {s(T0)}, {F_CONS}")
    a(f"v_mov_b32 {v(vCo)}, {s(T0)}")
    a(f"v_mov_b32 {v(vCv)}, 0")
    for i in range(32):
        a(f"v_mov_b32 {v(OA+i)}, 0")
    a(f"v_mov_b32 {v(QX0+1)}, 0")
    a(f"v_mov_b32 {v(QX1)}, 0")
    seq = 0
    for i, k in enumerate(SLOTSEQ[1:] + [SLOTSEQ[-1]]):
        seq |= k << (4 * i)
    a(f"s_mov_b32 {s(sSEQ)}, {hex(seq)}")
    a(f"s_mov_b32 {s(sI)}, 0")
    lds_wait(F_QW, 4, 8, T0)
    a(f"ds_read2_b32 {v(QA,2)}, v4 offset0:0 offset1:1")
    a(f"ds_read2_b32 {v(QA+2,2)}, v4 offset0:2 offset1:3")
    a(f"ds_read2_b32 {v(QB,2)}, v4 offset0:9 offset1:10")
    a(f"ds_read2_b32 {v(QB+2,2)}, v4 offset0:11 offset1:12")
    a(f"ds_read_b32 {v(QX0)}, v5 offset:32")
    a(f"ds_read_b32 {v(QX1+1)}, v5 offset:32")
    lds_add(F_QD, 8)
    stamp(4)
    lds_wait(F_RDY, 1, 8, T0)
    stamp(6)

    def m2b(D, t):
        q = QX0 if ((t >> 1) & 1) == 0 else QX1
        return f"v_mfma_f32_32x32x4_2b_bf16 {v(D,32)}, {v(KXF+2*(t>>2),2)}, {v(q,2)}, 0 cbsz:1 abid:{t&1}"

    def mS(D, t, Q):
        return f"v_mfma_f32_32x32x16_bf16 {v(D,16)}, {v(KF+4*(t&1),4)}, {v(Q,4)}, {v(D,16)}"

    def smf(O, VF, t, P):
        return f"v_smfmac_f32_32x32x32_bf16 {v(O,16)}, {v(VF+4*(t&1),4)}, {v(P,8)}, {v(IDX)}"

    a(f"ds_read_b128 {v(KXF,4)}, {v(vK)} offset:17920")
    a(f"ds_read_b128 {v(KF,4)}, {v(vK)}")
    a(f"ds_read_b128 {v(KF+4,4)}, {v(vK)} offset:2240")
    a(f"ds_read_b128 {v(V0F,4)}, {v(vV)}")
    a(f"ds_read_b128 {v(V1F,4)}, {v(vV)} offset:608")
    for i in range(4):
        a(f"v_mov_b32 {v(V1F+4+i)}, 0")
    for i in range(8):
        a(f"v_mov_b32 {v(SY+24+i)}, 0")
    a("s_waitcnt lgkmcnt(4)")
    a(m2b(SX, 0))
    a("s_waitcnt lgkmcnt(0)")
    a(mS(SX, 0, QA))
    a(mS(SX + 16, 0, QB))
    a("s_nop 10")
    a(".p2align 3")
    a("L_att:")
    for t in range(8):
        cur, nxt = (SX, SY) if t % 2 == 0 else (SY, SX)
        ex = [f"v_exp_f32 {v(cur+i)}, {v(cur+i)}" for i in range(32)]
        tn = (t + 1) & 7
        q = []
        q += ex[0:2]
        q.append(smf(OB, V1F, t - 1, nxt + 24))
        q.append("s_waitcnt lgkmcnt(0)")
        if t == 5:
            q.append(f"v_readfirstlane_b32 {s(T0)}, {v(vFl)}")
        q += ex[2:5]
        q.append(m2b(nxt, tn))
        if t == 5:
            q.append(f"s_cmp_le_u32 {s(T0)}, {s(T0+1)}")
            q.append("s_cbranch_scc1 L_rw")
            q.append("L_rwd:")
        q += ex[5:13]
        q.append(smf(OA, V0F, t, cur))
        q.append(f"ds_read_b128 {v(KF+4*(t&1),4)}, {v(vK)} offset:{2240*((t+2)&7)}")
        q += ex[13:18]
        q.append(smf(OA, V1F, t, cur + 8))
        q.append(f"ds_read_b128 {v(V0F+4*(tn&1),4)}, {v(vV)} offset:{2240*tn}")
        q += ex[18:22]
        q.append(mS(nxt, tn, QA))
        q.append(f"ds_read_b128 {v(V1F+4*(tn&1),4)}, {v(vV)} offset:{2240*tn+608}")
        q += ex[22:26]
        q.append(smf(OB, V0F, t, cur + 16))
        if t == 3:
            q.append(f"s_and_b32 {s(sNB)}, {s(sSEQ)}, 15")
            q.append(f"s_mul_i32 {s(sNB)}, {s(sNB)}, {CH_SZ}")
        if t == 4:
            q.append(f"ds_read_b32 {v(vFl)}, {v(vFa)}")
        if t == 6:
            q.append(f"ds_read_b128 {v(KXF,4)}, {v(vK)} offset:17920")
        if t == 7:
            q.append(f"ds_write_b32 {v(vCo)}, {v(vCv)}")
        q += ex[26:29]
        q.append(mS(nxt + 16, tn, QB))
        if t == 2:
            q.append(f"s_add_u32 {s(sI)}, {s(sI)}, 1")
        if t == 3:
            q.append(f"s_add_u32 {s(sNB)}, {s(sNB)}, {SLOT0}")
        if t == 4:
            q.append(f"s_min_u32 {s(T0+1)}, {s(sI)}, 7")
        if t == 5:
            q.append(f"s_lshr_b32 {s(sSEQ)}, {s(sSEQ)}, 4")
            q.append(f"v_add_u32 {v(vK)}, {s(sNB)}, {v(vKl)}")
        if t == 6:
            q.append(f"v_add_u32 {v(vV)}, {s(sNB)}, {v(vVl)}")
            q.append(f"v_mov_b32 {v(vCv)}, {s(sI)}")
        if t == 7:
            q.append(f"s_cmp_lt_u32 {s(sI)}, 8")
        q += ex[29:32]
        for x in q:
            a(x)
    a("s_cbranch_scc1 L_att")
    a(smf(OB, V1F, 7, SY + 24))
    stamp(9)
    a(f"v_and_b32 v2, 15, {v(vL)}")
    a(f"v_bfe_u32 v3, {v(vL)}, 4, 1")
    a(f"v_lshrrev_b32 v4, 5, {v(vL)}")
    a(f"s_movk_i32 {s(T0)}, {72*256}")
    a("v_lshlrev_b32 v2, 4, v2")
    a(f"v_mad_u32_u24 v2, v3, {s(T0)}, v2")
    a(f"s_lshl_b32 {s(T0)}, {s(sQB)}, 2")
    a(f"s_and_b32 {s(T0+1)}, {s(sWV)}, 2")
    a(f"s_add_u32 {s(T0)}, {s(T0)}, {s(T0+1)}")
    a(f"s_mul_i32 {s(T0)}, {s(T0)}, 72")
    a(f"s_mul_i32 {s(T0+1)}, {s(sG)}, 9")
    a(f"s_add_u32 {s(T0)}, {s(T0)}, {s(T0+1)}")
    a(f"s_lshl_b32 {s(T0)}, {s(T0)}, 8")
    a(f"s_add_u32 {s(T0)}, {s(T0)}, {WS_O}")
    a(f"s_and_b32 {s(T0+1)}, {s(sWV)}, 1")
    a(f"s_lshl_b32 {s(T0+2)}, {s(T0+1)}, 10")
    a(f"s_add_u32 {s(T0+2)}, {s(T0+2)}, {s(T0)}")
    a(f"s_lshl_b32 {s(T0+1)}, {s(T0+1)}, 3")
    a(f"s_add_u32 {s(T0+1)}, {s(T0+1)}, {s(T0)}")
    a(f"v_add_u32 v5, {s(T0+1)}, v2")
    a("v_lshl_add_u32 v2, v4, 8, v2")
    a(f"v_add_u32 v2, {s(T0+2)}, v2")
    for T, O in enumerate((OA, OB)):
        a(f"v_rcp_f32 v6, {v(O+10)}")
        a(f"s_nop 0")
        a("v_mov_b32 v7, v6")
        for i in range(0, 10, 2):
            a(f"v_pk_mul_f32 {v(O+i,2)}, {v(O+i,2)}, v[6:7]")
        for i in range(4):
            a(f"v_cvt_pk_bf16_f32 {v(16+4*T+i)}, {v(O+2*i)}, {v(O+2*i+1)}")
        a(f"v_cvt_pk_bf16_f32 {v(24+T)}, {v(O+8)}, {v(O+9)}")
        a(f"global_store_dwordx4 v2, {v(16+4*T,4)}, {s(pWS,2)} offset:{512*T} sc1")
    a("s_mov_b32 exec_hi, 0")
    a(f"global_store_dwordx2 v5, v[24:25], {s(pWS,2)} offset:2048 sc1")
    a(f"s_lshl_b32 {s(T0)}, {s(sQB)}, 3")
    a(f"s_add_u32 {s(T0)}, {s(T0)}, {s(sG)}")
    a(f"s_lshl_b32 {s(T0)}, {s(T0)}, 7")
    a(f"s_lshl_b32 {s(T0+1)}, {s(sWV)}, 2")
    a(f"s_add_u32 {s(T0)}, {s(T0)}, {s(T0+1)}")
    a(f"s_add_u32 {s(T0)}, {s(T0)}, {WS_FO}")
    a("s_mov_b64 exec, 1")
    a(f"v_mov_b32 v4, {s(T0)}")
    a(f"v_mov_b32 v5, {s(sTAG)}")
    a("s_waitcnt vmcnt(0)")
    a(f"global_store_dword v4, v5, {s(pWS,2)} sc1")
    a("s_mov_b64 exec, -1")
    a("s_branch L_fin")
    a("L_rw:")
    a("s_sleep 1")
    a(f"ds_read_b32 {v(vFl)}, {v(vFa)}")
    a("s_waitcnt lgkmcnt(0)")
    a(f"v_readfirstlane_b32 {s(T0)}, {v(vFl)}")
    a(f"s_cmp_le_u32 {s(T0)}, {s(T0+1)}")
    a("s_cbranch_scc1 L_rw")
    a("s_branch L_rwd")

    def chunk_dma(i):
        a(f"s_add_u32 {s(T0+1)}, {s(sXCD)}, {i}")
        a(f"s_and_b32 {s(T0+1)}, {s(T0+1)}, 7")
        a(f"s_mul_i32 {s(T0+1)}, {s(T0+1)}, {CH_SZ}")
        a(f"s_add_u32 {s(T0+1)}, {s(T0+1)}, {WS_KV}")
        a(f"s_add_u32 {s(T0+2)}, {s(pWS)}, {s(T0+1)}")
        a(f"s_addc_u32 {s(T0+3)}, {s(pWS+1)}, 0")
        base = SLOT0 + CH_SZ * SLOTSEQ[i]
        for j in range(19):
            if j % 4 == 0:
                a(f"s_mov_b32 m0, {base + 1024*j}")
                if j:
                    a(f"s_add_u32 {s(T0+2)}, {s(T0+2)}, 4096")
                    a(f"s_addc_u32 {s(T0+3)}, {s(T0+3)}, 0")
            if j == 18:
                a("s_mov_b32 exec_hi, 0")
            a(f"global_load_lds_dwordx4 v14, {s(T0+2,2)} offset:{1024*(j%4)} sc1")
        a("s_mov_b32 exec_hi, -1")

    def set_rdy(n):
        a(f"v_mov_b32 v2, {F_RDY}")
        a(f"v_mov_b32 v3, {n}")
        a("ds_write_b32 v2, v3")

    a("L_loader:")
    stamp(12)
    mktag()
    srd(SRB, pWQ, 576 * 1152)
    a("s_waitcnt vmcnt(0)")
    stamp(13)
    lds_add(F_WK, 2)
    lds_wait(F_XP, 1, 2, T0)
    w_dma(SRB, XW, WX, False, sPW)
    a(f"v_lshlrev_b32 v14, 4, {v(vL)}")
    a(f"v_and_b32 v16, 31, {v(vL)}")
    a("v_lshlrev_b32 v16, 7, v16")
    a(f"s_lshl_b32 {s(T0)}, {s(sXCD)}, 12")
    a(f"s_add_u32 {s(T0)}, {s(T0)}, {WS_FKV}")
    a(f"v_add_u32 v16, {s(T0)}, v16")
    a("s_waitcnt vmcnt(0)")
    stamp(14)
    lds_add(F_WQ, 2)
    poll(16, 20, "L_pk0")
    stamp(5)
    chunk_dma(0)
    a(f"v_lshlrev_b32 v16, 7, {v(vL)}")
    a(f"v_add_u32 v16, {WS_FKV}, v16")
    for i in range(1, 4):
        a(f"v_add_u32 v{16+i}, {8192*i}, v16")
    a("s_waitcnt vmcnt(0)")
    set_rdy(1)
    stamp(15)
    poll(16, 20, "L_pk1", n=4)
    lds_wait(F_QD, 4, 2, T0)
    stamp(16)
    chunk_dma(1)
    chunk_dma(2)
    a("s_waitcnt vmcnt(19)")
    set_rdy(2)
    chunk_dma(3)
    a("s_waitcnt vmcnt(19)")
    set_rdy(3)
    chunk_dma(4)
    a("s_waitcnt vmcnt(19)")
    set_rdy(4)
    a("s_waitcnt vmcnt(0)")
    set_rdy(5)
    stamp(17)
    a("s_branch L_ssm")

    a("L_kgen:")
    stamp(12)
    mktag()
    a(f"s_mul_i32 {s(T0+3)}, {s(T0)}, {S_SZ}")
    a(f"v_add_u32 v11, {s(T0+3)}, v2")
    a(f"v_and_b32 v12, 31, {v(vL)}")
    a(f"v_lshrrev_b32 v13, 5, {v(vL)}")
    a("v_mul_u32_u24 v14, 272, v12")
    a("v_lshl_add_u32 v14, v13, 4, v14")
    a(f"v_add_u32 v14, {s(T0+3)}, v14")
    KD = 16
    for i in range(16):
        a(f"v_mov_b32 {v(KD+i)}, 0")
    a("s_waitcnt vmcnt(0)")
    stamp(1)
    a("v_lshlrev_b32 v10, 16, v10")
    a(f"v_mul_f32 v10, {f32(LOG2E)}, v10")
    a("v_exp_f32 v10, v10")
    a("v_cvt_pk_bf16_f32 v10, v10, v10")
    a("v_lshlrev_b32 v10, 16, v10")
    a(f"s_mov_b32 {s(T0+4)}, 0")
    a("L_kround:")
    U0 = 32
    for i in range(6):
        a(f"v_lshlrev_b32 {v(U0+i)}, 16, v{PR+i}")
    for i in range(6):
        a(f"v_lshrrev_b32 v{PR+i}, 16, v{PR+i}")
    a(f"v_mul_f32 {v(U0)}, v10, {v(U0)}")
    a(f"v_mul_f32 {v(U0+1)}, v10, {v(U0+1)}")
    a(f"v_mul_f32 {v(U0+2)}, v10, {v(U0+2)}")
    a(f"v_mul_f32 {v(U0+3)}, v10, {v(U0+3)}")
    a(f"v_mul_f32 {v(U0)}, {f32(LOG2E)}, {v(U0)}")
    a(f"v_mul_f32 {v(U0+1)}, 0.15915494, {v(U0+1)}")
    Z1, Z8, Z256 = 38, 40, 42
    TT = 44

    def cmul(r, x, y):
        a(f"v_pk_mul_f32 {v(r,2)}, {v(x,2)}, {v(y,2)} op_sel:[0,0] op_sel_hi:[0,1]")
        a(f"v_pk_fma_f32 {v(r,2)}, {v(x,2)}, {v(y,2)}, {v(r,2)} op_sel:[1,1,0] op_sel_hi:[1,0,1] neg_lo:[0,1,0]")

    for z, pw in ((Z1, 1.0), (Z8, 8.0), (Z256, 256.0)):
        a(f"v_mul_f32 {v(TT)}, {f32(pw)}, {v(U0)}")
        a(f"v_mul_f32 {v(TT+1)}, {f32(pw)}, {v(U0+1)}")
        a(f"v_exp_f32 {v(TT)}, {v(TT)}")
        a(f"v_fract_f32 {v(TT+1)}, {v(TT+1)}")
        a(f"v_cos_f32 {v(z)}, {v(TT+1)}")
        a(f"v_sin_f32 {v(z+1)}, {v(TT+1)}")
        a(f"v_mul_f32 {v(z)}, {v(TT)}, {v(z)}")
        a(f"v_mul_f32 {v(z+1)}, {v(TT)}, {v(z+1)}")
    H, G1, G2, LO, CV = 46, 64, 74, 84, 88
    cvn = [0]

    def put(row, r, neg):
        t = CV + (cvn[0] % 8)
        cvn[0] += 1
        a(f"v_cvt_pk_bf16_f32 {v(t)}, {v(r)}, {'-' if neg else ''}{v(r+1)}")
        rows = row if isinstance(row, (list, tuple)) else [row]
        for rw in rows:
            a(f"ds_write_b32 v11, {v(t)} offset:{rw*272}")

    def mrow(r, h):
        return (r % 4) + 4 * h + 8 * (r // 4)

    hi_ops = []
    hi_ops.append(lambda: (cmul(H, U0 + 4, U0 + 2), put(mrow(0, 0), H, True)))
    for e in range(1, 9):
        if e < 8:
            hi_ops.append(lambda e=e: (cmul(H + 2 * e, H + 2 * e - 2, Z1), put(mrow(e, 0), H + 2 * e, True)))
        else:
            hi_ops.append(lambda e=e: cmul(H + 2 * e, H + 2 * e - 2, Z1))
    s1rows = {0: [0, 1], 2: [2], 4: [3, 4, 5], 6: [6], 8: [7]}
    for n, e in enumerate((0, 2, 4, 6, 8)):
        hi_ops.append(lambda n=n, e=e: (cmul(G1 + 2 * n, H + 2 * e, Z256), put([mrow(r, 1) for r in s1rows[e]], G1 + 2 * n, True)))
    for n, src in enumerate((0, 2, 4)):
        hi_ops.append(lambda n=n, src=src: (cmul(G2 + 2 * n, G1 + 2 * src, Z256), put(mrow(8 + n, 0), G2 + 2 * n, True)))
    for n in range(3):
        hi_ops.append(lambda n=n: (cmul(G1 + 2 * n, G2 + 2 * n, Z256), put(mrow(8 + n, 1), G1 + 2 * n, True)))
    for n, src in enumerate((0, 2)):
        hi_ops.append(lambda n=n, src=src: (cmul(G2 + 2 * n, G1 + 2 * src, Z256), put(mrow(11 + n, 0), G2 + 2 * n, True)))
    for n in range(2):
        hi_ops.append(lambda n=n: (cmul(G1 + 2 * n, G2 + 2 * n, Z256), put(mrow(11 + n, 1), G1 + 2 * n, True)))
    for n in range(2):
        hi_ops.append(lambda n=n: (cmul(G2 + 2 * n, G1 + 2 * n, Z256), put(mrow(13 + n, 0), G2 + 2 * n, True)))
    for n in range(2):
        hi_ops.append(lambda n=n: (cmul(G1 + 2 * n, G2 + 2 * n, Z256), put(mrow(13 + n, 1), G1 + 2 * n, True)))
    lo_ops = []

    def lo0():
        a(f"v_mov_b32 {v(CV)}, 0x3f80")
        a(f"ds_write_b32 v11, {v(CV)} offset:{32*272}")
        cvn[0] = 1
        put(33, Z8, False)
    lo_ops.append(lo0)
    for j in range(2, 32):
        src = Z8 if j == 2 else LO + 2 * ((j - 1) & 1)
        lo_ops.append(lambda j=j, src=src: (cmul(LO + 2 * (j & 1), src, Z8), put(32 + j, LO + 2 * (j & 1), False)))
    for i in range(max(len(hi_ops), len(lo_ops))):
        if i < len(lo_ops):
            lo_ops[i]()
        if i < len(hi_ops):
            hi_ops[i]()
    stamp(13)
    FR = 96
    for ks in range(8):
        b = FR + 8 * ks
        a(f"ds_read_b128 {v(b,4)}, v14 offset:{32*ks}")
        a(f"ds_read_b128 {v(b+4,4)}, v14 offset:{32*272+32*ks}")
    for ks in range(8):
        a(f"s_waitcnt lgkmcnt({2*(7-ks)})")
        bb = FR + 8 * ks
        a(f"v_mfma_f32_32x32x16_bf16 {v(KD,16)}, {v(bb,4)}, {v(bb+4,4)}, {v(KD,16)}")
    a(f"s_add_u32 {s(T0+4)}, {s(T0+4)}, 1")
    a(f"s_cmp_lt_u32 {s(T0+4)}, 2")
    a("s_cbranch_scc1 L_kround")
    stamp(14)
    E = 32
    a("v_lshlrev_b32 v2, 4, v12")
    a("v_lshl_add_u32 v2, v13, 9, v2")
    a(f"v_add_u32 v2, {s(T0+3)}, v2")
    a("v_and_b32 v3, 1, v12")
    a("v_cmp_eq_u32 vcc, 1, v3")
    for i in range(4):
        a(f"v_mov_b32 {v(E+16+i)}, 0")
    for i in range(4):
        a(f"v_cvt_pk_bf16_f32 {v(E+i)}, {v(KD+2*i)}, {v(KD+2*i+1)}")
    a(f"ds_write_b128 v2, {v(E,4)} offset:32")
    a(f"v_cvt_pk_bf16_f32 {v(E+4)}, {v(KD+8)}, {v(KD+8)}")
    a(f"v_cvt_pk_bf16_f32 {v(E+5)}, {v(KD+8)}, {v(KD+9)}")
    a(f"v_cvt_pk_bf16_f32 {v(E+6)}, {v(KD+9)}, {v(KD+9)}")
    a(f"v_cvt_pk_bf16_f32 {v(E+7)}, {v(KD+10)}, {v(KD+10)}")
    a(f"ds_write_b128 v2, {v(E+4,4)} offset:{32+1024}")
    for n, r0 in enumerate((11, 13)):
        b = E + 8 + 4 * n
        a(f"v_cndmask_b32 v3, {v(KD+r0)}, {v(KD+r0+1)}, vcc")
        a(f"v_cvt_pk_bf16_f32 {v(b)}, {v(KD+r0)}, {v(KD+r0)}")
        a(f"v_mov_b32 {v(b+1)}, {v(b)}")
        a(f"v_cvt_pk_bf16_f32 {v(b+2)}, v3, {v(KD+r0+1)}")
        a(f"v_cvt_pk_bf16_f32 {v(b+3)}, {v(KD+r0+1)}, {v(KD+r0+1)}")
        a(f"ds_write_b128 v2, {v(b,4)} offset:{32+2048+1024*n}")
    a(f"v_mov_b32 v3, {s(T0+3)}")
    a("s_mov_b64 exec, 1")
    a(f"ds_write_b128 v3, {v(E+16,4)}")
    a(f"ds_write_b128 v3, {v(E+16,4)} offset:16")
    for c in range(1, 4):
        a(f"ds_write_b128 v3, {v(E+16,4)} offset:{CST*c}")
    a("s_mov_b64 exec, -1")
    a(f"v_lshlrev_b32 v2, 4, {v(vL)}")
    a(f"v_add_u32 v2, {s(T0+3)}, v2")
    goffs = (1, 65, 129, 193, 194)
    D0 = 56
    for n, go in enumerate(goffs):
        a(f"ds_read_b128 {v(D0+6*n,4)}, v2 offset:{16*go}")
        a(f"ds_read_b64 {v(D0+6*n+4,2)}, v2 offset:{16*go+16}")
    for n, go in enumerate(goffs):
        d = D0 + 6 * n
        t = 96 + 12 * n
        a(f"s_waitcnt lgkmcnt({min(15, 2*(4-n) + 3*n)})")
        for i in range(4):
            a(f"v_alignbit_b32 {v(t+i)}, {v(d+i+1)}, {v(d+i)}, 16")
        for i in range(4):
            a(f"v_mov_b32 {v(t+4+i)}, {v(d+1+i)}")
        for i in range(4):
            a(f"v_alignbit_b32 {v(t+8+i)}, {v(d+i+2)}, {v(d+i+1)}, 16")
        for c in range(1, 4):
            a(f"ds_write_b128 v2, {v(t+4*(c-1),4)} offset:{CST*c+16*go}")
    stamp(2)
    lds_wait(F_RDY, opts.get("urdy", 3), 2, T0)

    a("L_ssm:")
    stamp(7)
    UR = 160
    sS = T0 + 10
    a(f"s_sub_u32 {s(sS)}, {s(sWV)}, 4")
    a("v_subrev_u32 v2, 256, v0")
    a("v_mul_u32_u24 v2, 1152, v2")
    a(f"s_lshl_b32 {s(T0)}, {s(sCH0)}, 1")
    a(f"s_lshl_b32 {s(T0+1)}, {s(sCHS)}, 1")
    a(f"v_add_u32 v3, {s(T0+1)}, v2")
    a(f"v_add_u32 v2, {s(T0)}, v2")
    a(f"v_mov_b32 v4, {s(T0)}")
    a(f"v_mov_b32 v5, {s(T0+1)}")
    a(f"global_load_dword v149, v4, {s(pDSK,2)}")
    a(f"global_load_ushort v150, v5, {s(pDSK,2)}")
    a(f"s_mov_b64 {s(T0+2,2)}, {s(pU,2)}")
    for r in range(8):
        a(f"global_load_dword {v(UR+r)}, v2, {s(T0+2,2)}")
        a(f"global_load_ushort {v(UR+8+r)}, v3, {s(T0+2,2)}")
        if r < 7:
            a(f"s_add_u32 {s(T0+2)}, {s(T0+2)}, {256*1152}")
            a(f"s_addc_u32 {s(T0+3)}, {s(T0+3)}, 0")
    a(f"s_lshr_b32 {s(T0+5)}, s2, 3")
    a(f"s_mul_i32 {s(T0+5)}, {s(T0+5)}, 20736")
    a(f"s_mul_i32 {s(T0+4)}, {s(sS)}, 5248")
    a(f"s_add_u32 {s(T0+4)}, {s(T0+4)}, {s(T0+5)}")
    a(f"v_min_u32 v3, 38, {v(vL)}")
    a("v_lshlrev_b32 v3, 7, v3")
    a(f"v_add_u32 v3, {s(T0+4)}, v3")
    a(f"global_load_dword v151, v3, {s(pWO,2)}")
    stamp(18)
    a(f"s_cmp_lg_u32 {s(sWV)}, 7")
    a("s_cbranch_scc1 L_s1")
    lds_wait4(F_CONS, 1, 2)
    chunk_dma(5)
    a("L_s1:")
    a("v_sub_u32 v2, 511, v0")
    a("v_lshlrev_b32 v2, 1, v2")
    a(f"v_add_u32 v2, {UI}, v2")
    a(f"s_mul_i32 {s(T0)}, {s(sS)}, {U_SZ}")
    a(f"s_min_u32 {s(T0)}, {s(T0)}, {2*U_SZ}")
    a(f"s_add_u32 {s(T0)}, {s(T0)}, {UI+4096}")
    a(f"v_lshlrev_b32 v3, 3, {v(vL)}")
    a(f"v_add_u32 v3, {s(T0)}, v3")
    a("v_mov_b32 v4, 0")
    a("v_mov_b32 v5, 0")
    a("ds_write_b64 v3, v[4:5]")
    a(f"v_and_b32 v6, 15, {v(vL)}")
    a(f"v_lshrrev_b32 v7, 4, {v(vL)}")
    a("v_add_u32 v8, 1, v6")
    a("v_and_b32 v9, 3, v8")
    a("v_sub_u32 v8, v8, v9")
    a("v_lshlrev_b32 v8, 1, v8")
    a(f"s_movk_i32 {s(T0)}, {CST}")
    a(f"v_mad_u32_u24 v8, v9, {s(T0)}, v8")
    a("v_lshl_add_u32 v8, v7, 4, v8")
    a("v_lshlrev_b32 v9, 5, v6")
    a(f"v_sub_u32 v9, {UI+480}, v9")
    a("v_lshl_add_u32 v9, v7, 4, v9")
    a(f"s_lshr_b32 {s(T0)}, {s(sS)}, 1")
    a(f"s_and_b32 {s(T0+1)}, {s(sS)}, 1")
    a(f"s_lshl_b32 {s(T0+1)}, {s(T0+1)}, 8")
    a(f"s_mul_i32 {s(T0+2)}, {s(T0)}, {S_SZ}")
    a(f"s_add_u32 {s(T0+2)}, {s(T0+2)}, {s(T0+1)}")
    a(f"v_add_u32 v10, {s(T0+2)}, v8")
    a(f"s_mul_i32 {s(T0+2)}, {s(T0)}, {U_SZ}")
    a(f"s_add_u32 {s(T0+2)}, {s(T0+2)}, {s(T0+1)}")
    a(f"v_add_u32 v11, {s(T0+2)}, v9")
    a(f"s_lshl_b32 {s(T0+1)}, {s(sS)}, 7")
    a(f"s_add_u32 {s(T0+2)}, {s(T0+1)}, {2*S_SZ}")
    a(f"v_add_u32 v12, {s(T0+2)}, v8")
    a(f"s_add_u32 {s(T0+2)}, {s(T0+1)}, {2*U_SZ}")
    a(f"v_add_u32 v13, {s(T0+2)}, v9")
    CA, CBf, CC, CS = 16, 48, 80, 112
    for i in range(40):
        a(f"v_mov_b32 {v(CC+i)}, 0")
    a("s_waitcnt vmcnt(0)")
    stamp(19)
    a(f"s_cmp_lg_u32 {s(sWV)}, 7")
    a("s_cbranch_scc1 L_s2")
    a(f"v_mov_b32 v4, {F_RDY}")
    a(f"v_mov_b32 v5, 6")
    a("ds_write_b32 v4, v5")
    a("L_s2:")
    for r in range(8):
        a(f"ds_write_b16 v2, {v(UR+r)} offset:{512*(7-r)}")
        a(f"ds_write_b16_d16_hi v2, {v(UR+r)} offset:{U_SZ+512*(7-r)}")
        a(f"ds_write_b16 v2, {v(UR+8+r)} offset:{2*U_SZ+512*(7-r)}")
    lds_add(F_U, 2)
    lds_wait(F_U, 4, 2, T0)
    stamp(20)
    a(f"s_mov_b32 {s(T0+1)}, 4")
    a("L_cl:")

    def conv_block(va, vb, off, kmax, pairs):
        LOOK = 4
        for k in range(kmax + 1 + LOOK):
            if k <= kmax:
                a(f"ds_read_b128 {v(CBf+4*k,4)}, v{vb} offset:{off+512*(7-k)}")
                a(f"ds_read_b64 {v(CA+4*k,2)}, v{va} offset:{off+512*k}")
                a(f"ds_read_b64 {v(CA+4*k+2,2)}, v{va} offset:{off+512*k+8}")
            kk = k - LOOK
            if kk >= 0:
                todo = [p for p in pairs if max(p[1], p[2]) == kk]
                if todo:
                    a(f"s_waitcnt lgkmcnt({3*(min(k, kmax)-kk)})")
                for acc, aa, jj_ in todo:
                    a(f"v_mfma_f32_16x16x32_bf16 {v(acc,4)}, {v(CA+4*aa,4)}, {v(CBf+4*jj_,4)}, {v(acc,4)}")

    conv_block(10, 11, 0, 7, [(CC + 4 * (x + y), x, y) for x in range(8) for y in range(8 - x)])
    a("v_add_u32 v10, 64, v10")
    a("v_add_u32 v11, 64, v11")
    a(f"s_sub_u32 {s(T0+1)}, {s(T0+1)}, 1")
    a(f"s_cmp_lg_u32 {s(T0+1)}, 0")
    a("s_cbranch_scc1 L_cl")
    stamp(21)
    a(f"s_mov_b32 {s(T0+1)}, 2")
    for jj in range(4):
        if jj < 3:
            a(f"s_cmp_lg_u32 {s(sJJ)}, {jj}")
            a(f"s_cbranch_scc1 L_cs{jj+1}")
        i1, i2 = jj, 7 - jj
        pairs = [(CS + 4, x, i2 - x) for x in range(i2 + 1)] + [(CS, x, i1 - x) for x in range(i1 + 1)]
        a(f"L_csl{jj}:")
        conv_block(12, 13, 0, i2, pairs)
        a("v_add_u32 v12, 64, v12")
        a("v_add_u32 v13, 64, v13")
        a(f"s_sub_u32 {s(T0+1)}, {s(T0+1)}, 1")
        a(f"s_cmp_lg_u32 {s(T0+1)}, 0")
        a(f"s_cbranch_scc1 L_csl{jj}")
        if jj < 3:
            a("s_branch L_csd")
            a(f"L_cs{jj+1}:")
    a("L_csd:")
    stamp(22)
    lds_add(F_C1, 14)
    a(f"v_lshlrev_b32 v2, 4, {v(vL)}")
    a(f"s_lshl_b32 {s(T0)}, {s(sS)}, 13")
    a(f"s_add_u32 {s(T0)}, {s(T0)}, {CB}")
    a(f"v_add_u32 v3, {s(T0)}, v2")
    a(f"s_lshl_b32 {s(T0)}, {s(sS)}, 11")
    a(f"s_add_u32 {s(T0+1)}, {s(T0)}, {CB+32768}")
    a(f"v_add_u32 v4, {s(T0+1)}, v2")
    a(f"s_add_u32 {s(T0+1)}, {s(T0)}, {CB}")
    a(f"v_add_u32 v5, {s(T0+1)}, v2")
    lds_wait(F_C1, 4, 14, T0)
    for i in range(8):
        a(f"ds_write_b128 v3, {v(CC+4*i,4)} offset:{1024*i}")
    for i in range(2):
        a(f"ds_write_b128 v4, {v(CS+4*i,4)} offset:{1024*i}")
    lds_add(F_C2, 14)
    a(f"s_lshr_b32 {s(T0)}, {s(sS)}, 1")
    a(f"s_and_b32 {s(T0+1)}, {s(sS)}, 1")
    a(f"s_lshl_b32 {s(T0+2)}, {s(T0)}, 10")
    a(f"s_lshl_b32 {s(T0+3)}, {s(T0+1)}, 3")
    a(f"s_add_u32 {s(T0+2)}, {s(T0+2)}, {s(T0+3)}")
    a(f"s_add_u32 {s(T0+2)}, {s(T0+2)}, {CB+32768}")
    a(f"v_add_u32 v4, {s(T0+2)}, v2")
    a("v_lshlrev_b32 v8, 5, v6")
    a("v_lshl_add_u32 v8, v7, 3, v8")
    a(f"s_lshl_b32 {s(T0+2)}, {s(sS)}, 10")
    a(f"s_sub_u32 {s(T0+2)}, {UI+4088-512}, {s(T0+2)}")
    a(f"v_sub_u32 v9, {s(T0+2)}, v8")
    a(f"s_sub_u32 {s(T0+2)}, 7, {s(sJJ)}")
    a(f"s_cmp_eq_u32 {s(T0)}, 0")
    a(f"s_cselect_b32 {s(T0+4)}, {s(sJJ)}, {s(T0+2)}")
    a(f"s_lshl_b32 {s(T0+2)}, {s(T0+4)}, 9")
    a(f"s_lshl_b32 {s(T0+3)}, {s(T0+1)}, 2")
    a(f"s_add_u32 {s(T0+2)}, {s(T0+2)}, {s(T0+3)}")
    a(f"s_sub_u32 {s(T0+2)}, {UI+2*U_SZ+4092}, {s(T0+2)}")
    a(f"v_sub_u32 v10, {s(T0+2)}, v8")
    a(f"s_movk_i32 {s(T0+2)}, 1152")
    a(f"v_mul_lo_u32 v11, v8, {s(T0+2)}")
    srd(SRA, pOUT, 2048 * 2304)
    a(f"s_mul_i32 {s(T0+5)}, {s(sS)}, {512*2304}")
    a(f"s_lshl_b32 {s(T0+2)}, {s(sCH0)}, 1")
    a(f"s_add_u32 {s(T0+5)}, {s(T0+5)}, {s(T0+2)}")
    a(f"s_add_u32 {s(T0+5)}, {s(T0+5)}, 1152")
    a(f"s_mul_i32 {s(T0+6)}, {s(T0+4)}, {256*2304}")
    a(f"s_mul_i32 {s(T0+2)}, {s(T0+1)}, {2*2304}")
    a(f"s_add_u32 {s(T0+6)}, {s(T0+6)}, {s(T0+2)}")
    a(f"s_lshl_b32 {s(T0+2)}, {s(sCHS)}, 1")
    a(f"s_add_u32 {s(T0+6)}, {s(T0+6)}, {s(T0+2)}")
    a(f"s_add_u32 {s(T0+6)}, {s(T0+6)}, 1152")
    a("v_lshlrev_b32 v12, 16, v149")
    a("v_and_b32 v13, 0xffff0000, v149")
    a("v_lshlrev_b32 v150, 16, v150")
    lds_wait(F_C2, 4, 14, T0)
    Y, UU, YS = 16, 48, 56
    for tl in range(2):
        for src in range(4):
            a(f"ds_read_b128 {v(Y+16*tl+4*src,4)}, v5 offset:{8192*src+1024*tl}")
    for tl in range(2):
        for ch in range(2):
            a(f"ds_read_b64 {v(UU+4*tl+2*ch,2)}, v9 offset:{U_SZ*ch+512*(1-tl)}")
    for src in range(4):
        a(f"ds_read_b64 {v(YS+2*src,2)}, v4 offset:{2048*src}")
    a("ds_read_b32 v64, v10")
    lds_add(F_C1, 14)
    a("s_waitcnt lgkmcnt(0)")
    for tl in range(2):
        for ch in range(2):
            y = Y + 16 * tl + 8 * ch
            a(f"v_pk_add_f32 {v(y,2)}, {v(y,2)}, {v(y+4,2)}")
            a(f"v_pk_add_f32 {v(y+2,2)}, {v(y+2,2)}, {v(y+6,2)}")
            u_ = UU + 4 * tl + 2 * ch
            a(f"v_and_b32 {v(y+4)}, 0xffff0000, {v(u_+1)}")
            a(f"v_lshlrev_b32 {v(y+5)}, 16, {v(u_+1)}")
            a(f"v_and_b32 {v(y+6)}, 0xffff0000, {v(u_)}")
            a(f"v_lshlrev_b32 {v(y+7)}, 16, {v(u_)}")
            for r in range(4):
                a(f"v_fmac_f32 {v(y+r)}, {v(y+4+r)}, v{12+ch}")
        for r in range(4):
            y = Y + 16 * tl
            a(f"v_cvt_pk_bf16_f32 {v(130+4*tl+r)}, {v(y+r)}, {v(y+8+r)}")
    a(f"v_pk_add_f32 {v(YS,2)}, {v(YS,2)}, {v(YS+2,2)}")
    a(f"v_pk_add_f32 {v(YS+4,2)}, {v(YS+4,2)}, {v(YS+6,2)}")
    a(f"v_pk_add_f32 {v(YS,2)}, {v(YS,2)}, {v(YS+4,2)}")
    a(f"v_and_b32 v65, 0xffff0000, v64")
    a(f"v_lshlrev_b32 v64, 16, v64")
    a(f"v_fmac_f32 {v(YS)}, v65, v150")
    a(f"v_fmac_f32 {v(YS+1)}, v64, v150")
    a(f"v_cvt_pk_bf16_f32 v138, {v(YS)}, {v(YS+1)}")
    stamp(23)
    a(f"s_cmp_lg_u32 {s(sWV)}, 7")
    a("s_cbranch_scc1 L_s3")
    a(f"v_lshlrev_b32 v14, 4, {v(vL)}")
    lds_wait4(F_CONS, 3, 2)
    chunk_dma(6)
    lds_wait4(F_CONS, 4, 2)
    chunk_dma(7)
    a("s_waitcnt vmcnt(19)")
    set_rdy(7)
    a("s_waitcnt vmcnt(0)")
    set_rdy(8)
    a("L_s3:")
    for tl in range(2):
        for r in range(4):
            a(f"s_add_u32 {s(T0+2)}, {s(T0+5)}, {(256*tl+r)*2304}")
            a(f"buffer_store_dword {v(130+4*tl+r)}, v11, {s(SRA,4)}, {s(T0+2)} offen")
    a(f"buffer_store_short v138, v11, {s(SRA,4)}, {s(T0+6)} offen")
    a(f"buffer_store_short_d16_hi v138, v11, {s(SRA,4)}, {s(T0+6)} offen offset:2304")
    stamp(8)

    lds_wait(F_C1, 8, 2, T0)
    lds_wait4(F_CONS, 2, 2)
    srd(SRB, pWO, 576 * 1152)
    w_dma(SRB, WO_M, WO_X, True, sS)
    proj_setup(ACC, WO_M, WO_X)
    a(f"v_and_b32 v2, 15, {v(vL)}")
    a(f"v_lshrrev_b32 v3, 4, {v(vL)}")
    a(f"v_mul_u32_u24 v2, 160, v2")
    a("v_lshl_add_u32 v2, v3, 3, v2")
    a(f"s_mul_i32 {s(T0)}, {s(sS)}, 2560")
    a(f"s_add_u32 {s(T0)}, {s(T0)}, {OT}")
    a(f"v_add_u32 v249, {s(T0)}, v2")
    for i in range(3):
        a(f"v_add_u32 v4, {64*i}, {v(vL)}")
        a("v_mul_u32_u24 v5, 7282, v4")
        a("v_lshrrev_b32 v5, 16, v5")
        a("v_mul_u32_u24 v6, 9, v5")
        a("v_sub_u32 v6, v4, v6")
        a("v_lshlrev_b32 v6, 4, v6")
        a(f"v_mul_u32_u24 v7, 160, v5")
        a(f"v_add3_u32 v{8+i}, v7, v6, {s(T0)}")
        a(f"v_mul_u32_u24 v7, 2304, v5")
        a(f"v_add_u32 v{11+i}, v7, v6")
    a(f"s_lshl_b32 {s(T0)}, {s(sQB)}, 2")
    a(f"s_add_u32 {s(T0)}, {s(T0)}, {s(sS)}")
    a(f"s_mul_i32 {s(T0+8)}, {s(T0)}, {16*2304}")
    a(f"s_mul_i32 {s(T0+1)}, {s(sG)}, 144")
    a(f"s_add_u32 {s(T0+8)}, {s(T0+8)}, {s(T0+1)}")
    a(f"s_mul_i32 {s(T0)}, {s(T0)}, 18432")
    a(f"s_add_u32 {s(T0)}, {s(T0)}, {WS_O}")
    a(f"v_lshlrev_b32 v14, 4, {v(vL)}")
    a(f"v_add_u32 v14, {s(T0)}, v14")
    a(f"v_bfe_u32 v3, {v(vL)}, 1, 3")
    a("v_lshlrev_b32 v3, 7, v3")
    a(f"v_and_b32 v4, 1, {v(vL)}")
    a("v_lshl_add_u32 v3, v4, 2, v3")
    a(f"s_lshl_b32 {s(T0)}, {s(sQB)}, 10")
    a(f"s_and_b32 {s(T0+1)}, {s(sS)}, 2")
    a(f"s_lshl_b32 {s(T0+1)}, {s(T0+1)}, 2")
    a(f"s_add_u32 {s(T0)}, {s(T0)}, {s(T0+1)}")
    a(f"s_add_u32 {s(T0)}, {s(T0)}, {WS_FO}")
    a(f"v_add_u32 v15, {s(T0)}, v3")
    a("s_waitcnt vmcnt(0)")
    lds_add(F_WO, 2)
    lds_wait(F_WO, 4, 2, T0)
    stamp(24)
    NST = 32

    def wf(st_):
        if st_ == -1:
            lds_wait4(F_CONS, 8, 2)
            stamp(25)
            poll(15, 2, "L_pollo")
            stamp(26)
            for k in range(18):
                a(f"global_load_dwordx4 {v(XF+4*k,4)}, v14, {s(pWS,2)} offset:{1024*(k%4)} sc1")
                if k % 4 == 3:
                    a("v_add_u32 v14, 4096, v14")
        else:
            a(f"s_waitcnt vmcnt({17-st_})")
    proj_run(XF, ACC, ST, NST, NST - 1, wf)
    stamp(27)
    for ct in range(5):
        b = ACC + 4 * ct
        a(f"v_cvt_pk_bf16_f32 {v(b)}, {v(b)}, {v(b+1)}")
        a(f"v_cvt_pk_bf16_f32 {v(b+1)}, {v(b+2)}, {v(b+3)}")
        a(f"ds_write_b64 v249, {v(b,2)} offset:{32*ct}")
    for i in range(3):
        a(f"ds_read_b128 {v(16+4*i,4)}, v{8+i}")
    for i in range(3):
        a(f"s_waitcnt lgkmcnt({2-i})")
        if i == 2:
            a("s_mov_b64 exec, 0xffff")
        a(f"buffer_store_dwordx4 {v(16+4*i,4)}, v{11+i}, {s(SRA,4)}, {s(T0+8)} offen")
    a("s_mov_b64 exec, -1")
    a(f"s_cmp_lg_u32 s2, 0")
    a("s_cbranch_scc1 L_fin")
    a(f"s_cmp_lg_u32 {s(sWV)}, 7")
    a("s_cbranch_scc1 L_fin")
    a("v_mov_b32 v4, 0")
    a(f"v_mov_b32 v5, {s(sTAG)}")
    a("s_mov_b64 exec, 1")
    a(f"global_store_dword v4, v5, {s(pWS,2)}")
    a("s_mov_b64 exec, -1")
    a("L_fin:")
    if stamps:
        a("s_waitcnt vmcnt(0)")
        stamp(10)
        a(f"s_lshl_b32 {s(T0)}, s2, 11")
        a(f"s_add_u32 {s(T0)}, {s(T0)}, {WS_DBG}")
        a(f"v_lshlrev_b32 v4, 2, v0")
        a(f"v_add_u32 v4, {s(T0)}, v4")
        a(f"global_store_dword v4, v255, {s(pWS,2)}")
    a("L_exit:")
    a("s_endpgm")

    lines, nins = fix_hazards(a.L, verbose=opts.get("verbose", False))
    hdr = [ln.rstrip("\n") for ln in open(REF) if ln.startswith(";") and "@launch" not in ln]
    txt = "\n".join(hdr) + f"\n; @launch grid=(256,1,1) block=(512,1,1) lds={LDS_TOTAL}\n"
    txt += '.amdgcn_target "amdgcn-amd-amdhsa--gfx950"\n.text\n'
    txt += f".globl {kname}\n.p2align 8\n.type {kname},@function\n"
    txt += "\n".join(lines) + "\n"
    txt += f""".section .rodata,"a"
.p2align 6
.amdhsa_kernel {kname}
  .amdhsa_next_free_vgpr 256
  .amdhsa_next_free_sgpr 102
  .amdhsa_accum_offset 256
  .amdhsa_group_segment_fixed_size 0
  .amdhsa_kernarg_size 136
  .amdhsa_user_sgpr_count 2
  .amdhsa_user_sgpr_kernarg_segment_ptr 1
  .amdhsa_system_sgpr_workgroup_id_x 1
.end_amdhsa_kernel
"""
    size = text_size(txt.replace("CODE_END_OFF", "0x12345"))
    txt = txt.replace("CODE_END_OFF", str((size - 256) & ~3))
    print("code bytes", size)
    return txt, nins


if __name__ == "__main__":
    out = sys.argv[1] if len(sys.argv) > 1 else f"cdna_kernels/{NAME}.s"
    opts = {}
    for x in sys.argv[2:]:
        k, _, val = x.partition("=")
        opts[k] = int(val) if val else 1
    txt, n = gen(opts)
    open(out, "w").write(txt)
    print("wrote", out, "bytes", len(txt), "nop states inserted", n)
```

```python
import sys, os, math, struct
sys.path.insert(0, os.path.dirname(os.path.abspath(__file__)))
from asmlib import *

NAME = "concat_heads__grouped_kv_mqa__ssm_conv_s4__prompt"
REF = f"cdna_kernels/{NAME}.s.ref"


def f32(x):
    return "0x%08x" % struct.unpack("<I", struct.pack("<f", x))[0]


LOG2E = 1.4426950408889634
QSCALE = LOG2E * (18 ** -0.5)

S_SZ = 17408
XW = 52224
WX = 125952
WK = 135424
QI = 135424
QST = 144
FL = 163584
UI = 52224
U_SZ = 4608
CB = 0
CH_SZ = 18944
SLOT0 = 68864
SLOTSEQ = [4, 0, 1, 2, 3, 4, 1, 2]
WO_M = 0
WO_X = 73728
OT = 125696
LDS_TOTAL = 163840
CST = 4160
F_WK, F_XP, F_KVD, F_WQ, F_QW, F_QD, F_RDY, F_U, F_C1, F_C2, F_WO = [FL + 4 * i for i in range(11)]
F_CONS = FL + 48

WS_FKV = 4096
WS_FO = 40960
WS_KV = 0x20000
WS_O = 0x50000
WS_DBG = 0x400000

sWV, sQB, sG, sCID, sTAG = 3, 4, 5, 6, 7
SRA, SRB = 8, 12
pX, pWQ, pWK, pWV, pWO, pU, pARE, pAIM, pBRE, pBIM, pCRE, pCIM, pLDT, pDSK, pOUT, pDBG, pWS = range(16, 50, 2)
sCH0, sCHS, sJJ, sXCD = 50, 51, 52, 53
T0 = 54

vL = 1


def gen(opts):
    a = Asm()
    stamps = opts.get("stamps", 0)
    SLP = opts.get("sleep", 1)

    probe = opts.get("probe", None)

    def stamp(i, dyn=None):
        if probe is not None:
            if i == 0:
                a("s_memrealtime s[96:97]")
                a("s_waitcnt lgkmcnt(0)")
                a("s_mov_b32 s98, s96")
            elif i == probe:
                a("s_memrealtime s[98:99]")
                a("s_waitcnt lgkmcnt(0)")
        if stamps:
            a("s_memrealtime s[100:101]")
            if dyn is not None:
                a(f"s_add_u32 s99, {s(dyn)}, {i}")
            a("s_waitcnt lgkmcnt(0)")
            if dyn is not None:
                a("s_mov_b32 m0, s99")
                a("v_writelane_b32 v255, s100, m0")
            else:
                a(f"v_writelane_b32 v255, s100, {i}")

    def lds_wait(addr, val, vt, st):
        lab = a.label("Lspin")
        a(f"v_mov_b32 {v(vt+1)}, {addr}")
        a(f"s_branch {lab}_e")
        a(f"{lab}:")
        a(f"s_sleep {SLP}")
        a(f"{lab}_e:")
        a(f"ds_read_b32 {v(vt)}, {v(vt+1)}")
        a("s_waitcnt lgkmcnt(0)")
        a(f"v_readfirstlane_b32 {s(st)}, {v(vt)}")
        a(f"s_cmp_lt_u32 {s(st)}, {val}")
        a(f"s_cbranch_scc1 {lab}")

    def lds_wait4(addr, val, vt):
        lab = a.label("Lspin")
        a(f"v_and_b32 {v(vt+1)}, 3, {v(vL)}")
        a(f"v_lshlrev_b32 {v(vt+1)}, 2, {v(vt+1)}")
        a(f"v_add_u32 {v(vt+1)}, {addr}, {v(vt+1)}")
        a(f"s_branch {lab}_e")
        a(f"{lab}:")
        a(f"s_sleep {4*SLP}")
        a(f"{lab}_e:")
        a(f"ds_read_b32 {v(vt)}, {v(vt+1)}")
        a("s_waitcnt lgkmcnt(0)")
        a(f"v_cmp_gt_u32 vcc, {val}, {v(vt)}")
        a(f"s_cbranch_vccnz {lab}")

    def lds_add(addr, vt):
        a(f"v_mov_b32 {v(vt)}, {addr}")
        a(f"v_mov_b32 {v(vt+1)}, 1")
        a("s_mov_b64 exec, 1")
        a(f"ds_add_u32 {v(vt)}, {v(vt+1)}")
        a("s_mov_b64 exec, -1")

    def srd(r, p, nbytes):
        a(f"s_mov_b32 {s(r)}, {s(p)}")
        a(f"s_and_b32 {s(r+1)}, {s(p+1)}, 0xffff")
        a(f"s_mov_b32 {s(r+2)}, {nbytes}")
        a(f"s_mov_b32 {s(r+3)}, 0x20000")

    def poll(vaddr, vt, lab, n=1, stride=0):
        a(f"s_mov_b32 {s(T0)}, 0")
        a(f"s_branch {lab}_e")
        a(f"{lab}:")
        a("s_sleep 2")
        a(f"{lab}_e:")
        for i in range(n):
            a(f"global_load_dword {v(vt+i)}, {v(vaddr+i)}, {s(pWS,2)} sc1")
        a(f"s_add_u32 {s(T0)}, {s(T0)}, 1")
        a("s_waitcnt vmcnt(0)")
        for i in range(n):
            a(f"v_xor_b32 {v(vt+i)}, {s(sTAG)}, {v(vt+i)}")
        for i in range(1, n):
            a(f"v_or_b32 {v(vt)}, {v(vt)}, {v(vt+i)}")
        a(f"v_cmp_ne_u32 vcc, 0, {v(vt)}")
        a(f"s_cmp_gt_u32 {s(T0)}, 0x100000")
        a(f"s_cbranch_scc1 {lab}_d")
        a(f"s_cbranch_vccnz {lab}")
        a(f"{lab}_d:")

    def mktag():
        a(f"s_mul_i32 {s(sTAG)}, {s(sTAG)}, 0x9E3779B1")
        a(f"s_add_u32 {s(sTAG)}, {s(sTAG)}, 0x632BE5AB")

    def w_dma(srdreg, ldsM, ldsX, permuted, sW):
        a(f"v_lshrrev_b32 v2, 3, {v(vL)}")
        a(f"v_and_b32 v3, 7, {v(vL)}")
        a("v_and_b32 v4, 2, v2")
        a("v_xor_b32 v3, v3, v4")
        a("v_lshlrev_b32 v3, 4, v3")
        a(f"s_movk_i32 {s(T0)}, 1152")
        a(f"v_mad_u32_u24 v5, v2, {s(T0)}, v3")
        a("v_xor_b32 v6, 64, v5")
        if permuted:
            a("v_lshrrev_b32 v7, 1, v2")
            a("v_mul_u32_u24 v7, 18, v7")
            a("v_and_b32 v8, 1, v2")
            a("v_add_u32 v7, v7, v8")
            a(f"v_mad_u32_u24 v7, v7, {s(T0)}, v3")
            a("v_xor_b32 v8, 64, v7")
        a(f"s_mul_i32 {s(T0+1)}, {s(sW)}, {144*1152}")
        a(f"s_mul_i32 {s(T0+2)}, {s(sG)}, 144")
        a(f"s_add_u32 {s(T0+1)}, {s(T0+1)}, {s(T0+2)}")
        a(f"s_mul_i32 {s(T0+3)}, {s(sW)}, 18432")
        a(f"s_add_u32 {s(T0+3)}, {s(T0+3)}, {ldsM}")
        a(f"s_mul_i32 {s(T0+4)}, {s(sW)}, 2304")
        a(f"s_add_u32 {s(T0+4)}, {s(T0+4)}, {ldsX}")
        if not permuted:
            lab = a.label("Lwd")
            a(f"v_mul_u32_u24 v9, 1152, {v(vL)}")
            a("v_add_u32 v9, 128, v9")
            a(f"s_mov_b32 {s(T0+2)}, 3")
            a(f"{lab}:")
            for jj in range(6):
                a(f"s_add_u32 m0, {s(T0+3)}, {1024*jj}")
                a(f"s_add_u32 {s(T0+5)}, {s(T0+1)}, {8*jj*1152}")
                a(f"buffer_load_dwordx4 v{5+(jj&1)}, {s(srdreg,4)}, {s(T0+5)} offen lds")
                if jj == 2:
                    a(f"s_mov_b32 m0, {s(T0+4)}")
                    a(f"s_add_u32 {s(T0+4)}, {s(T0+4)}, 768")
                    a(f"buffer_load_dwordx4 v9, {s(srdreg,4)}, {s(T0+1)} offen lds")
            a(f"s_add_u32 {s(T0+3)}, {s(T0+3)}, 6144")
            a(f"s_add_u32 {s(T0+1)}, {s(T0+1)}, {48*1152}")
            a(f"s_sub_u32 {s(T0+2)}, {s(T0+2)}, 1")
            a(f"s_cmp_lg_u32 {s(T0+2)}, 0")
            a(f"s_cbranch_scc1 {lab}")
            return
        for jj in range(18):
            gp, idx = divmod(jj, 9)
            if idx < 8:
                rowbase = 72 * gp + 18 * (idx >> 1) + 8 * (idx & 1)
                vr = 5 + (jj & 1)
            else:
                rowbase = 72 * gp + 16
                vr = 7 + (jj & 1)
            a(f"s_add_u32 m0, {s(T0+3)}, {1024*jj}")
            a(f"s_add_u32 {s(T0+5)}, {s(T0+1)}, {rowbase*1152}")
            a(f"buffer_load_dwordx4 v{vr}, {s(srdreg,4)}, {s(T0+5)} offen lds")
            if jj % 6 == 2:
                e = jj // 6
                a(f"v_add_u32 v9, {48*e}, {v(vL)}")
                a("v_mul_u32_u24 v10, 911, v9")
                a("v_lshrrev_b32 v10, 16, v10")
                a("v_mul_u32_u24 v10, 72, v10")
                a("v_sub_u32 v9, v9, v10")
                a("v_lshrrev_b32 v11, 4, v9")
                a("v_mul_u32_u24 v11, 18, v11")
                a("v_and_b32 v12, 15, v9")
                a("v_add_u32 v11, v11, v12")
                a("v_cmp_le_u32 vcc, 64, v9")
                a("v_lshrrev_b32 v13, 1, v12")
                a("v_mul_u32_u24 v13, 18, v13")
                a("v_and_b32 v12, 1, v9")
                a("v_add3_u32 v13, v13, v12, 16")
                a("v_cndmask_b32 v9, v11, v13, vcc")
                a("v_add_u32 v9, v9, v10")
                a(f"v_mul_u32_u24 v9, 1152, v9")
                a(f"s_add_u32 m0, {s(T0+4)}, {768*e}")
                a(f"s_add_u32 {s(T0+5)}, {s(T0+1)}, 128")
                a(f"buffer_load_dwordx4 v9, {s(srdreg,4)}, {s(T0+5)} offen lds")

    def proj_setup(ACC, ldsM, ldsX):
        a(f"v_lshrrev_b32 v2, 4, {v(vL)}")
        a(f"v_bfe_u32 v3, {v(vL)}, 2, 2")
        a(f"v_and_b32 v4, 3, {v(vL)}")
        a("v_lshl_add_u32 v5, v2, 3, v3")
        a("v_lshrrev_b32 v6, 1, v3")
        a("v_and_b32 v7, 1, v2")
        a("v_lshl_or_b32 v6, v7, 1, v6")
        a("v_lshlrev_b32 v7, 7, v5")
        a("v_lshl_add_u32 v7, v4, 3, v7")
        a(f"v_add_u32 v7, {ldsM}, v7")
        a("v_and_b32 v4, 1, v4")
        a("v_lshlrev_b32 v4, 3, v4")
        a("v_lshl_add_u32 v248, v5, 4, v4")
        a(f"v_add_u32 v248, {ldsX}, v248")
        for ct in range(4):
            a(f"v_xor_b32 v2, {ct}, v6")
            a(f"v_lshl_add_u32 v{240+ct}, v2, 5, v7")
            a(f"v_add_u32 v{244+ct}, {4096*9}, v{240+ct}")
        for i in range(20):
            a(f"v_mov_b32 {v(ACC+i)}, 0")

    def proj_run(XF, ACC, ST, NST, pre, wait_fn):
        def rd(f):
            st_, ct = divmod(f, 5)
            b = ST + 4 * (f % NST)
            if ct < 4:
                ar = (240 if st_ < 9 else 244) + ct
                off = 4096 * (st_ % 9)
                return [f"ds_read_b64_tr_b16 {v(b,2)}, v{ar} offset:{off}",
                        f"ds_read_b64_tr_b16 {v(b+2,2)}, v{ar} offset:{off+512}"]
            return [f"ds_read_b64_tr_b16 {v(b,2)}, v248 offset:{512*st_}",
                    f"ds_read_b64_tr_b16 {v(b+2,2)}, v248 offset:{512*st_+64}"]
        for f in range(pre):
            for x in rd(f):
                a(x)
        wait_fn(-1)
        for f in range(90):
            st_, ct = divmod(f, 5)
            out = min(pre - 1, 89 - f)
            if ct == 0:
                wait_fn(st_)
            a(f"s_waitcnt lgkmcnt({min(15, 2*out)})")
            b = ST + 4 * (f % NST)
            a(f"v_mfma_f32_16x16x32_bf16 {v(ACC+4*ct,4)}, {v(b,4)}, {v(XF+4*st_,4)}, {v(ACC+4*ct,4)}")
            if f + pre < 90:
                for x in rd(f + pre):
                    a(x)

    kname = NAME + "_kernel"
    a(f"{kname}:")
    if stamps:
        a("v_mov_b32 v255, 0")
    stamp(0)
    a("s_cmp_ge_u32 s2, 256")
    a("s_cbranch_scc1 L_exit")
    a("s_load_dwordx16 s[16:31], s[0:1], 0")
    a("s_load_dwordx16 s[32:47], s[0:1], 64")
    a("s_load_dwordx2 s[48:49], s[0:1], 128")
    a(f"v_lshrrev_b32 v2, 6, v0")
    a(f"v_and_b32 {v(vL)}, 63, v0")
    a(f"v_readfirstlane_b32 {s(sWV)}, v2")
    a(f"s_and_b32 {s(sXCD)}, s2, 7")
    a(f"s_lshr_b32 {s(T0+1)}, s2, 3")
    a(f"s_and_b32 {s(T0+2)}, {s(T0+1)}, 3")
    a(f"s_lshl_b32 {s(sQB)}, {s(sXCD)}, 2")
    a(f"s_add_u32 {s(sQB)}, {s(sQB)}, {s(T0+2)}")
    a(f"s_lshr_b32 {s(sG)}, {s(T0+1)}, 2")
    a(f"s_lshl_b32 {s(sCID)}, {s(sXCD)}, 5")
    a(f"s_add_u32 {s(sCID)}, {s(sCID)}, {s(T0+1)}")
    a(f"s_cmp_lg_u32 {s(sWV)}, 6")
    a("s_cbranch_scc1 L_e1")
    a(f"s_getpc_b64 {s(T0+4,2)}")
    a(f"s_lshl_b32 {s(T0+3)}, {s(T0+2)}, 13")
    a(f"v_lshlrev_b32 v2, 7, {v(vL)}")
    a(f"v_add_u32 v2, {s(T0+3)}, v2")
    a(f"v_min_u32 v2, CODE_END_OFF, v2")
    a(f"global_load_dword v15, v2, {s(T0+4,2)}")
    a(f"v_lshlrev_b32 v2, 2, {v(vL)}")
    a(f"v_add_u32 v2, {FL}, v2")
    a("v_mov_b32 v4, 0")
    a("ds_write_b32 v2, v4")
    a("L_e1:")
    a(f"s_lshr_b32 {s(T0)}, {s(sCID)}, 2")
    a(f"s_and_b32 {s(sJJ)}, {s(sCID)}, 3")
    a(f"s_mul_i32 {s(T0+1)}, {s(T0)}, 9")
    a(f"s_and_b32 {s(T0+2)}, {s(T0)}, 1")
    a(f"s_lshl_b32 {s(sCH0)}, {s(sJJ)}, 1")
    a(f"s_add_u32 {s(sCH0)}, {s(sCH0)}, {s(T0+1)}")
    a(f"s_add_u32 {s(sCH0)}, {s(sCH0)}, {s(T0+2)}")
    a(f"s_cmp_eq_u32 {s(T0+2)}, 0")
    a(f"s_cselect_b32 {s(sCHS)}, 8, 0")
    a(f"s_add_u32 {s(sCHS)}, {s(sCHS)}, {s(T0+1)}")
    sPW = T0 + 20
    a(f"s_lshr_b32 {s(sPW)}, {s(sG)}, 1")
    a(f"s_cmp_ge_u32 {s(sWV)}, 4")
    a("s_cbranch_scc1 L_h0")
    a(f"v_lshrrev_b32 v2, 3, {v(vL)}")
    a(f"v_xor_b32 v2, v2, {v(vL)}")
    a("v_lshlrev_b32 v2, 4, v2")
    a(f"s_lshl_b32 {s(T0)}, {s(sQB)}, 2")
    a(f"s_add_u32 {s(T0)}, {s(T0)}, {s(sWV)}")
    a(f"s_mul_i32 {s(T0)}, {s(T0)}, 18432")
    a(f"s_mul_i32 {s(T0+1)}, {s(sWV)}, 18432")
    a(f"s_add_u32 {s(T0+1)}, {s(T0+1)}, {XW}")
    a(f"s_and_b32 {s(T0+2)}, {s(sG)}, 1")
    a(f"s_mul_i32 {s(T0+2)}, {s(T0+2)}, 9216")
    a("s_waitcnt lgkmcnt(0)")
    a(f"s_load_dword {s(sTAG)}, {s(pWS,2)}, 0")
    srd(SRA, pX, 2048 * 1152)
    a(f"s_cmp_eq_u32 {s(sWV)}, {s(sPW)}")
    a("s_cbranch_scc1 L_xdma")
    a(f"s_sub_u32 {s(T0+4)}, {s(sWV)}, {s(sPW)}")
    a(f"s_and_b32 {s(T0+4)}, {s(T0+4)}, 3")
    a(f"s_mul_i32 {s(T0+4)}, {s(T0+4)}, 6912")
    a(f"s_lshr_b32 {s(T0+5)}, s2, 3")
    a(f"s_mul_i32 {s(T0+5)}, {s(T0+5)}, 20736")
    a(f"s_add_u32 {s(T0+4)}, {s(T0+4)}, {s(T0+5)}")
    a(f"s_sub_u32 {s(T0+4)}, {s(T0+4)}, 6912")
    a(f"v_min_u32 v3, 53, {v(vL)}")
    a("v_lshlrev_b32 v3, 7, v3")
    a(f"v_add_u32 v3, {s(T0+4)}, v3")
    a(f"global_load_dword v4, v3, {s(pWQ,2)}")
    a("s_waitcnt lgkmcnt(0)")
    a("s_barrier")
    a("s_waitcnt vmcnt(0)")
    a("L_xdma:")
    a(f"s_mov_b32 {s(T0+4)}, 6")
    a("L_xl:")
    a(f"s_add_u32 m0, {s(T0+1)}, {s(T0+2)}")
    a(f"s_add_u32 {s(T0+3)}, {s(T0)}, {s(T0+2)}")
    for j in range(3):
        a(f"buffer_load_dwordx4 v2, {s(SRA,4)}, {s(T0+3)} offen offset:{1024*j} lds")
    a(f"s_add_u32 {s(T0+2)}, {s(T0+2)}, 3072")
    a(f"s_cmp_eq_u32 {s(T0+2)}, 18432")
    a(f"s_cselect_b32 {s(T0+2)}, 0, {s(T0+2)}")
    a(f"s_sub_u32 {s(T0+4)}, {s(T0+4)}, 1")
    a(f"s_cmp_lg_u32 {s(T0+4)}, 0")
    a("s_cbranch_scc1 L_xl")
    a(f"s_cmp_lg_u32 {s(sWV)}, {s(sPW)}")
    a("s_cbranch_scc1 L_a1")
    a("s_waitcnt lgkmcnt(0)")
    a("s_barrier")
    a("s_branch L_a1")
    a("L_h0:")
    a("s_setprio 2")
    a(f"s_cmp_eq_u32 {s(sWV)}, 7")
    a("s_cbranch_scc1 L_ld0")
    a(f"s_sub_u32 {s(T0)}, {s(sWV)}, 4")
    a(f"s_add_u32 {s(T0+1)}, {s(sCH0)}, {s(T0)}")
    a(f"s_cmp_eq_u32 {s(T0)}, 2")
    a(f"s_cselect_b32 {s(T0+1)}, {s(sCHS)}, {s(T0+1)}")
    a(f"s_lshl_b32 {s(T0+2)}, {s(T0+1)}, 8")
    a(f"v_lshlrev_b32 v2, 2, {v(vL)}")
    a(f"v_add_u32 v3, {s(T0+2)}, v2")
    a(f"s_lshl_b32 {s(T0+2)}, {s(T0+1)}, 1")
    a(f"v_mov_b32 v11, {s(T0+2)}")
    a("s_waitcnt lgkmcnt(0)")
    a(f"s_load_dword {s(sTAG)}, {s(pWS,2)}, 0")
    PR = 4
    a(f"global_load_ushort v10, v11, {s(pLDT,2)}")
    for i, p in enumerate((pARE, pAIM, pBRE, pBIM, pCRE, pCIM)):
        a(f"global_load_dword v{PR+i}, v3, {s(p,2)}")
    a("s_waitcnt lgkmcnt(0)")
    a("s_barrier")
    a("s_branch L_kgen")
    a("L_ld0:")
    for i in range(3):
        a(f"v_add_u32 v2, {64*i}, {v(vL)}")
        a("v_mul_u32_u24 v4, 21846, v2")
        a("v_lshrrev_b32 v4, 16, v4")
        a("v_mul_u32_u24 v5, 3, v4")
        a("v_sub_u32 v5, v2, v5")
        a("v_lshlrev_b32 v5, 4, v5")
        a("v_min_u32 v5, 20, v5")
        a(f"v_mad_u32_u24 v{6+i}, v4, 36, v5")
    a(f"s_lshr_b32 {s(T0+4)}, s2, 3")
    a(f"s_and_b32 {s(T0+4)}, {s(T0+4)}, 3")
    a(f"s_lshl_b32 {s(T0+4)}, {s(T0+4)}, 1")
    a(f"s_lshr_b32 {s(T0+5)}, {s(sG)}, 2")
    a(f"s_add_u32 {s(T0+4)}, {s(T0+4)}, {s(T0+5)}")
    a(f"s_and_b32 {s(T0)}, {s(sG)}, 1")
    a("s_waitcnt lgkmcnt(0)")
    a(f"s_load_dword {s(sTAG)}, {s(pWS,2)}, 0")
    a(f"s_cmp_eq_u32 {s(T0)}, 1")
    a(f"s_cselect_b32 {s(T0+2)}, {s(pWV)}, {s(pWK)}")
    a(f"s_cselect_b32 {s(T0+3)}, {s(pWV+1)}, {s(pWK+1)}")
    srd(SRA, T0 + 2, 576 * 36)
    a(f"s_mov_b32 {s(T0+5)}, 9")
    a("L_wkl:")
    a(f"s_mul_i32 {s(T0+6)}, {s(T0+4)}, 3072")
    a(f"s_add_u32 {s(T0+6)}, {s(T0+6)}, {WK}")
    a(f"s_mul_i32 {s(T0+7)}, {s(T0+4)}, 2304")
    for j in range(3):
        a(f"s_add_u32 m0, {s(T0+6)}, {1024*j}")
        a(f"s_add_u32 {s(T0+4)}, {s(T0+4)}, {1 if j == 0 else 0}")
        a(f"buffer_load_dwordx4 v{6+j}, {s(SRA,4)}, {s(T0+7)} offen lds")
    a(f"s_cmp_eq_u32 {s(T0+4)}, 9")
    a(f"s_cselect_b32 {s(T0+4)}, 0, {s(T0+4)}")
    a(f"s_sub_u32 {s(T0+5)}, {s(T0+5)}, 1")
    a(f"s_cmp_lg_u32 {s(T0+5)}, 0")
    a("s_cbranch_scc1 L_wkl")
    a("s_waitcnt lgkmcnt(0)")
    a("s_barrier")
    a("s_branch L_loader")

    XF, ACC, ST = 16, 88, 108
    a("L_a1:")
    stamp(12)
    mktag()
    srd(SRB, pWQ, 576 * 1152)
    a(f"v_and_b32 v2, 15, {v(vL)}")
    a(f"v_lshrrev_b32 v3, 4, {v(vL)}")
    a(f"v_mul_u32_u24 v4, 1152, v2")
    a(f"v_add_u32 v4, {s(T0+1)}, v4")
    for t in range(8):
        a(f"v_add_u32 v5, {t}, v2")
        a("v_and_b32 v5, 7, v5")
        a("v_xor_b32 v5, v5, v3")
        a(f"v_lshl_add_u32 {v(ST+t)}, v5, 4, v4")
        a(f"v_xor_b32 {v(ST+8+t)}, 64, {v(ST+t)}")
    a("s_waitcnt vmcnt(0)")
    stamp(1)
    for st_ in range(18):
        t = st_ >> 1
        a(f"ds_read_b128 {v(XF+4*st_,4)}, {v(ST+8*(st_&1)+(t&7))} offset:{128*t}")
    a(f"s_cmp_lg_u32 {s(sPW)}, {s(sWV)}")
    a("s_cbranch_scc1 L_p_dma")
    lds_add(F_XP, 2)
    a(f"v_lshrrev_b32 v2, 4, {v(vL)}")
    a(f"v_bfe_u32 v3, {v(vL)}, 2, 2")
    a(f"v_and_b32 v4, 3, {v(vL)}")
    a("v_lshl_add_u32 v5, v2, 3, v3")
    a("v_mul_u32_u24 v5, 48, v5")
    a(f"v_add_u32 v5, {WK}, v5")
    a("v_lshl_add_u32 v6, v4, 3, v5")
    a("v_add_u32 v7, 40, v5")
    for i in range(8):
        a(f"v_mov_b32 {v(ACC+i)}, 0")
    a(f"s_lshr_b32 {s(T0+1)}, {s(sQB)}, 2")
    a(f"s_mul_i32 {s(T0+1)}, {s(T0+1)}, {CH_SZ}")
    a(f"s_add_u32 {s(T0+1)}, {s(T0+1)}, {WS_KV}")
    a(f"s_and_b32 {s(T0+2)}, {s(sQB)}, 3")
    a(f"s_lshl_b32 {s(T0+3)}, {s(T0+2)}, 1")
    a(f"s_lshr_b32 {s(T0+4)}, {s(sWV)}, 1")
    a(f"s_add_u32 {s(T0+3)}, {s(T0+3)}, {s(T0+4)}")
    a(f"s_mul_i32 {s(T0+3)}, {s(T0+3)}, 2240")
    a(f"s_add_u32 {s(T0+3)}, {s(T0+3)}, {s(T0+1)}")
    a(f"s_and_b32 {s(T0+4)}, {s(sWV)}, 1")
    a(f"v_and_b32 v3, 15, {v(vL)}")
    a("v_lshrrev_b32 v12, 1, v2")
    a("v_and_b32 v13, 1, v2")
    a("v_lshlrev_b32 v13, 3, v13")
    a("v_lshl_add_u32 v13, v3, 4, v13")
    stamp(13)
    lds_wait(F_WK, 1, 8, T0)
    stamp(14)
    a(f"s_and_b32 {s(T0)}, {s(sG)}, 1")
    a(f"s_cmp_eq_u32 {s(T0)}, 1")
    a("s_cbranch_scc1 L_pv")

    def kvproj(isV):
        NR, PRE = 8, 7

        def rd(f):
            st_, tl = divmod(f, 2)
            b = ST + 4 * (f % NR)
            o = 48 * 32 * st_
            a(f"ds_read_b64_tr_b16 {v(b,2)}, v{6+tl} offset:{o}")
            a(f"ds_read_b64_tr_b16 {v(b+2,2)}, v{6+tl} offset:{o+192}")
        for f in range(PRE):
            rd(f)
        for f in range(36):
            st_, tl = divmod(f, 2)
            a(f"s_waitcnt lgkmcnt({2*min(PRE-1, 35-f)})")
            w_, x_ = v(ST + 4 * (f % NR), 4), v(XF + 4 * st_, 4)
            A_, B_ = (x_, w_) if isV else (w_, x_)
            a(f"v_mfma_f32_16x16x32_bf16 {v(ACC+4*tl,4)}, {A_}, {B_}, {v(ACC+4*tl,4)}")
            if f + PRE < 36:
                rd(f + PRE)

    kvproj(False)
    a("v_lshl_add_u32 v4, v12, 9, v13")
    a(f"s_lshl_b32 {s(T0+4)}, {s(T0+4)}, 8")
    a(f"s_add_u32 {s(T0+3)}, {s(T0+3)}, {s(T0+4)}")
    a(f"v_add_u32 v4, {s(T0+3)}, v4")
    a(f"s_lshl_b32 {s(T0+2)}, {s(T0+2)}, 2")
    a(f"s_lshl_b32 {s(T0+4)}, {s(sWV)}, 8")
    a(f"s_add_u32 {s(T0+2)}, {s(T0+2)}, {s(T0+4)}")
    a(f"s_add_u32 {s(T0+2)}, {s(T0+2)}, {s(T0+1)}")
    a(f"s_add_u32 {s(T0+2)}, {s(T0+2)}, 17920")
    a("v_lshlrev_b32 v5, 4, v3")
    a(f"v_add_u32 v5, {s(T0+2)}, v5")
    a(f"v_cvt_pk_bf16_f32 v8, {v(ACC)}, {v(ACC+1)}")
    a(f"v_cvt_pk_bf16_f32 v9, {v(ACC+2)}, {v(ACC+3)}")
    a(f"v_cvt_pk_bf16_f32 v10, {v(ACC+6)}, {v(ACC+7)}")
    a(f"global_store_dwordx2 v4, v[8:9], {s(pWS,2)} sc1")
    a("s_mov_b64 exec, 0xffff")
    a(f"global_store_dword v5, v10, {s(pWS,2)} sc1")
    a("s_mov_b64 exec, -1")
    a("s_branch L_pub")
    a("L_pv:")
    kvproj(True)
    a(f"s_movk_i32 {s(T0)}, 288")
    a(f"v_mad_u32_u24 v4, v12, {s(T0)}, v13")
    a(f"s_mul_i32 {s(T0+4)}, {s(T0+4)}, 608")
    a(f"s_add_u32 {s(T0+3)}, {s(T0+3)}, {s(T0+4)}")
    a(f"s_add_u32 {s(T0+3)}, {s(T0+3)}, 1024")
    a(f"v_add_u32 v4, {s(T0+3)}, v4")
    a("v_cmp_eq_u32 vcc, 4, v3")
    a("v_mov_b32 v5, 0x3f803f80")
    a("v_cndmask_b32 v5, 0, v5, vcc")
    a("v_cmp_le_u32 vcc, 4, v3")
    a(f"v_cvt_pk_bf16_f32 v8, {v(ACC)}, {v(ACC+1)}")
    a(f"v_cvt_pk_bf16_f32 v9, {v(ACC+2)}, {v(ACC+3)}")
    a(f"v_cvt_pk_bf16_f32 v10, {v(ACC+4)}, {v(ACC+5)}")
    a(f"v_cvt_pk_bf16_f32 v11, {v(ACC+6)}, {v(ACC+7)}")
    a(f"global_store_dwordx2 v4, v[8:9], {s(pWS,2)} sc1")
    a("v_cndmask_b32 v10, v10, v5, vcc")
    a("v_cndmask_b32 v11, v11, v5, vcc")
    a(f"s_mov_b32 exec_lo, 0x000c000c")
    a(f"s_mov_b32 exec_hi, 0x003c003c")
    a(f"global_store_dwordx2 v4, v[10:11], {s(pWS,2)} offset:224 sc1")
    a("s_mov_b64 exec, -1")
    a("L_pub:")
    stamp(15)
    lds_add(F_KVD, 2)
    a(f"s_lshl_b32 {s(T0)}, {s(sQB)}, 3")
    a(f"s_add_u32 {s(T0)}, {s(T0)}, {s(sG)}")
    a(f"s_lshl_b32 {s(T0)}, {s(T0)}, 7")
    a(f"s_add_u32 {s(T0)}, {s(T0)}, {WS_FKV}")
    a(f"v_mov_b32 v14, {s(T0)}")
    a(f"v_mov_b32 v15, {s(sTAG)}")
    proj_setup(ACC, XW, WX)
    a("s_waitcnt vmcnt(0)")
    a("s_mov_b64 exec, 1")
    a(f"global_store_dword v14, v15, {s(pWS,2)} sc1")
    a("s_mov_b64 exec, -1")
    stamp(2)
    a("s_branch L_qproj")
    a("L_p_dma:")
    a("s_waitcnt lgkmcnt(0)")
    w_dma(SRB, XW, WX, False, sWV)
    stamp(16)
    proj_setup(ACC, XW, WX)
    a("s_waitcnt vmcnt(0)")
    stamp(17)
    lds_add(F_WQ, 2)
    a("L_qproj:")
    lds_wait(F_WQ, 4, 2, T0)
    stamp(3)
    proj_run(XF, ACC, ST, 8, 7, lambda st_: None)
    stamp(18)
    a(f"v_and_b32 v2, 15, {v(vL)}")
    a(f"v_lshrrev_b32 v3, 4, {v(vL)}")
    a(f"v_mul_u32_u24 v2, {QST}, v2")
    a("v_lshl_add_u32 v2, v3, 3, v2")
    a(f"s_mul_i32 {s(T0)}, {s(sWV)}, {16*QST}")
    a(f"s_add_u32 {s(T0)}, {s(T0)}, {QI}")
    a(f"v_add_u32 v2, {s(T0)}, v2")
    lds_wait(F_KVD, 1, 4, T0)
    a(f"s_mov_b32 {s(T0)}, {f32(QSCALE)}")
    a(f"s_mov_b32 {s(T0+1)}, {f32(QSCALE)}")
    for ct in range(5):
        b = ACC + 4 * ct
        a(f"v_pk_mul_f32 {v(b,2)}, {v(b,2)}, {s(T0,2)}")
        a(f"v_pk_mul_f32 {v(b+2,2)}, {v(b+2,2)}, {s(T0,2)}")
        a(f"v_cvt_pk_bf16_f32 {v(b)}, {v(b)}, {v(b+1)}")
        a(f"v_cvt_pk_bf16_f32 {v(b+1)}, {v(b+2)}, {v(b+3)}")
        if ct == 4:
            a("s_mov_b32 exec_hi, 0")
        a(f"ds_write_b64 v2, {v(b,2)} offset:{32*ct}")
    a("s_mov_b64 exec, -1")
    lds_add(F_QW, 2)

    SX, SY, OA, OB = 16, 48, 80, 96
    QA, QB, QX0, QX1, IDX = 112, 116, 120, 122, 124
    KF, V0F, V1F, KXF = 128, 136, 144, 152
    vK, vV, vKl, vVl, vFl, vCo, vCv, vFa = 156, 157, 158, 159, 160, 161, 162, 163
    sI, sSEQ, sNB = T0 + 10, T0 + 11, T0 + 12
    a(f"v_and_b32 v2, 31, {v(vL)}")
    a(f"v_lshrrev_b32 v3, 5, {v(vL)}")
    a(f"v_mul_u32_u24 v4, {QST}, v2")
    a(f"s_lshr_b32 {s(T0)}, {s(sWV)}, 1")
    a(f"s_mul_i32 {s(T0)}, {s(T0)}, {32*QST}")
    a(f"s_and_b32 {s(T0+1)}, {s(sWV)}, 1")
    a(f"s_mul_i32 {s(T0+1)}, {s(T0+1)}, 72")
    a(f"s_add_u32 {s(T0)}, {s(T0)}, {s(T0+1)}")
    a(f"s_add_u32 {s(T0)}, {s(T0)}, {QI}")
    a(f"v_add_u32 v4, {s(T0)}, v4")
    a("v_mad_u32_u24 v5, v3, 36, v4")
    a("v_lshl_add_u32 v4, v3, 4, v4")
    a(f"v_lshlrev_b32 {v(vKl)}, 4, {v(vL)}")
    a("v_and_b32 v6, 19, v2")
    a("v_bfe_u32 v7, v2, 2, 1")
    a("v_lshl_or_b32 v6, v7, 3, v6")
    a("v_bfe_u32 v7, v2, 3, 1")
    a("v_lshl_or_b32 v6, v7, 2, v6")
    a("v_mad_u32_u24 v6, v3, 18, v6")
    a("v_and_b32 v7, 27, v2")
    a("v_cmp_eq_u32 vcc, 18, v7")
    a("v_mov_b32 v8, 36")
    a("v_cndmask_b32 v7, 37, v8, vcc")
    a("v_cmp_gt_u32 vcc, 18, v2")
    a(f"v_mov_b32 {v(IDX)}, 0xdddd")
    a("v_cndmask_b32 v6, v7, v6, vcc")
    a(f"v_lshlrev_b32 {v(vVl)}, 4, v6")
    a(f"v_add_u32 {v(vVl)}, 1024, {v(vVl)}")
    b0 = SLOT0 + CH_SZ * SLOTSEQ[0]
    a(f"v_add_u32 {v(vK)}, {b0}, {v(vKl)}")
    a(f"v_add_u32 {v(vV)}, {b0}, {v(vVl)}")
    a(f"v_mov_b32 {v(vFa)}, {F_RDY}")
    a(f"s_lshl_b32 {s(T0)}, {s(sWV)}, 2")
    a(f"s_add_u32 {s(T0)}, {s(T0)}, {F_CONS}")
    a(f"v_mov_b32 {v(vCo)}, {s(T0)}")
    a(f"v_mov_b32 {v(vCv)}, 0")
    for i in range(32):
        a(f"v_mov_b32 {v(OA+i)}, 0")
    a(f"v_mov_b32 {v(QX0+1)}, 0")
    a(f"v_mov_b32 {v(QX1)}, 0")
    seq = 0
    for i, k in enumerate(SLOTSEQ[1:] + [SLOTSEQ[-1]]):
        seq |= k << (4 * i)
    a(f"s_mov_b32 {s(sSEQ)}, {hex(seq)}")
    a(f"s_mov_b32 {s(sI)}, 0")
    lds_wait(F_QW, 4, 8, T0)
    a(f"ds_read2_b32 {v(QA,2)}, v4 offset0:0 offset1:1")
    a(f"ds_read2_b32 {v(QA+2,2)}, v4 offset0:2 offset1:3")
    a(f"ds_read2_b32 {v(QB,2)}, v4 offset0:9 offset1:10")
    a(f"ds_read2_b32 {v(QB+2,2)}, v4 offset0:11 offset1:12")
    a(f"ds_read_b32 {v(QX0)}, v5 offset:32")
    a(f"ds_read_b32 {v(QX1+1)}, v5 offset:32")
    lds_add(F_QD, 8)
    stamp(4)
    lds_wait(F_RDY, 1, 8, T0)
    stamp(6)

    def m2b(D, t):
        q = QX0 if ((t >> 1) & 1) == 0 else QX1
        return f"v_mfma_f32_32x32x4_2b_bf16 {v(D,32)}, {v(KXF+2*(t>>2),2)}, {v(q,2)}, 0 cbsz:1 abid:{t&1}"

    def mS(D, t, Q):
        return f"v_mfma_f32_32x32x16_bf16 {v(D,16)}, {v(KF+4*(t&1),4)}, {v(Q,4)}, {v(D,16)}"

    def smf(O, VF, t, P):
        return f"v_smfmac_f32_32x32x32_bf16 {v(O,16)}, {v(VF+4*(t&1),4)}, {v(P,8)}, {v(IDX)}"

    a(f"ds_read_b128 {v(KXF,4)}, {v(vK)} offset:17920")
    a(f"ds_read_b128 {v(KF,4)}, {v(vK)}")
    a(f"ds_read_b128 {v(KF+4,4)}, {v(vK)} offset:2240")
    a(f"ds_read_b128 {v(V0F,4)}, {v(vV)}")
    a(f"ds_read_b128 {v(V1F,4)}, {v(vV)} offset:608")
    for i in range(4):
        a(f"v_mov_b32 {v(V1F+4+i)}, 0")
    for i in range(8):
        a(f"v_mov_b32 {v(SY+24+i)}, 0")
    a("s_waitcnt lgkmcnt(4)")
    a(m2b(SX, 0))
    a("s_waitcnt lgkmcnt(0)")
    a(mS(SX, 0, QA))
    a(mS(SX + 16, 0, QB))
    a("s_nop 10")
    a(".p2align 3")
    a("L_att:")
    for t in range(8):
        cur, nxt = (SX, SY) if t % 2 == 0 else (SY, SX)
        ex = [f"v_exp_f32 {v(cur+i)}, {v(cur+i)}" for i in range(32)]
        tn = (t + 1) & 7
        q = []
        q += ex[0:2]
        q.append(smf(OB, V1F, t - 1, nxt + 24))
        q.append("s_waitcnt lgkmcnt(0)")
        if t == 5:
            q.append(f"v_readfirstlane_b32 {s(T0)}, {v(vFl)}")
        q += ex[2:5]
        q.append(m2b(nxt, tn))
        if t == 5:
            q.append(f"s_cmp_le_u32 {s(T0)}, {s(T0+1)}")
            q.append("s_cbranch_scc1 L_rw")
            q.append("L_rwd:")
        q += ex[5:13]
        q.append(smf(OA, V0F, t, cur))
        q.append(f"ds_read_b128 {v(KF+4*(t&1),4)}, {v(vK)} offset:{2240*((t+2)&7)}")
        q += ex[13:18]
        q.append(smf(OA, V1F, t, cur + 8))
        q.append(f"ds_read_b128 {v(V0F+4*(tn&1),4)}, {v(vV)} offset:{2240*tn}")
        q += ex[18:22]
        q.append(mS(nxt, tn, QA))
        q.append(f"ds_read_b128 {v(V1F+4*(tn&1),4)}, {v(vV)} offset:{2240*tn+608}")
        q += ex[22:26]
        q.append(smf(OB, V0F, t, cur + 16))
        if t == 3:
            q.append(f"s_and_b32 {s(sNB)}, {s(sSEQ)}, 15")
            q.append(f"s_mul_i32 {s(sNB)}, {s(sNB)}, {CH_SZ}")
        if t == 4:
            q.append(f"ds_read_b32 {v(vFl)}, {v(vFa)}")
        if t == 6:
            q.append(f"ds_read_b128 {v(KXF,4)}, {v(vK)} offset:17920")
        if t == 7:
            q.append(f"ds_write_b32 {v(vCo)}, {v(vCv)}")
        q += ex[26:29]
        q.append(mS(nxt + 16, tn, QB))
        if t == 2:
            q.append(f"s_add_u32 {s(sI)}, {s(sI)}, 1")
        if t == 3:
            q.append(f"s_add_u32 {s(sNB)}, {s(sNB)}, {SLOT0}")
        if t == 4:
            q.append(f"s_min_u32 {s(T0+1)}, {s(sI)}, 7")
        if t == 5:
            q.append(f"s_lshr_b32 {s(sSEQ)}, {s(sSEQ)}, 4")
            q.append(f"v_add_u32 {v(vK)}, {s(sNB)}, {v(vKl)}")
        if t == 6:
            q.append(f"v_add_u32 {v(vV)}, {s(sNB)}, {v(vVl)}")
            q.append(f"v_mov_b32 {v(vCv)}, {s(sI)}")
        if t == 7:
            q.append(f"s_cmp_lt_u32 {s(sI)}, 8")
        q += ex[29:32]
        for x in q:
            a(x)
    a("s_cbranch_scc1 L_att")
    a(smf(OB, V1F, 7, SY + 24))
    stamp(9)
    a(f"v_and_b32 v2, 15, {v(vL)}")
    a(f"v_bfe_u32 v3, {v(vL)}, 4, 1")
    a(f"v_lshrrev_b32 v4, 5, {v(vL)}")
    a(f"s_movk_i32 {s(T0)}, {72*256}")
    a("v_lshlrev_b32 v2, 4, v2")
    a(f"v_mad_u32_u24 v2, v3, {s(T0)}, v2")
    a(f"s_lshl_b32 {s(T0)}, {s(sQB)}, 2")
    a(f"s_and_b32 {s(T0+1)}, {s(sWV)}, 2")
    a(f"s_add_u32 {s(T0)}, {s(T0)}, {s(T0+1)}")
    a(f"s_mul_i32 {s(T0)}, {s(T0)}, 72")
    a(f"s_mul_i32 {s(T0+1)}, {s(sG)}, 9")
    a(f"s_add_u32 {s(T0)}, {s(T0)}, {s(T0+1)}")
    a(f"s_lshl_b32 {s(T0)}, {s(T0)}, 8")
    a(f"s_add_u32 {s(T0)}, {s(T0)}, {WS_O}")
    a(f"s_and_b32 {s(T0+1)}, {s(sWV)}, 1")
    a(f"s_lshl_b32 {s(T0+2)}, {s(T0+1)}, 10")
    a(f"s_add_u32 {s(T0+2)}, {s(T0+2)}, {s(T0)}")
    a(f"s_lshl_b32 {s(T0+1)}, {s(T0+1)}, 3")
    a(f"s_add_u32 {s(T0+1)}, {s(T0+1)}, {s(T0)}")
    a(f"v_add_u32 v5, {s(T0+1)}, v2")
    a("v_lshl_add_u32 v2, v4, 8, v2")
    a(f"v_add_u32 v2, {s(T0+2)}, v2")
    for T, O in enumerate((OA, OB)):
        a(f"v_rcp_f32 v6, {v(O+10)}")
        a(f"s_nop 0")
        a("v_mov_b32 v7, v6")
        for i in range(0, 10, 2):
            a(f"v_pk_mul_f32 {v(O+i,2)}, {v(O+i,2)}, v[6:7]")
        for i in range(4):
            a(f"v_cvt_pk_bf16_f32 {v(16+4*T+i)}, {v(O+2*i)}, {v(O+2*i+1)}")
        a(f"v_cvt_pk_bf16_f32 {v(24+T)}, {v(O+8)}, {v(O+9)}")
        a(f"global_store_dwordx4 v2, {v(16+4*T,4)}, {s(pWS,2)} offset:{512*T} sc1")
    a("s_mov_b32 exec_hi, 0")
    a(f"global_store_dwordx2 v5, v[24:25], {s(pWS,2)} offset:2048 sc1")
    a(f"s_lshl_b32 {s(T0)}, {s(sQB)}, 3")
    a(f"s_add_u32 {s(T0)}, {s(T0)}, {s(sG)}")
    a(f"s_lshl_b32 {s(T0)}, {s(T0)}, 7")
    a(f"s_lshl_b32 {s(T0+1)}, {s(sWV)}, 2")
    a(f"s_add_u32 {s(T0)}, {s(T0)}, {s(T0+1)}")
    a(f"s_add_u32 {s(T0)}, {s(T0)}, {WS_FO}")
    a("s_mov_b64 exec, 1")
    a(f"v_mov_b32 v4, {s(T0)}")
    a(f"v_mov_b32 v5, {s(sTAG)}")
    a("s_waitcnt vmcnt(0)")
    a(f"global_store_dword v4, v5, {s(pWS,2)} sc1")
    a("s_mov_b64 exec, -1")
    a("s_branch L_fin")
    a("L_rw:")
    a("s_sleep 1")
    a(f"ds_read_b32 {v(vFl)}, {v(vFa)}")
    a("s_waitcnt lgkmcnt(0)")
    a(f"v_readfirstlane_b32 {s(T0)}, {v(vFl)}")
    a(f"s_cmp_le_u32 {s(T0)}, {s(T0+1)}")
    a("s_cbranch_scc1 L_rw")
    a("s_branch L_rwd")

    def chunk_dma(i):
        a(f"s_add_u32 {s(T0+1)}, {s(sXCD)}, {i}")
        a(f"s_and_b32 {s(T0+1)}, {s(T0+1)}, 7")
        a(f"s_mul_i32 {s(T0+1)}, {s(T0+1)}, {CH_SZ}")
        a(f"s_add_u32 {s(T0+1)}, {s(T0+1)}, {WS_KV}")
        a(f"s_add_u32 {s(T0+2)}, {s(pWS)}, {s(T0+1)}")
        a(f"s_addc_u32 {s(T0+3)}, {s(pWS+1)}, 0")
        base = SLOT0 + CH_SZ * SLOTSEQ[i]
        for j in range(19):
            if j % 4 == 0:
                a(f"s_mov_b32 m0, {base + 1024*j}")
                if j:
                    a(f"s_add_u32 {s(T0+2)}, {s(T0+2)}, 4096")
                    a(f"s_addc_u32 {s(T0+3)}, {s(T0+3)}, 0")
            if j == 18:
                a("s_mov_b32 exec_hi, 0")
            a(f"global_load_lds_dwordx4 v14, {s(T0+2,2)} offset:{1024*(j%4)} sc1")
        a("s_mov_b32 exec_hi, -1")

    def set_rdy(n):
        a(f"v_mov_b32 v2, {F_RDY}")
        a(f"v_mov_b32 v3, {n}")
        a("ds_write_b32 v2, v3")

    a("L_loader:")
    stamp(12)
    mktag()
    srd(SRB, pWQ, 576 * 1152)
    a("s_waitcnt vmcnt(0)")
    stamp(13)
    lds_add(F_WK, 2)
    lds_wait(F_XP, 1, 2, T0)
    w_dma(SRB, XW, WX, False, sPW)
    a(f"v_lshlrev_b32 v14, 4, {v(vL)}")
    a(f"v_and_b32 v16, 31, {v(vL)}")
    a("v_lshlrev_b32 v16, 7, v16")
    a(f"s_lshl_b32 {s(T0)}, {s(sXCD)}, 12")
    a(f"s_add_u32 {s(T0)}, {s(T0)}, {WS_FKV}")
    a(f"v_add_u32 v16, {s(T0)}, v16")
    a("s_waitcnt vmcnt(0)")
    stamp(14)
    lds_add(F_WQ, 2)
    poll(16, 20, "L_pk0")
    stamp(5)
    chunk_dma(0)
    a(f"v_lshlrev_b32 v16, 7, {v(vL)}")
    a(f"v_add_u32 v16, {WS_FKV}, v16")
    for i in range(1, 4):
        a(f"v_add_u32 v{16+i}, {8192*i}, v16")
    a("s_waitcnt vmcnt(0)")
    set_rdy(1)
    stamp(15)
    poll(16, 20, "L_pk1", n=4)
    lds_wait(F_QD, 4, 2, T0)
    stamp(16)
    chunk_dma(1)
    chunk_dma(2)
    a("s_waitcnt vmcnt(19)")
    set_rdy(2)
    chunk_dma(3)
    a("s_waitcnt vmcnt(19)")
    set_rdy(3)
    chunk_dma(4)
    a("s_waitcnt vmcnt(19)")
    set_rdy(4)
    a("s_waitcnt vmcnt(0)")
    set_rdy(5)
    stamp(17)
    a("s_branch L_ssm")

    a("L_kgen:")
    stamp(12)
    mktag()
    a(f"s_mul_i32 {s(T0+3)}, {s(T0)}, {S_SZ}")
    a(f"v_add_u32 v11, {s(T0+3)}, v2")
    a(f"v_and_b32 v12, 31, {v(vL)}")
    a(f"v_lshrrev_b32 v13, 5, {v(vL)}")
    a("v_mul_u32_u24 v14, 272, v12")
    a("v_lshl_add_u32 v14, v13, 4, v14")
    a(f"v_add_u32 v14, {s(T0+3)}, v14")
    KD = 16
    for i in range(16):
        a(f"v_mov_b32 {v(KD+i)}, 0")
    a("s_waitcnt vmcnt(0)")
    stamp(1)
    a("v_lshlrev_b32 v10, 16, v10")
    a(f"v_mul_f32 v10, {f32(LOG2E)}, v10")
    a("v_exp_f32 v10, v10")
    a("v_cvt_pk_bf16_f32 v10, v10, v10")
    a("v_lshlrev_b32 v10, 16, v10")
    a(f"s_mov_b32 {s(T0+4)}, 0")
    a("L_kround:")
    U0 = 32
    for i in range(6):
        a(f"v_lshlrev_b32 {v(U0+i)}, 16, v{PR+i}")
    for i in range(6):
        a(f"v_lshrrev_b32 v{PR+i}, 16, v{PR+i}")
    a(f"v_mul_f32 {v(U0)}, v10, {v(U0)}")
    a(f"v_mul_f32 {v(U0+1)}, v10, {v(U0+1)}")
    a(f"v_mul_f32 {v(U0+2)}, v10, {v(U0+2)}")
    a(f"v_mul_f32 {v(U0+3)}, v10, {v(U0+3)}")
    a(f"v_mul_f32 {v(U0)}, {f32(LOG2E)}, {v(U0)}")
    a(f"v_mul_f32 {v(U0+1)}, 0.15915494, {v(U0+1)}")
    Z1, Z8, Z256 = 38, 40, 42
    TT = 44

    def cmul(r, x, y):
        a(f"v_pk_mul_f32 {v(r,2)}, {v(x,2)}, {v(y,2)} op_sel:[0,0] op_sel_hi:[0,1]")
        a(f"v_pk_fma_f32 {v(r,2)}, {v(x,2)}, {v(y,2)}, {v(r,2)} op_sel:[1,1,0] op_sel_hi:[1,0,1] neg_lo:[0,1,0]")

    for z, pw in ((Z1, 1.0), (Z8, 8.0), (Z256, 256.0)):
        a(f"v_mul_f32 {v(TT)}, {f32(pw)}, {v(U0)}")
        a(f"v_mul_f32 {v(TT+1)}, {f32(pw)}, {v(U0+1)}")
        a(f"v_exp_f32 {v(TT)}, {v(TT)}")
        a(f"v_fract_f32 {v(TT+1)}, {v(TT+1)}")
        a(f"v_cos_f32 {v(z)}, {v(TT+1)}")
        a(f"v_sin_f32 {v(z+1)}, {v(TT+1)}")
        a(f"v_mul_f32 {v(z)}, {v(TT)}, {v(z)}")
        a(f"v_mul_f32 {v(z+1)}, {v(TT)}, {v(z+1)}")
    H, G1, G2, LO, CV = 46, 64, 74, 84, 88
    cvn = [0]

    def put(row, r, neg):
        t = CV + (cvn[0] % 8)
        cvn[0] += 1
        a(f"v_cvt_pk_bf16_f32 {v(t)}, {v(r)}, {'-' if neg else ''}{v(r+1)}")
        rows = row if isinstance(row, (list, tuple)) else [row]
        for rw in rows:
            a(f"ds_write_b32 v11, {v(t)} offset:{rw*272}")

    def mrow(r, h):
        return (r % 4) + 4 * h + 8 * (r // 4)

    hi_ops = []
    hi_ops.append(lambda: (cmul(H, U0 + 4, U0 + 2), put(mrow(0, 0), H, True)))
    for e in range(1, 9):
        if e < 8:
            hi_ops.append(lambda e=e: (cmul(H + 2 * e, H + 2 * e - 2, Z1), put(mrow(e, 0), H + 2 * e, True)))
        else:
            hi_ops.append(lambda e=e: cmul(H + 2 * e, H + 2 * e - 2, Z1))
    s1rows = {0: [0, 1], 2: [2], 4: [3, 4, 5], 6: [6], 8: [7]}
    for n, e in enumerate((0, 2, 4, 6, 8)):
        hi_ops.append(lambda n=n, e=e: (cmul(G1 + 2 * n, H + 2 * e, Z256), put([mrow(r, 1) for r in s1rows[e]], G1 + 2 * n, True)))
    for n, src in enumerate((0, 2, 4)):
        hi_ops.append(lambda n=n, src=src: (cmul(G2 + 2 * n, G1 + 2 * src, Z256), put(mrow(8 + n, 0), G2 + 2 * n, True)))
    for n in range(3):
        hi_ops.append(lambda n=n: (cmul(G1 + 2 * n, G2 + 2 * n, Z256), put(mrow(8 + n, 1), G1 + 2 * n, True)))
    for n, src in enumerate((0, 2)):
        hi_ops.append(lambda n=n, src=src: (cmul(G2 + 2 * n, G1 + 2 * src, Z256), put(mrow(11 + n, 0), G2 + 2 * n, True)))
    for n in range(2):
        hi_ops.append(lambda n=n: (cmul(G1 + 2 * n, G2 + 2 * n, Z256), put(mrow(11 + n, 1), G1 + 2 * n, True)))
    for n in range(2):
        hi_ops.append(lambda n=n: (cmul(G2 + 2 * n, G1 + 2 * n, Z256), put(mrow(13 + n, 0), G2 + 2 * n, True)))
    for n in range(2):
        hi_ops.append(lambda n=n: (cmul(G1 + 2 * n, G2 + 2 * n, Z256), put(mrow(13 + n, 1), G1 + 2 * n, True)))
    lo_ops = []

    def lo0():
        a(f"v_mov_b32 {v(CV)}, 0x3f80")
        a(f"ds_write_b32 v11, {v(CV)} offset:{32*272}")
        cvn[0] = 1
        put(33, Z8, False)
    lo_ops.append(lo0)
    for j in range(2, 32):
        src = Z8 if j == 2 else LO + 2 * ((j - 1) & 1)
        lo_ops.append(lambda j=j, src=src: (cmul(LO + 2 * (j & 1), src, Z8), put(32 + j, LO + 2 * (j & 1), False)))
    for i in range(max(len(hi_ops), len(lo_ops))):
        if i < len(lo_ops):
            lo_ops[i]()
        if i < len(hi_ops):
            hi_ops[i]()
    stamp(13)
    FR = 96
    for ks in range(8):
        b = FR + 8 * ks
        a(f"ds_read_b128 {v(b,4)}, v14 offset:{32*ks}")
        a(f"ds_read_b128 {v(b+4,4)}, v14 offset:{32*272+32*ks}")
    for ks in range(8):
        a(f"s_waitcnt lgkmcnt({2*(7-ks)})")
        bb = FR + 8 * ks
        a(f"v_mfma_f32_32x32x16_bf16 {v(KD,16)}, {v(bb,4)}, {v(bb+4,4)}, {v(KD,16)}")
    a(f"s_add_u32 {s(T0+4)}, {s(T0+4)}, 1")
    a(f"s_cmp_lt_u32 {s(T0+4)}, 2")
    a("s_cbranch_scc1 L_kround")
    stamp(14)
    E = 32
    a("v_lshlrev_b32 v2, 4, v12")
    a("v_lshl_add_u32 v2, v13, 9, v2")
    a(f"v_add_u32 v2, {s(T0+3)}, v2")
    a("v_and_b32 v3, 1, v12")
    a("v_cmp_eq_u32 vcc, 1, v3")
    for i in range(4):
        a(f"v_mov_b32 {v(E+16+i)}, 0")
    for i in range(4):
        a(f"v_cvt_pk_bf16_f32 {v(E+i)}, {v(KD+2*i)}, {v(KD+2*i+1)}")
    a(f"ds_write_b128 v2, {v(E,4)} offset:32")
    a(f"v_cvt_pk_bf16_f32 {v(E+4)}, {v(KD+8)}, {v(KD+8)}")
    a(f"v_cvt_pk_bf16_f32 {v(E+5)}, {v(KD+8)}, {v(KD+9)}")
    a(f"v_cvt_pk_bf16_f32 {v(E+6)}, {v(KD+9)}, {v(KD+9)}")
    a(f"v_cvt_pk_bf16_f32 {v(E+7)}, {v(KD+10)}, {v(KD+10)}")
    a(f"ds_write_b128 v2, {v(E+4,4)} offset:{32+1024}")
    for n, r0 in enumerate((11, 13)):
        b = E + 8 + 4 * n
        a(f"v_cndmask_b32 v3, {v(KD+r0)}, {v(KD+r0+1)}, vcc")
        a(f"v_cvt_pk_bf16_f32 {v(b)}, {v(KD+r0)}, {v(KD+r0)}")
        a(f"v_mov_b32 {v(b+1)}, {v(b)}")
        a(f"v_cvt_pk_bf16_f32 {v(b+2)}, v3, {v(KD+r0+1)}")
        a(f"v_cvt_pk_bf16_f32 {v(b+3)}, {v(KD+r0+1)}, {v(KD+r0+1)}")
        a(f"ds_write_b128 v2, {v(b,4)} offset:{32+2048+1024*n}")
    a(f"v_mov_b32 v3, {s(T0+3)}")
    a("s_mov_b64 exec, 1")
    a(f"ds_write_b128 v3, {v(E+16,4)}")
    a(f"ds_write_b128 v3, {v(E+16,4)} offset:16")
    for c in range(1, 4):
        a(f"ds_write_b128 v3, {v(E+16,4)} offset:{CST*c}")
    a("s_mov_b64 exec, -1")
    a(f"v_lshlrev_b32 v2, 4, {v(vL)}")
    a(f"v_add_u32 v2, {s(T0+3)}, v2")
    goffs = (1, 65, 129, 193, 194)
    D0 = 56
    for n, go in enumerate(goffs):
        a(f"ds_read_b128 {v(D0+6*n,4)}, v2 offset:{16*go}")
        a(f"ds_read_b64 {v(D0+6*n+4,2)}, v2 offset:{16*go+16}")
    for n, go in enumerate(goffs):
        d = D0 + 6 * n
        t = 96 + 12 * n
        a(f"s_waitcnt lgkmcnt({min(15, 2*(4-n) + 3*n)})")
        for i in range(4):
            a(f"v_alignbit_b32 {v(t+i)}, {v(d+i+1)}, {v(d+i)}, 16")
        for i in range(4):
            a(f"v_mov_b32 {v(t+4+i)}, {v(d+1+i)}")
        for i in range(4):
            a(f"v_alignbit_b32 {v(t+8+i)}, {v(d+i+2)}, {v(d+i+1)}, 16")
        for c in range(1, 4):
            a(f"ds_write_b128 v2, {v(t+4*(c-1),4)} offset:{CST*c+16*go}")
    stamp(2)
    lds_wait(F_RDY, opts.get("urdy", 3), 2, T0)

    a("L_ssm:")
    stamp(7)
    UR = 160
    sS = T0 + 10
    a(f"s_sub_u32 {s(sS)}, {s(sWV)}, 4")
    a("v_subrev_u32 v2, 256, v0")
    a("v_mul_u32_u24 v2, 1152, v2")
    a(f"s_lshl_b32 {s(T0)}, {s(sCH0)}, 1")
    a(f"s_lshl_b32 {s(T0+1)}, {s(sCHS)}, 1")
    a(f"v_add_u32 v3, {s(T0+1)}, v2")
    a(f"v_add_u32 v2, {s(T0)}, v2")
    a(f"v_mov_b32 v4, {s(T0)}")
    a(f"v_mov_b32 v5, {s(T0+1)}")
    a(f"global_load_dword v149, v4, {s(pDSK,2)}")
    a(f"global_load_ushort v150, v5, {s(pDSK,2)}")
    a(f"s_mov_b64 {s(T0+2,2)}, {s(pU,2)}")
    for r in range(8):
        a(f"global_load_dword {v(UR+r)}, v2, {s(T0+2,2)}")
        a(f"global_load_ushort {v(UR+8+r)}, v3, {s(T0+2,2)}")
        if r < 7:
            a(f"s_add_u32 {s(T0+2)}, {s(T0+2)}, {256*1152}")
            a(f"s_addc_u32 {s(T0+3)}, {s(T0+3)}, 0")
    a(f"s_lshr_b32 {s(T0+5)}, s2, 3")
    a(f"s_mul_i32 {s(T0+5)}, {s(T0+5)}, 20736")
    a(f"s_mul_i32 {s(T0+4)}, {s(sS)}, 5248")
    a(f"s_add_u32 {s(T0+4)}, {s(T0+4)}, {s(T0+5)}")
    a(f"v_min_u32 v3, 38, {v(vL)}")
    a("v_lshlrev_b32 v3, 7, v3")
    a(f"v_add_u32 v3, {s(T0+4)}, v3")
    a(f"global_load_dword v151, v3, {s(pWO,2)}")
    stamp(18)
    a(f"s_cmp_lg_u32 {s(sWV)}, 7")
    a("s_cbranch_scc1 L_s1")
    lds_wait4(F_CONS, 1, 2)
    chunk_dma(5)
    a("L_s1:")
    a("v_sub_u32 v2, 511, v0")
    a("v_lshlrev_b32 v2, 1, v2")
    a(f"v_add_u32 v2, {UI}, v2")
    a(f"s_mul_i32 {s(T0)}, {s(sS)}, {U_SZ}")
    a(f"s_min_u32 {s(T0)}, {s(T0)}, {2*U_SZ}")
    a(f"s_add_u32 {s(T0)}, {s(T0)}, {UI+4096}")
    a(f"v_lshlrev_b32 v3, 3, {v(vL)}")
    a(f"v_add_u32 v3, {s(T0)}, v3")
    a("v_mov_b32 v4, 0")
    a("v_mov_b32 v5, 0")
    a("ds_write_b64 v3, v[4:5]")
    a(f"v_and_b32 v6, 15, {v(vL)}")
    a(f"v_lshrrev_b32 v7, 4, {v(vL)}")
    a("v_add_u32 v8, 1, v6")
    a("v_and_b32 v9, 3, v8")
    a("v_sub_u32 v8, v8, v9")
    a("v_lshlrev_b32 v8, 1, v8")
    a(f"s_movk_i32 {s(T0)}, {CST}")
    a(f"v_mad_u32_u24 v8, v9, {s(T0)}, v8")
    a("v_lshl_add_u32 v8, v7, 4, v8")
    a("v_lshlrev_b32 v9, 5, v6")
    a(f"v_sub_u32 v9, {UI+480}, v9")
    a("v_lshl_add_u32 v9, v7, 4, v9")
    a(f"s_lshr_b32 {s(T0)}, {s(sS)}, 1")
    a(f"s_and_b32 {s(T0+1)}, {s(sS)}, 1")
    a(f"s_lshl_b32 {s(T0+1)}, {s(T0+1)}, 8")
    a(f"s_mul_i32 {s(T0+2)}, {s(T0)}, {S_SZ}")
    a(f"s_add_u32 {s(T0+2)}, {s(T0+2)}, {s(T0+1)}")
    a(f"v_add_u32 v10, {s(T0+2)}, v8")
    a(f"s_mul_i32 {s(T0+2)}, {s(T0)}, {U_SZ}")
    a(f"s_add_u32 {s(T0+2)}, {s(T0+2)}, {s(T0+1)}")
    a(f"v_add_u32 v11, {s(T0+2)}, v9")
    a(f"s_lshl_b32 {s(T0+1)}, {s(sS)}, 7")
    a(f"s_add_u32 {s(T0+2)}, {s(T0+1)}, {2*S_SZ}")
    a(f"v_add_u32 v12, {s(T0+2)}, v8")
    a(f"s_add_u32 {s(T0+2)}, {s(T0+1)}, {2*U_SZ}")
    a(f"v_add_u32 v13, {s(T0+2)}, v9")
    CA, CBf, CC, CS = 16, 48, 80, 112
    for i in range(40):
        a(f"v_mov_b32 {v(CC+i)}, 0")
    a("s_waitcnt vmcnt(0)")
    stamp(19)
    a(f"s_cmp_lg_u32 {s(sWV)}, 7")
    a("s_cbranch_scc1 L_s2")
    a(f"v_mov_b32 v4, {F_RDY}")
    a(f"v_mov_b32 v5, 6")
    a("ds_write_b32 v4, v5")
    a("L_s2:")
    for r in range(8):
        a(f"ds_write_b16 v2, {v(UR+r)} offset:{512*(7-r)}")
        a(f"ds_write_b16_d16_hi v2, {v(UR+r)} offset:{U_SZ+512*(7-r)}")
        a(f"ds_write_b16 v2, {v(UR+8+r)} offset:{2*U_SZ+512*(7-r)}")
    lds_add(F_U, 2)
    lds_wait(F_U, 4, 2, T0)
    stamp(20)
    a(f"s_mov_b32 {s(T0+1)}, 4")
    a("L_cl:")

    def conv_block(va, vb, off, kmax, pairs):
        LOOK = 4
        for k in range(kmax + 1 + LOOK):
            if k <= kmax:
                a(f"ds_read_b128 {v(CBf+4*k,4)}, v{vb} offset:{off+512*(7-k)}")
                a(f"ds_read_b64 {v(CA+4*k,2)}, v{va} offset:{off+512*k}")
                a(f"ds_read_b64 {v(CA+4*k+2,2)}, v{va} offset:{off+512*k+8}")
            kk = k - LOOK
            if kk >= 0:
                todo = [p for p in pairs if max(p[1], p[2]) == kk]
                if todo:
                    a(f"s_waitcnt lgkmcnt({3*(min(k, kmax)-kk)})")
                for acc, aa, jj_ in todo:
                    a(f"v_mfma_f32_16x16x32_bf16 {v(acc,4)}, {v(CA+4*aa,4)}, {v(CBf+4*jj_,4)}, {v(acc,4)}")

    conv_block(10, 11, 0, 7, [(CC + 4 * (x + y), x, y) for x in range(8) for y in range(8 - x)])
    a("v_add_u32 v10, 64, v10")
    a("v_add_u32 v11, 64, v11")
    a(f"s_sub_u32 {s(T0+1)}, {s(T0+1)}, 1")
    a(f"s_cmp_lg_u32 {s(T0+1)}, 0")
    a("s_cbranch_scc1 L_cl")
    stamp(21)
    a(f"s_mov_b32 {s(T0+1)}, 2")
    for jj in range(4):
        if jj < 3:
            a(f"s_cmp_lg_u32 {s(sJJ)}, {jj}")
            a(f"s_cbranch_scc1 L_cs{jj+1}")
        i1, i2 = jj, 7 - jj
        pairs = [(CS + 4, x, i2 - x) for x in range(i2 + 1)] + [(CS, x, i1 - x) for x in range(i1 + 1)]
        a(f"L_csl{jj}:")
        conv_block(12, 13, 0, i2, pairs)
        a("v_add_u32 v12, 64, v12")
        a("v_add_u32 v13, 64, v13")
        a(f"s_sub_u32 {s(T0+1)}, {s(T0+1)}, 1")
        a(f"s_cmp_lg_u32 {s(T0+1)}, 0")
        a(f"s_cbranch_scc1 L_csl{jj}")
        if jj < 3:
            a("s_branch L_csd")
            a(f"L_cs{jj+1}:")
    a("L_csd:")
    stamp(22)
    lds_add(F_C1, 14)
    a(f"v_lshlrev_b32 v2, 4, {v(vL)}")
    a(f"s_lshl_b32 {s(T0)}, {s(sS)}, 13")
    a(f"s_add_u32 {s(T0)}, {s(T0)}, {CB}")
    a(f"v_add_u32 v3, {s(T0)}, v2")
    a(f"s_lshl_b32 {s(T0)}, {s(sS)}, 11")
    a(f"s_add_u32 {s(T0+1)}, {s(T0)}, {CB+32768}")
    a(f"v_add_u32 v4, {s(T0+1)}, v2")
    a(f"s_add_u32 {s(T0+1)}, {s(T0)}, {CB}")
    a(f"v_add_u32 v5, {s(T0+1)}, v2")
    lds_wait(F_C1, 4, 14, T0)
    for i in range(8):
        a(f"ds_write_b128 v3, {v(CC+4*i,4)} offset:{1024*i}")
    for i in range(2):
        a(f"ds_write_b128 v4, {v(CS+4*i,4)} offset:{1024*i}")
    lds_add(F_C2, 14)
    a(f"s_lshr_b32 {s(T0)}, {s(sS)}, 1")
    a(f"s_and_b32 {s(T0+1)}, {s(sS)}, 1")
    a(f"s_lshl_b32 {s(T0+2)}, {s(T0)}, 10")
    a(f"s_lshl_b32 {s(T0+3)}, {s(T0+1)}, 3")
    a(f"s_add_u32 {s(T0+2)}, {s(T0+2)}, {s(T0+3)}")
    a(f"s_add_u32 {s(T0+2)}, {s(T0+2)}, {CB+32768}")
    a(f"v_add_u32 v4, {s(T0+2)}, v2")
    a("v_lshlrev_b32 v8, 5, v6")
    a("v_lshl_add_u32 v8, v7, 3, v8")
    a(f"s_lshl_b32 {s(T0+2)}, {s(sS)}, 10")
    a(f"s_sub_u32 {s(T0+2)}, {UI+4088-512}, {s(T0+2)}")
    a(f"v_sub_u32 v9, {s(T0+2)}, v8")
    a(f"s_sub_u32 {s(T0+2)}, 7, {s(sJJ)}")
    a(f"s_cmp_eq_u32 {s(T0)}, 0")
    a(f"s_cselect_b32 {s(T0+4)}, {s(sJJ)}, {s(T0+2)}")
    a(f"s_lshl_b32 {s(T0+2)}, {s(T0+4)}, 9")
    a(f"s_lshl_b32 {s(T0+3)}, {s(T0+1)}, 2")
    a(f"s_add_u32 {s(T0+2)}, {s(T0+2)}, {s(T0+3)}")
    a(f"s_sub_u32 {s(T0+2)}, {UI+2*U_SZ+4092}, {s(T0+2)}")
    a(f"v_sub_u32 v10, {s(T0+2)}, v8")
    a(f"s_movk_i32 {s(T0+2)}, 1152")
    a(f"v_mul_lo_u32 v11, v8, {s(T0+2)}")
    srd(SRA, pOUT, 2048 * 2304)
    a(f"s_mul_i32 {s(T0+5)}, {s(sS)}, {512*2304}")
    a(f"s_lshl_b32 {s(T0+2)}, {s(sCH0)}, 1")
    a(f"s_add_u32 {s(T0+5)}, {s(T0+5)}, {s(T0+2)}")
    a(f"s_add_u32 {s(T0+5)}, {s(T0+5)}, 1152")
    a(f"s_mul_i32 {s(T0+6)}, {s(T0+4)}, {256*2304}")
    a(f"s_mul_i32 {s(T0+2)}, {s(T0+1)}, {2*2304}")
    a(f"s_add_u32 {s(T0+6)}, {s(T0+6)}, {s(T0+2)}")
    a(f"s_lshl_b32 {s(T0+2)}, {s(sCHS)}, 1")
    a(f"s_add_u32 {s(T0+6)}, {s(T0+6)}, {s(T0+2)}")
    a(f"s_add_u32 {s(T0+6)}, {s(T0+6)}, 1152")
    a("v_lshlrev_b32 v12, 16, v149")
    a("v_and_b32 v13, 0xffff0000, v149")
    a("v_lshlrev_b32 v150, 16, v150")
    lds_wait(F_C2, 4, 14, T0)
    Y, UU, YS = 16, 48, 56
    for tl in range(2):
        for src in range(4):
            a(f"ds_read_b128 {v(Y+16*tl+4*src,4)}, v5 offset:{8192*src+1024*tl}")
    for tl in range(2):
        for ch in range(2):
            a(f"ds_read_b64 {v(UU+4*tl+2*ch,2)}, v9 offset:{U_SZ*ch+512*(1-tl)}")
    for src in range(4):
        a(f"ds_read_b64 {v(YS+2*src,2)}, v4 offset:{2048*src}")
    a("ds_read_b32 v64, v10")
    lds_add(F_C1, 14)
    a("s_waitcnt lgkmcnt(0)")
    for tl in range(2):
        for ch in range(2):
            y = Y + 16 * tl + 8 * ch
            a(f"v_pk_add_f32 {v(y,2)}, {v(y,2)}, {v(y+4,2)}")
            a(f"v_pk_add_f32 {v(y+2,2)}, {v(y+2,2)}, {v(y+6,2)}")
            u_ = UU + 4 * tl + 2 * ch
            a(f"v_and_b32 {v(y+4)}, 0xffff0000, {v(u_+1)}")
            a(f"v_lshlrev_b32 {v(y+5)}, 16, {v(u_+1)}")
            a(f"v_and_b32 {v(y+6)}, 0xffff0000, {v(u_)}")
            a(f"v_lshlrev_b32 {v(y+7)}, 16, {v(u_)}")
            for r in range(4):
                a(f"v_fmac_f32 {v(y+r)}, {v(y+4+r)}, v{12+ch}")
        for r in range(4):
            y = Y + 16 * tl
            a(f"v_cvt_pk_bf16_f32 {v(130+4*tl+r)}, {v(y+r)}, {v(y+8+r)}")
    a(f"v_pk_add_f32 {v(YS,2)}, {v(YS,2)}, {v(YS+2,2)}")
    a(f"v_pk_add_f32 {v(YS+4,2)}, {v(YS+4,2)}, {v(YS+6,2)}")
    a(f"v_pk_add_f32 {v(YS,2)}, {v(YS,2)}, {v(YS+4,2)}")
    a(f"v_and_b32 v65, 0xffff0000, v64")
    a(f"v_lshlrev_b32 v64, 16, v64")
    a(f"v_fmac_f32 {v(YS)}, v65, v150")
    a(f"v_fmac_f32 {v(YS+1)}, v64, v150")
    a(f"v_cvt_pk_bf16_f32 v138, {v(YS)}, {v(YS+1)}")
    stamp(23)
    a(f"s_cmp_lg_u32 {s(sWV)}, 7")
    a("s_cbranch_scc1 L_s3")
    a(f"v_lshlrev_b32 v14, 4, {v(vL)}")
    lds_wait4(F_CONS, 3, 2)
    chunk_dma(6)
    lds_wait4(F_CONS, 4, 2)
    chunk_dma(7)
    a("s_waitcnt vmcnt(19)")
    set_rdy(7)
    a("s_waitcnt vmcnt(0)")
    set_rdy(8)
    a("L_s3:")
    for tl in range(2):
        for r in range(4):
            a(f"s_add_u32 {s(T0+2)}, {s(T0+5)}, {(256*tl+r)*2304}")
            a(f"buffer_store_dword {v(130+4*tl+r)}, v11, {s(SRA,4)}, {s(T0+2)} offen")
    a(f"buffer_store_short v138, v11, {s(SRA,4)}, {s(T0+6)} offen")
    a(f"buffer_store_short_d16_hi v138, v11, {s(SRA,4)}, {s(T0+6)} offen offset:2304")
    stamp(8)

    lds_wait(F_C1, 8, 2, T0)
    lds_wait4(F_CONS, 2, 2)
    srd(SRB, pWO, 576 * 1152)
    w_dma(SRB, WO_M, WO_X, True, sS)
    proj_setup(ACC, WO_M, WO_X)
    a(f"v_and_b32 v2, 15, {v(vL)}")
    a(f"v_lshrrev_b32 v3, 4, {v(vL)}")
    a(f"v_mul_u32_u24 v2, 160, v2")
    a("v_lshl_add_u32 v2, v3, 3, v2")
    a(f"s_mul_i32 {s(T0)}, {s(sS)}, 2560")
    a(f"s_add_u32 {s(T0)}, {s(T0)}, {OT}")
    a(f"v_add_u32 v249, {s(T0)}, v2")
    for i in range(3):
        a(f"v_add_u32 v4, {64*i}, {v(vL)}")
        a("v_mul_u32_u24 v5, 7282, v4")
        a("v_lshrrev_b32 v5, 16, v5")
        a("v_mul_u32_u24 v6, 9, v5")
        a("v_sub_u32 v6, v4, v6")
        a("v_lshlrev_b32 v6, 4, v6")
        a(f"v_mul_u32_u24 v7, 160, v5")
        a(f"v_add3_u32 v{8+i}, v7, v6, {s(T0)}")
        a(f"v_mul_u32_u24 v7, 2304, v5")
        a(f"v_add_u32 v{11+i}, v7, v6")
    a(f"s_lshl_b32 {s(T0)}, {s(sQB)}, 2")
    a(f"s_add_u32 {s(T0)}, {s(T0)}, {s(sS)}")
    a(f"s_mul_i32 {s(T0+8)}, {s(T0)}, {16*2304}")
    a(f"s_mul_i32 {s(T0+1)}, {s(sG)}, 144")
    a(f"s_add_u32 {s(T0+8)}, {s(T0+8)}, {s(T0+1)}")
    a(f"s_mul_i32 {s(T0)}, {s(T0)}, 18432")
    a(f"s_add_u32 {s(T0)}, {s(T0)}, {WS_O}")
    a(f"v_lshlrev_b32 v14, 4, {v(vL)}")
    a(f"v_add_u32 v14, {s(T0)}, v14")
    a(f"v_bfe_u32 v3, {v(vL)}, 1, 3")
    a("v_lshlrev_b32 v3, 7, v3")
    a(f"v_and_b32 v4, 1, {v(vL)}")
    a("v_lshl_add_u32 v3, v4, 2, v3")
    a(f"s_lshl_b32 {s(T0)}, {s(sQB)}, 10")
    a(f"s_and_b32 {s(T0+1)}, {s(sS)}, 2")
    a(f"s_lshl_b32 {s(T0+1)}, {s(T0+1)}, 2")
    a(f"s_add_u32 {s(T0)}, {s(T0)}, {s(T0+1)}")
    a(f"s_add_u32 {s(T0)}, {s(T0)}, {WS_FO}")
    a(f"v_add_u32 v15, {s(T0)}, v3")
    a("s_waitcnt vmcnt(0)")
    lds_add(F_WO, 2)
    lds_wait(F_WO, 4, 2, T0)
    stamp(24)
    NST = 32

    def wf(st_):
        if st_ == -1:
            lds_wait4(F_CONS, 8, 2)
            stamp(25)
            poll(15, 2, "L_pollo")
            stamp(26)
            for k in range(18):
                a(f"global_load_dwordx4 {v(XF+4*k,4)}, v14, {s(pWS,2)} offset:{1024*(k%4)} sc1")
                if k % 4 == 3:
                    a("v_add_u32 v14, 4096, v14")
        else:
            a(f"s_waitcnt vmcnt({17-st_})")
    proj_run(XF, ACC, ST, NST, NST - 1, wf)
    stamp(27)
    for ct in range(5):
        b = ACC + 4 * ct
        a(f"v_cvt_pk_bf16_f32 {v(b)}, {v(b)}, {v(b+1)}")
        a(f"v_cvt_pk_bf16_f32 {v(b+1)}, {v(b+2)}, {v(b+3)}")
        a(f"ds_write_b64 v249, {v(b,2)} offset:{32*ct}")
    for i in range(3):
        a(f"ds_read_b128 {v(16+4*i,4)}, v{8+i}")
    for i in range(3):
        a(f"s_waitcnt lgkmcnt({2-i})")
        if i == 2:
            a("s_mov_b64 exec, 0xffff")
        a(f"buffer_store_dwordx4 {v(16+4*i,4)}, v{11+i}, {s(SRA,4)}, {s(T0+8)} offen")
    a("s_mov_b64 exec, -1")
    a(f"s_cmp_lg_u32 s2, 0")
    a("s_cbranch_scc1 L_fin")
    a(f"s_cmp_lg_u32 {s(sWV)}, 7")
    a("s_cbranch_scc1 L_fin")
    a("v_mov_b32 v4, 0")
    a(f"v_mov_b32 v5, {s(sTAG)}")
    a("s_mov_b64 exec, 1")
    a(f"global_store_dword v4, v5, {s(pWS,2)}")
    a("s_mov_b64 exec, -1")
    a("L_fin:")
    if probe is not None:
        a("s_waitcnt vmcnt(0)")
        stamp(10)
        a("s_sub_u32 s98, s98, s96")
        a("s_lshl_b32 s98, s98, 2")
        a("s_add_u32 s98, s98, 6000")
        a("L_probe:")
        a("s_sleep 4")
        a("s_memrealtime s[94:95]")
        a("s_waitcnt lgkmcnt(0)")
        a("s_sub_u32 s94, s94, s96")
        a("s_cmp_lt_u32 s94, s98")
        a("s_cbranch_scc1 L_probe")
    if stamps:
        a("s_waitcnt vmcnt(0)")
        stamp(10)
        a(f"s_lshl_b32 {s(T0)}, s2, 11")
        a(f"s_add_u32 {s(T0)}, {s(T0)}, {WS_DBG}")
        a(f"v_lshlrev_b32 v4, 2, v0")
        a(f"v_add_u32 v4, {s(T0)}, v4")
        a(f"global_store_dword v4, v255, {s(pWS,2)}")
    a("L_exit:")
    a("s_endpgm")

    lines, nins = fix_hazards(a.L, verbose=opts.get("verbose", False))
    hdr = [ln.rstrip("\n") for ln in open(REF) if ln.startswith(";") and "@launch" not in ln]
    txt = "\n".join(hdr) + f"\n; @launch grid=(256,1,1) block=(512,1,1) lds={LDS_TOTAL}\n"
    txt += '.amdgcn_target "amdgcn-amd-amdhsa--gfx950"\n.text\n'
    txt += f".globl {kname}\n.p2align 8\n.type {kname},@function\n"
    txt += "\n".join(lines) + "\n"
    txt += f""".section .rodata,"a"
.p2align 6
.amdhsa_kernel {kname}
  .amdhsa_next_free_vgpr 256
  .amdhsa_next_free_sgpr 102
  .amdhsa_accum_offset 256
  .amdhsa_group_segment_fixed_size 0
  .amdhsa_kernarg_size 136
  .amdhsa_user_sgpr_count 2
  .amdhsa_user_sgpr_kernarg_segment_ptr 1
  .amdhsa_system_sgpr_workgroup_id_x 1
.end_amdhsa_kernel
"""
    size = text_size(txt.replace("CODE_END_OFF", "0x12345"))
    txt = txt.replace("CODE_END_OFF", str((size - 256) & ~3))
    print("code bytes", size)
    return txt, nins


if __name__ == "__main__":
    out = sys.argv[1] if len(sys.argv) > 1 else f"cdna_kernels/{NAME}.s"
    opts = {}
    for x in sys.argv[2:]:
        k, _, val = x.partition("=")
        opts[k] = int(val) if val else 1
    txt, n = gen(opts)
    open(out, "w").write(txt)
    print("wrote", out, "bytes", len(txt), "nop states inserted", n)
```

```python
import sys, os, math, struct
sys.path.insert(0, os.path.dirname(os.path.abspath(__file__)))
from asmlib import *

NAME = "concat_heads__grouped_kv_mqa__ssm_conv_s4__prompt"
REF = f"cdna_kernels/{NAME}.s.ref"


def f32(x):
    return "0x%08x" % struct.unpack("<I", struct.pack("<f", x))[0]


LOG2E = 1.4426950408889634
QSCALE = LOG2E * (18 ** -0.5)

S_SZ = 17408
XW = 52224
WX = 125952
WK = 135424
QI = 135424
QST = 144
FL = 163584
UI = 52224
U_SZ = 4608
CB = 0
CH_SZ = 18944
SLOT0 = 68864
SLOTSEQ = [4, 0, 1, 2, 3, 4, 1, 2]
WO_M = 0
WO_X = 73728
OT = 125696
LDS_TOTAL = 163840
CST = 4160
F_WK, F_XP, F_KVD, F_WQ, F_QW, F_QD, F_RDY, F_U, F_C1, F_C2, F_WO = [FL + 4 * i for i in range(11)]
F_CONS = FL + 48

WS_FKV = 4096
WS_FO = 40960
WS_KV = 0x20000
WS_O = 0x50000
WS_DBG = 0x400000

sWV, sQB, sG, sCID, sTAG = 3, 4, 5, 6, 7
SRA, SRB = 8, 12
pX, pWQ, pWK, pWV, pWO, pU, pARE, pAIM, pBRE, pBIM, pCRE, pCIM, pLDT, pDSK, pOUT, pDBG, pWS = range(16, 50, 2)
sCH0, sCHS, sJJ, sXCD = 50, 51, 52, 53
T0 = 54

vL = 1


def gen(opts):
    a = Asm()
    stamps = opts.get("stamps", 0)
    SLP = opts.get("sleep", 1)

    probe = opts.get("probe", None)

    def stamp(i, dyn=None):
        if probe is not None:
            if i == 0:
                a("s_memrealtime s[96:97]")
                a("s_waitcnt lgkmcnt(0)")
                a("s_mov_b32 s98, s96")
            elif i == probe:
                a("s_memrealtime s[98:99]")
                a("s_waitcnt lgkmcnt(0)")
        if stamps:
            a("s_memrealtime s[100:101]")
            if dyn is not None:
                a(f"s_add_u32 s99, {s(dyn)}, {i}")
            a("s_waitcnt lgkmcnt(0)")
            if dyn is not None:
                a("s_mov_b32 m0, s99")
                a("v_writelane_b32 v255, s100, m0")
            else:
                a(f"v_writelane_b32 v255, s100, {i}")

    def lds_wait(addr, val, vt, st):
        lab = a.label("Lspin")
        a(f"v_mov_b32 {v(vt+1)}, {addr}")
        a(f"s_branch {lab}_e")
        a(f"{lab}:")
        a(f"s_sleep {SLP}")
        a(f"{lab}_e:")
        a(f"ds_read_b32 {v(vt)}, {v(vt+1)}")
        a("s_waitcnt lgkmcnt(0)")
        a(f"v_readfirstlane_b32 {s(st)}, {v(vt)}")
        a(f"s_cmp_lt_u32 {s(st)}, {val}")
        a(f"s_cbranch_scc1 {lab}")

    def lds_wait4(addr, val, vt):
        lab = a.label("Lspin")
        a(f"v_and_b32 {v(vt+1)}, 3, {v(vL)}")
        a(f"v_lshlrev_b32 {v(vt+1)}, 2, {v(vt+1)}")
        a(f"v_add_u32 {v(vt+1)}, {addr}, {v(vt+1)}")
        a(f"s_branch {lab}_e")
        a(f"{lab}:")
        a(f"s_sleep {4*SLP}")
        a(f"{lab}_e:")
        a(f"ds_read_b32 {v(vt)}, {v(vt+1)}")
        a("s_waitcnt lgkmcnt(0)")
        a(f"v_cmp_gt_u32 vcc, {val}, {v(vt)}")
        a(f"s_cbranch_vccnz {lab}")

    def lds_add(addr, vt):
        a(f"v_mov_b32 {v(vt)}, {addr}")
        a(f"v_mov_b32 {v(vt+1)}, 1")
        a("s_mov_b64 exec, 1")
        a(f"ds_add_u32 {v(vt)}, {v(vt+1)}")
        a("s_mov_b64 exec, -1")

    def srd(r, p, nbytes):
        a(f"s_mov_b32 {s(r)}, {s(p)}")
        a(f"s_and_b32 {s(r+1)}, {s(p+1)}, 0xffff")
        a(f"s_mov_b32 {s(r+2)}, {nbytes}")
        a(f"s_mov_b32 {s(r+3)}, 0x20000")

    def poll(vaddr, vt, lab, n=1, stride=0):
        a(f"s_mov_b32 {s(T0)}, 0")
        a(f"s_branch {lab}_e")
        a(f"{lab}:")
        a("s_sleep 2")
        a(f"{lab}_e:")
        for i in range(n):
            a(f"global_load_dword {v(vt+i)}, {v(vaddr+i)}, {s(pWS,2)} sc1")
        a(f"s_add_u32 {s(T0)}, {s(T0)}, 1")
        a("s_waitcnt vmcnt(0)")
        for i in range(n):
            a(f"v_xor_b32 {v(vt+i)}, {s(sTAG)}, {v(vt+i)}")
        for i in range(1, n):
            a(f"v_or_b32 {v(vt)}, {v(vt)}, {v(vt+i)}")
        a(f"v_cmp_ne_u32 vcc, 0, {v(vt)}")
        a(f"s_cmp_gt_u32 {s(T0)}, 0x100000")
        a(f"s_cbranch_scc1 {lab}_d")
        a(f"s_cbranch_vccnz {lab}")
        a(f"{lab}_d:")

    def mktag():
        a(f"s_mul_i32 {s(sTAG)}, {s(sTAG)}, 0x9E3779B1")
        a(f"s_add_u32 {s(sTAG)}, {s(sTAG)}, 0x632BE5AB")

    def w_dma(srdreg, ldsM, ldsX, permuted, sW):
        a(f"v_lshrrev_b32 v2, 3, {v(vL)}")
        a(f"v_and_b32 v3, 7, {v(vL)}")
        a("v_and_b32 v4, 2, v2")
        a("v_xor_b32 v3, v3, v4")
        a("v_lshlrev_b32 v3, 4, v3")
        a(f"s_movk_i32 {s(T0)}, 1152")
        a(f"v_mad_u32_u24 v5, v2, {s(T0)}, v3")
        a("v_xor_b32 v6, 64, v5")
        if permuted:
            a("v_lshrrev_b32 v7, 1, v2")
            a("v_mul_u32_u24 v7, 18, v7")
            a("v_and_b32 v8, 1, v2")
            a("v_add_u32 v7, v7, v8")
            a(f"v_mad_u32_u24 v7, v7, {s(T0)}, v3")
            a("v_xor_b32 v8, 64, v7")
        a(f"s_mul_i32 {s(T0+1)}, {s(sW)}, {144*1152}")
        a(f"s_mul_i32 {s(T0+2)}, {s(sG)}, 144")
        a(f"s_add_u32 {s(T0+1)}, {s(T0+1)}, {s(T0+2)}")
        a(f"s_mul_i32 {s(T0+3)}, {s(sW)}, 18432")
        a(f"s_add_u32 {s(T0+3)}, {s(T0+3)}, {ldsM}")
        a(f"s_mul_i32 {s(T0+4)}, {s(sW)}, 2304")
        a(f"s_add_u32 {s(T0+4)}, {s(T0+4)}, {ldsX}")
        if not permuted:
            lab = a.label("Lwd")
            a(f"v_mul_u32_u24 v9, 1152, {v(vL)}")
            a("v_add_u32 v9, 128, v9")
            a(f"s_mov_b32 {s(T0+2)}, 3")
            a(f"{lab}:")
            for jj in range(6):
                a(f"s_add_u32 m0, {s(T0+3)}, {1024*jj}")
                a(f"s_add_u32 {s(T0+5)}, {s(T0+1)}, {8*jj*1152}")
                a(f"buffer_load_dwordx4 v{5+(jj&1)}, {s(srdreg,4)}, {s(T0+5)} offen lds")
                if jj == 2:
                    a(f"s_mov_b32 m0, {s(T0+4)}")
                    a(f"s_add_u32 {s(T0+4)}, {s(T0+4)}, 768")
                    a(f"buffer_load_dwordx4 v9, {s(srdreg,4)}, {s(T0+1)} offen lds")
            a(f"s_add_u32 {s(T0+3)}, {s(T0+3)}, 6144")
            a(f"s_add_u32 {s(T0+1)}, {s(T0+1)}, {48*1152}")
            a(f"s_sub_u32 {s(T0+2)}, {s(T0+2)}, 1")
            a(f"s_cmp_lg_u32 {s(T0+2)}, 0")
            a(f"s_cbranch_scc1 {lab}")
            return
        for jj in range(18):
            gp, idx = divmod(jj, 9)
            if idx < 8:
                rowbase = 72 * gp + 18 * (idx >> 1) + 8 * (idx & 1)
                vr = 5 + (jj & 1)
            else:
                rowbase = 72 * gp + 16
                vr = 7 + (jj & 1)
            a(f"s_add_u32 m0, {s(T0+3)}, {1024*jj}")
            a(f"s_add_u32 {s(T0+5)}, {s(T0+1)}, {rowbase*1152}")
            a(f"buffer_load_dwordx4 v{vr}, {s(srdreg,4)}, {s(T0+5)} offen lds")
            if jj % 6 == 2:
                e = jj // 6
                a(f"v_add_u32 v9, {48*e}, {v(vL)}")
                a("v_mul_u32_u24 v10, 911, v9")
                a("v_lshrrev_b32 v10, 16, v10")
                a("v_mul_u32_u24 v10, 72, v10")
                a("v_sub_u32 v9, v9, v10")
                a("v_lshrrev_b32 v11, 4, v9")
                a("v_mul_u32_u24 v11, 18, v11")
                a("v_and_b32 v12, 15, v9")
                a("v_add_u32 v11, v11, v12")
                a("v_cmp_le_u32 vcc, 64, v9")
                a("v_lshrrev_b32 v13, 1, v12")
                a("v_mul_u32_u24 v13, 18, v13")
                a("v_and_b32 v12, 1, v9")
                a("v_add3_u32 v13, v13, v12, 16")
                a("v_cndmask_b32 v9, v11, v13, vcc")
                a("v_add_u32 v9, v9, v10")
                a(f"v_mul_u32_u24 v9, 1152, v9")
                a(f"s_add_u32 m0, {s(T0+4)}, {768*e}")
                a(f"s_add_u32 {s(T0+5)}, {s(T0+1)}, 128")
                a(f"buffer_load_dwordx4 v9, {s(srdreg,4)}, {s(T0+5)} offen lds")

    def proj_setup(ACC, ldsM, ldsX):
        a(f"v_lshrrev_b32 v2, 4, {v(vL)}")
        a(f"v_bfe_u32 v3, {v(vL)}, 2, 2")
        a(f"v_and_b32 v4, 3, {v(vL)}")
        a("v_lshl_add_u32 v5, v2, 3, v3")
        a("v_lshrrev_b32 v6, 1, v3")
        a("v_and_b32 v7, 1, v2")
        a("v_lshl_or_b32 v6, v7, 1, v6")
        a("v_lshlrev_b32 v7, 7, v5")
        a("v_lshl_add_u32 v7, v4, 3, v7")
        a(f"v_add_u32 v7, {ldsM}, v7")
        a("v_and_b32 v4, 1, v4")
        a("v_lshlrev_b32 v4, 3, v4")
        a("v_lshl_add_u32 v248, v5, 4, v4")
        a(f"v_add_u32 v248, {ldsX}, v248")
        for ct in range(4):
            a(f"v_xor_b32 v2, {ct}, v6")
            a(f"v_lshl_add_u32 v{240+ct}, v2, 5, v7")
            a(f"v_add_u32 v{244+ct}, {4096*9}, v{240+ct}")
        for i in range(20):
            a(f"v_mov_b32 {v(ACC+i)}, 0")

    def proj_run(XF, ACC, ST, NST, pre, wait_fn):
        def rd(f):
            st_, ct = divmod(f, 5)
            b = ST + 4 * (f % NST)
            if ct < 4:
                ar = (240 if st_ < 9 else 244) + ct
                off = 4096 * (st_ % 9)
                return [f"ds_read_b64_tr_b16 {v(b,2)}, v{ar} offset:{off}",
                        f"ds_read_b64_tr_b16 {v(b+2,2)}, v{ar} offset:{off+512}"]
            return [f"ds_read_b64_tr_b16 {v(b,2)}, v248 offset:{512*st_}",
                    f"ds_read_b64_tr_b16 {v(b+2,2)}, v248 offset:{512*st_+64}"]
        for f in range(pre):
            for x in rd(f):
                a(x)
        wait_fn(-1)
        for f in range(90):
            st_, ct = divmod(f, 5)
            out = min(pre - 1, 89 - f)
            if ct == 0:
                wait_fn(st_)
            a(f"s_waitcnt lgkmcnt({min(15, 2*out)})")
            b = ST + 4 * (f % NST)
            a(f"v_mfma_f32_16x16x32_bf16 {v(ACC+4*ct,4)}, {v(b,4)}, {v(XF+4*st_,4)}, {v(ACC+4*ct,4)}")
            if f + pre < 90:
                for x in rd(f + pre):
                    a(x)

    kname = NAME + "_kernel"
    a(f"{kname}:")
    if stamps:
        a("v_mov_b32 v255, 0")
    stamp(0)
    a("s_cmp_ge_u32 s2, 256")
    a("s_cbranch_scc1 L_exit")
    a("s_load_dwordx16 s[16:31], s[0:1], 0")
    a("s_load_dwordx16 s[32:47], s[0:1], 64")
    a("s_load_dwordx2 s[48:49], s[0:1], 128")
    a(f"v_lshrrev_b32 v2, 6, v0")
    a(f"v_and_b32 {v(vL)}, 63, v0")
    a(f"v_readfirstlane_b32 {s(sWV)}, v2")
    a(f"s_and_b32 {s(sXCD)}, s2, 7")
    a(f"s_lshr_b32 {s(T0+1)}, s2, 3")
    a(f"s_and_b32 {s(T0+2)}, {s(T0+1)}, 3")
    a(f"s_lshl_b32 {s(sQB)}, {s(sXCD)}, 2")
    a(f"s_add_u32 {s(sQB)}, {s(sQB)}, {s(T0+2)}")
    a(f"s_lshr_b32 {s(sG)}, {s(T0+1)}, 2")
    a(f"s_lshl_b32 {s(sCID)}, {s(sXCD)}, 5")
    a(f"s_add_u32 {s(sCID)}, {s(sCID)}, {s(T0+1)}")
    a(f"s_cmp_lg_u32 {s(sWV)}, 6")
    a("s_cbranch_scc1 L_e1")
    a(f"s_getpc_b64 {s(T0+4,2)}")
    a(f"s_lshl_b32 {s(T0+3)}, {s(T0+2)}, 13")
    a(f"v_lshlrev_b32 v2, 7, {v(vL)}")
    a(f"v_add_u32 v2, {s(T0+3)}, v2")
    a(f"v_min_u32 v2, CODE_END_OFF, v2")
    a(f"global_load_dword v15, v2, {s(T0+4,2)}")
    a(f"v_lshlrev_b32 v2, 2, {v(vL)}")
    a(f"v_add_u32 v2, {FL}, v2")
    a("v_mov_b32 v4, 0")
    a("ds_write_b32 v2, v4")
    a("L_e1:")
    a(f"s_lshr_b32 {s(T0)}, {s(sCID)}, 2")
    a(f"s_and_b32 {s(sJJ)}, {s(sCID)}, 3")
    a(f"s_mul_i32 {s(T0+1)}, {s(T0)}, 9")
    a(f"s_and_b32 {s(T0+2)}, {s(T0)}, 1")
    a(f"s_lshl_b32 {s(sCH0)}, {s(sJJ)}, 1")
    a(f"s_add_u32 {s(sCH0)}, {s(sCH0)}, {s(T0+1)}")
    a(f"s_add_u32 {s(sCH0)}, {s(sCH0)}, {s(T0+2)}")
    a(f"s_cmp_eq_u32 {s(T0+2)}, 0")
    a(f"s_cselect_b32 {s(sCHS)}, 8, 0")
    a(f"s_add_u32 {s(sCHS)}, {s(sCHS)}, {s(T0+1)}")
    sPW = T0 + 20
    a(f"s_lshr_b32 {s(sPW)}, {s(sG)}, 1")
    a(f"s_cmp_ge_u32 {s(sWV)}, 4")
    a("s_cbranch_scc1 L_h0")
    a(f"v_lshrrev_b32 v2, 3, {v(vL)}")
    a(f"v_xor_b32 v2, v2, {v(vL)}")
    a("v_lshlrev_b32 v2, 4, v2")
    a(f"s_lshl_b32 {s(T0)}, {s(sQB)}, 2")
    a(f"s_add_u32 {s(T0)}, {s(T0)}, {s(sWV)}")
    a(f"s_mul_i32 {s(T0)}, {s(T0)}, 18432")
    a(f"s_mul_i32 {s(T0+1)}, {s(sWV)}, 18432")
    a(f"s_add_u32 {s(T0+1)}, {s(T0+1)}, {XW}")
    a(f"s_and_b32 {s(T0+2)}, {s(sG)}, 1")
    a(f"s_mul_i32 {s(T0+2)}, {s(T0+2)}, 9216")
    a("s_waitcnt lgkmcnt(0)")
    a(f"s_load_dword {s(sTAG)}, {s(pWS,2)}, 0")
    srd(SRA, pX, 2048 * 1152)
    a(f"s_cmp_eq_u32 {s(sWV)}, {s(sPW)}")
    a("s_cbranch_scc1 L_xdma")
    a(f"s_sub_u32 {s(T0+4)}, {s(sWV)}, {s(sPW)}")
    a(f"s_and_b32 {s(T0+4)}, {s(T0+4)}, 3")
    a(f"s_mul_i32 {s(T0+4)}, {s(T0+4)}, 6912")
    a(f"s_lshr_b32 {s(T0+5)}, s2, 3")
    a(f"s_mul_i32 {s(T0+5)}, {s(T0+5)}, 20736")
    a(f"s_add_u32 {s(T0+4)}, {s(T0+4)}, {s(T0+5)}")
    a(f"s_sub_u32 {s(T0+4)}, {s(T0+4)}, 6912")
    a(f"v_min_u32 v3, 53, {v(vL)}")
    a("v_lshlrev_b32 v3, 7, v3")
    a(f"v_add_u32 v3, {s(T0+4)}, v3")
    a(f"global_load_dword v4, v3, {s(pWQ,2)}")
    a("s_waitcnt lgkmcnt(0)")
    a("s_barrier")
    a("s_waitcnt vmcnt(0)")
    a("L_xdma:")
    a(f"s_mov_b32 {s(T0+4)}, 6")
    a("L_xl:")
    a(f"s_add_u32 m0, {s(T0+1)}, {s(T0+2)}")
    a(f"s_add_u32 {s(T0+3)}, {s(T0)}, {s(T0+2)}")
    for j in range(3):
        a(f"buffer_load_dwordx4 v2, {s(SRA,4)}, {s(T0+3)} offen offset:{1024*j} lds")
    a(f"s_add_u32 {s(T0+2)}, {s(T0+2)}, 3072")
    a(f"s_cmp_eq_u32 {s(T0+2)}, 18432")
    a(f"s_cselect_b32 {s(T0+2)}, 0, {s(T0+2)}")
    a(f"s_sub_u32 {s(T0+4)}, {s(T0+4)}, 1")
    a(f"s_cmp_lg_u32 {s(T0+4)}, 0")
    a("s_cbranch_scc1 L_xl")
    a(f"s_cmp_lg_u32 {s(sWV)}, {s(sPW)}")
    a("s_cbranch_scc1 L_a1")
    a("s_waitcnt lgkmcnt(0)")
    a("s_barrier")
    a("s_branch L_a1")
    a("L_h0:")
    a("s_setprio 2")
    a(f"s_cmp_eq_u32 {s(sWV)}, 7")
    a("s_cbranch_scc1 L_ld0")
    a(f"s_sub_u32 {s(T0)}, {s(sWV)}, 4")
    a(f"s_add_u32 {s(T0+1)}, {s(sCH0)}, {s(T0)}")
    a(f"s_cmp_eq_u32 {s(T0)}, 2")
    a(f"s_cselect_b32 {s(T0+1)}, {s(sCHS)}, {s(T0+1)}")
    a(f"s_lshl_b32 {s(T0+2)}, {s(T0+1)}, 8")
    a(f"v_lshlrev_b32 v2, 2, {v(vL)}")
    a(f"v_add_u32 v3, {s(T0+2)}, v2")
    a(f"s_lshl_b32 {s(T0+2)}, {s(T0+1)}, 1")
    a(f"v_mov_b32 v11, {s(T0+2)}")
    a("s_waitcnt lgkmcnt(0)")
    a(f"s_load_dword {s(sTAG)}, {s(pWS,2)}, 0")
    PR = 4
    a(f"global_load_ushort v10, v11, {s(pLDT,2)}")
    for i, p in enumerate((pARE, pAIM, pBRE, pBIM, pCRE, pCIM)):
        a(f"global_load_dword v{PR+i}, v3, {s(p,2)}")
    a("s_waitcnt lgkmcnt(0)")
    a("s_barrier")
    a("s_branch L_kgen")
    a("L_ld0:")
    for i in range(3):
        a(f"v_add_u32 v2, {64*i}, {v(vL)}")
        a("v_mul_u32_u24 v4, 21846, v2")
        a("v_lshrrev_b32 v4, 16, v4")
        a("v_mul_u32_u24 v5, 3, v4")
        a("v_sub_u32 v5, v2, v5")
        a("v_lshlrev_b32 v5, 4, v5")
        a("v_min_u32 v5, 20, v5")
        a(f"v_mad_u32_u24 v{6+i}, v4, 36, v5")
    a(f"s_lshr_b32 {s(T0+4)}, s2, 3")
    a(f"s_and_b32 {s(T0+4)}, {s(T0+4)}, 3")
    a(f"s_lshl_b32 {s(T0+4)}, {s(T0+4)}, 1")
    a(f"s_lshr_b32 {s(T0+5)}, {s(sG)}, 2")
    a(f"s_add_u32 {s(T0+4)}, {s(T0+4)}, {s(T0+5)}")
    a(f"s_and_b32 {s(T0)}, {s(sG)}, 1")
    a("s_waitcnt lgkmcnt(0)")
    a(f"s_load_dword {s(sTAG)}, {s(pWS,2)}, 0")
    a(f"s_cmp_eq_u32 {s(T0)}, 1")
    a(f"s_cselect_b32 {s(T0+2)}, {s(pWV)}, {s(pWK)}")
    a(f"s_cselect_b32 {s(T0+3)}, {s(pWV+1)}, {s(pWK+1)}")
    srd(SRA, T0 + 2, 576 * 36)
    a(f"s_mov_b32 {s(T0+5)}, 9")
    a("L_wkl:")
    a(f"s_mul_i32 {s(T0+6)}, {s(T0+4)}, 3072")
    a(f"s_add_u32 {s(T0+6)}, {s(T0+6)}, {WK}")
    a(f"s_mul_i32 {s(T0+7)}, {s(T0+4)}, 2304")
    for j in range(3):
        a(f"s_add_u32 m0, {s(T0+6)}, {1024*j}")
        a(f"s_add_u32 {s(T0+4)}, {s(T0+4)}, {1 if j == 0 else 0}")
        a(f"buffer_load_dwordx4 v{6+j}, {s(SRA,4)}, {s(T0+7)} offen lds")
    a(f"s_cmp_eq_u32 {s(T0+4)}, 9")
    a(f"s_cselect_b32 {s(T0+4)}, 0, {s(T0+4)}")
    a(f"s_sub_u32 {s(T0+5)}, {s(T0+5)}, 1")
    a(f"s_cmp_lg_u32 {s(T0+5)}, 0")
    a("s_cbranch_scc1 L_wkl")
    a("s_waitcnt lgkmcnt(0)")
    a("s_barrier")
    a("s_branch L_loader")

    XF, ACC, ST = 16, 88, 108
    a("L_a1:")
    stamp(12)
    mktag()
    srd(SRB, pWQ, 576 * 1152)
    a(f"v_and_b32 v2, 15, {v(vL)}")
    a(f"v_lshrrev_b32 v3, 4, {v(vL)}")
    a(f"v_mul_u32_u24 v4, 1152, v2")
    a(f"v_add_u32 v4, {s(T0+1)}, v4")
    for t in range(8):
        a(f"v_add_u32 v5, {t}, v2")
        a("v_and_b32 v5, 7, v5")
        a("v_xor_b32 v5, v5, v3")
        a(f"v_lshl_add_u32 {v(ST+t)}, v5, 4, v4")
        a(f"v_xor_b32 {v(ST+8+t)}, 64, {v(ST+t)}")
    a("s_waitcnt vmcnt(0)")
    stamp(1)
    for st_ in range(18):
        t = st_ >> 1
        a(f"ds_read_b128 {v(XF+4*st_,4)}, {v(ST+8*(st_&1)+(t&7))} offset:{128*t}")
    a(f"s_cmp_lg_u32 {s(sPW)}, {s(sWV)}")
    a("s_cbranch_scc1 L_p_dma")
    lds_add(F_XP, 2)
    a(f"v_lshrrev_b32 v2, 4, {v(vL)}")
    a(f"v_bfe_u32 v3, {v(vL)}, 2, 2")
    a(f"v_and_b32 v4, 3, {v(vL)}")
    a("v_lshl_add_u32 v5, v2, 3, v3")
    a("v_mul_u32_u24 v5, 48, v5")
    a(f"v_add_u32 v5, {WK}, v5")
    a("v_lshl_add_u32 v6, v4, 3, v5")
    a("v_add_u32 v7, 40, v5")
    for i in range(8):
        a(f"v_mov_b32 {v(ACC+i)}, 0")
    a(f"s_lshr_b32 {s(T0+1)}, {s(sQB)}, 2")
    a(f"s_mul_i32 {s(T0+1)}, {s(T0+1)}, {CH_SZ}")
    a(f"s_add_u32 {s(T0+1)}, {s(T0+1)}, {WS_KV}")
    a(f"s_and_b32 {s(T0+2)}, {s(sQB)}, 3")
    a(f"s_lshl_b32 {s(T0+3)}, {s(T0+2)}, 1")
    a(f"s_lshr_b32 {s(T0+4)}, {s(sWV)}, 1")
    a(f"s_add_u32 {s(T0+3)}, {s(T0+3)}, {s(T0+4)}")
    a(f"s_mul_i32 {s(T0+3)}, {s(T0+3)}, 2240")
    a(f"s_add_u32 {s(T0+3)}, {s(T0+3)}, {s(T0+1)}")
    a(f"s_and_b32 {s(T0+4)}, {s(sWV)}, 1")
    a(f"v_and_b32 v3, 15, {v(vL)}")
    a("v_lshrrev_b32 v12, 1, v2")
    a("v_and_b32 v13, 1, v2")
    a("v_lshlrev_b32 v13, 3, v13")
    a("v_lshl_add_u32 v13, v3, 4, v13")
    stamp(13)
    lds_wait(F_WK, 1, 8, T0)
    stamp(14)
    a(f"s_and_b32 {s(T0)}, {s(sG)}, 1")
    a(f"s_cmp_eq_u32 {s(T0)}, 1")
    a("s_cbranch_scc1 L_pv")

    def kvproj(isV):
        NR, PRE = 8, 7

        def rd(f):
            st_, tl = divmod(f, 2)
            b = ST + 4 * (f % NR)
            o = 48 * 32 * st_
            a(f"ds_read_b64_tr_b16 {v(b,2)}, v{6+tl} offset:{o}")
            a(f"ds_read_b64_tr_b16 {v(b+2,2)}, v{6+tl} offset:{o+192}")
        for f in range(PRE):
            rd(f)
        for f in range(36):
            st_, tl = divmod(f, 2)
            a(f"s_waitcnt lgkmcnt({2*min(PRE-1, 35-f)})")
            w_, x_ = v(ST + 4 * (f % NR), 4), v(XF + 4 * st_, 4)
            A_, B_ = (x_, w_) if isV else (w_, x_)
            a(f"v_mfma_f32_16x16x32_bf16 {v(ACC+4*tl,4)}, {A_}, {B_}, {v(ACC+4*tl,4)}")
            if f + PRE < 36:
                rd(f + PRE)

    kvproj(False)
    a("v_lshl_add_u32 v4, v12, 9, v13")
    a(f"s_lshl_b32 {s(T0+4)}, {s(T0+4)}, 8")
    a(f"s_add_u32 {s(T0+3)}, {s(T0+3)}, {s(T0+4)}")
    a(f"v_add_u32 v4, {s(T0+3)}, v4")
    a(f"s_lshl_b32 {s(T0+2)}, {s(T0+2)}, 2")
    a(f"s_lshl_b32 {s(T0+4)}, {s(sWV)}, 8")
    a(f"s_add_u32 {s(T0+2)}, {s(T0+2)}, {s(T0+4)}")
    a(f"s_add_u32 {s(T0+2)}, {s(T0+2)}, {s(T0+1)}")
    a(f"s_add_u32 {s(T0+2)}, {s(T0+2)}, 17920")
    a("v_lshlrev_b32 v5, 4, v3")
    a(f"v_add_u32 v5, {s(T0+2)}, v5")
    a(f"v_cvt_pk_bf16_f32 v8, {v(ACC)}, {v(ACC+1)}")
    a(f"v_cvt_pk_bf16_f32 v9, {v(ACC+2)}, {v(ACC+3)}")
    a(f"v_cvt_pk_bf16_f32 v10, {v(ACC+6)}, {v(ACC+7)}")
    a(f"global_store_dwordx2 v4, v[8:9], {s(pWS,2)} sc1")
    a("s_mov_b64 exec, 0xffff")
    a(f"global_store_dword v5, v10, {s(pWS,2)} sc1")
    a("s_mov_b64 exec, -1")
    a("s_branch L_pub")
    a("L_pv:")
    kvproj(True)
    a(f"s_movk_i32 {s(T0)}, 288")
    a(f"v_mad_u32_u24 v4, v12, {s(T0)}, v13")
    a(f"s_mul_i32 {s(T0+4)}, {s(T0+4)}, 608")
    a(f"s_add_u32 {s(T0+3)}, {s(T0+3)}, {s(T0+4)}")
    a(f"s_add_u32 {s(T0+3)}, {s(T0+3)}, 1024")
    a(f"v_add_u32 v4, {s(T0+3)}, v4")
    a("v_cmp_eq_u32 vcc, 4, v3")
    a("v_mov_b32 v5, 0x3f803f80")
    a("v_cndmask_b32 v5, 0, v5, vcc")
    a("v_cmp_le_u32 vcc, 4, v3")
    a(f"v_cvt_pk_bf16_f32 v8, {v(ACC)}, {v(ACC+1)}")
    a(f"v_cvt_pk_bf16_f32 v9, {v(ACC+2)}, {v(ACC+3)}")
    a(f"v_cvt_pk_bf16_f32 v10, {v(ACC+4)}, {v(ACC+5)}")
    a(f"v_cvt_pk_bf16_f32 v11, {v(ACC+6)}, {v(ACC+7)}")
    a(f"global_store_dwordx2 v4, v[8:9], {s(pWS,2)} sc1")
    a("v_cndmask_b32 v10, v10, v5, vcc")
    a("v_cndmask_b32 v11, v11, v5, vcc")
    a(f"s_mov_b32 exec_lo, 0x000c000c")
    a(f"s_mov_b32 exec_hi, 0x003c003c")
    a(f"global_store_dwordx2 v4, v[10:11], {s(pWS,2)} offset:224 sc1")
    a("s_mov_b64 exec, -1")
    a("L_pub:")
    stamp(15)
    lds_add(F_KVD, 2)
    a(f"s_lshl_b32 {s(T0)}, {s(sQB)}, 3")
    a(f"s_add_u32 {s(T0)}, {s(T0)}, {s(sG)}")
    a(f"s_lshl_b32 {s(T0)}, {s(T0)}, 7")
    a(f"s_add_u32 {s(T0)}, {s(T0)}, {WS_FKV}")
    a(f"v_mov_b32 v14, {s(T0)}")
    a(f"v_mov_b32 v15, {s(sTAG)}")
    proj_setup(ACC, XW, WX)
    a("s_waitcnt vmcnt(0)")
    a("s_mov_b64 exec, 1")
    a(f"global_store_dword v14, v15, {s(pWS,2)} sc1")
    a("s_mov_b64 exec, -1")
    stamp(2)
    a("s_branch L_qproj")
    a("L_p_dma:")
    a("s_waitcnt lgkmcnt(0)")
    w_dma(SRB, XW, WX, False, sWV)
    stamp(16)
    proj_setup(ACC, XW, WX)
    a("s_waitcnt vmcnt(0)")
    stamp(17)
    lds_add(F_WQ, 2)
    a("L_qproj:")
    lds_wait(F_WQ, 4, 2, T0)
    stamp(3)
    proj_run(XF, ACC, ST, 8, 7, lambda st_: None)
    stamp(18)
    a(f"v_and_b32 v2, 15, {v(vL)}")
    a(f"v_lshrrev_b32 v3, 4, {v(vL)}")
    a(f"v_mul_u32_u24 v2, {QST}, v2")
    a("v_lshl_add_u32 v2, v3, 3, v2")
    a(f"s_mul_i32 {s(T0)}, {s(sWV)}, {16*QST}")
    a(f"s_add_u32 {s(T0)}, {s(T0)}, {QI}")
    a(f"v_add_u32 v2, {s(T0)}, v2")
    lds_wait(F_KVD, 1, 4, T0)
    a(f"s_mov_b32 {s(T0)}, {f32(QSCALE)}")
    a(f"s_mov_b32 {s(T0+1)}, {f32(QSCALE)}")
    for ct in range(5):
        b = ACC + 4 * ct
        a(f"v_pk_mul_f32 {v(b,2)}, {v(b,2)}, {s(T0,2)}")
        a(f"v_pk_mul_f32 {v(b+2,2)}, {v(b+2,2)}, {s(T0,2)}")
        a(f"v_cvt_pk_bf16_f32 {v(b)}, {v(b)}, {v(b+1)}")
        a(f"v_cvt_pk_bf16_f32 {v(b+1)}, {v(b+2)}, {v(b+3)}")
        if ct == 4:
            a("s_mov_b32 exec_hi, 0")
        a(f"ds_write_b64 v2, {v(b,2)} offset:{32*ct}")
    a("s_mov_b64 exec, -1")
    lds_add(F_QW, 2)

    SX, SY, OA, OB = 16, 48, 80, 96
    QA, QB, QX0, QX1, IDX = 112, 116, 120, 122, 124
    KF, V0F, V1F, KXF = 128, 136, 144, 152
    vK, vV, vKl, vVl, vFl, vCo, vCv, vFa = 156, 157, 158, 159, 160, 161, 162, 163
    sI, sSEQ, sNB = T0 + 10, T0 + 11, T0 + 12
    a(f"v_and_b32 v2, 31, {v(vL)}")
    a(f"v_lshrrev_b32 v3, 5, {v(vL)}")
    a(f"v_mul_u32_u24 v4, {QST}, v2")
    a(f"s_lshr_b32 {s(T0)}, {s(sWV)}, 1")
    a(f"s_mul_i32 {s(T0)}, {s(T0)}, {32*QST}")
    a(f"s_and_b32 {s(T0+1)}, {s(sWV)}, 1")
    a(f"s_mul_i32 {s(T0+1)}, {s(T0+1)}, 72")
    a(f"s_add_u32 {s(T0)}, {s(T0)}, {s(T0+1)}")
    a(f"s_add_u32 {s(T0)}, {s(T0)}, {QI}")
    a(f"v_add_u32 v4, {s(T0)}, v4")
    a("v_mad_u32_u24 v5, v3, 36, v4")
    a("v_lshl_add_u32 v4, v3, 4, v4")
    a(f"v_lshlrev_b32 {v(vKl)}, 4, {v(vL)}")
    a("v_and_b32 v6, 19, v2")
    a("v_bfe_u32 v7, v2, 2, 1")
    a("v_lshl_or_b32 v6, v7, 3, v6")
    a("v_bfe_u32 v7, v2, 3, 1")
    a("v_lshl_or_b32 v6, v7, 2, v6")
    a("v_mad_u32_u24 v6, v3, 18, v6")
    a("v_and_b32 v7, 27, v2")
    a("v_cmp_eq_u32 vcc, 18, v7")
    a("v_mov_b32 v8, 36")
    a("v_cndmask_b32 v7, 37, v8, vcc")
    a("v_cmp_gt_u32 vcc, 18, v2")
    a(f"v_mov_b32 {v(IDX)}, 0xdddd")
    a("v_cndmask_b32 v6, v7, v6, vcc")
    a(f"v_lshlrev_b32 {v(vVl)}, 4, v6")
    a(f"v_add_u32 {v(vVl)}, 1024, {v(vVl)}")
    b0 = SLOT0 + CH_SZ * SLOTSEQ[0]
    a(f"v_add_u32 {v(vK)}, {b0}, {v(vKl)}")
    a(f"v_add_u32 {v(vV)}, {b0}, {v(vVl)}")
    a(f"v_mov_b32 {v(vFa)}, {F_RDY}")
    a(f"s_lshl_b32 {s(T0)}, {s(sWV)}, 2")
    a(f"s_add_u32 {s(T0)}, {s(T0)}, {F_CONS}")
    a(f"v_mov_b32 {v(vCo)}, {s(T0)}")
    a(f"v_mov_b32 {v(vCv)}, 0")
    for i in range(32):
        a(f"v_mov_b32 {v(OA+i)}, 0")
    a(f"v_mov_b32 {v(QX0+1)}, 0")
    a(f"v_mov_b32 {v(QX1)}, 0")
    seq = 0
    for i, k in enumerate(SLOTSEQ[1:] + [SLOTSEQ[-1]]):
        seq |= k << (4 * i)
    a(f"s_mov_b32 {s(sSEQ)}, {hex(seq)}")
    a(f"s_mov_b32 {s(sI)}, 0")
    lds_wait(F_QW, 4, 8, T0)
    a(f"ds_read2_b32 {v(QA,2)}, v4 offset0:0 offset1:1")
    a(f"ds_read2_b32 {v(QA+2,2)}, v4 offset0:2 offset1:3")
    a(f"ds_read2_b32 {v(QB,2)}, v4 offset0:9 offset1:10")
    a(f"ds_read2_b32 {v(QB+2,2)}, v4 offset0:11 offset1:12")
    a(f"ds_read_b32 {v(QX0)}, v5 offset:32")
    a(f"ds_read_b32 {v(QX1+1)}, v5 offset:32")
    lds_add(F_QD, 8)
    stamp(4)
    lds_wait(F_RDY, 1, 8, T0)
    stamp(6)

    def m2b(D, t):
        q = QX0 if ((t >> 1) & 1) == 0 else QX1
        return f"v_mfma_f32_32x32x4_2b_bf16 {v(D,32)}, {v(KXF+2*(t>>2),2)}, {v(q,2)}, 0 cbsz:1 abid:{t&1}"

    def mS(D, t, Q):
        return f"v_mfma_f32_32x32x16_bf16 {v(D,16)}, {v(KF+4*(t&1),4)}, {v(Q,4)}, {v(D,16)}"

    def smf(O, VF, t, P):
        return f"v_smfmac_f32_32x32x32_bf16 {v(O,16)}, {v(VF+4*(t&1),4)}, {v(P,8)}, {v(IDX)}"

    a(f"ds_read_b128 {v(KXF,4)}, {v(vK)} offset:17920")
    a(f"ds_read_b128 {v(KF,4)}, {v(vK)}")
    a(f"ds_read_b128 {v(KF+4,4)}, {v(vK)} offset:2240")
    a(f"ds_read_b128 {v(V0F,4)}, {v(vV)}")
    a(f"ds_read_b128 {v(V1F,4)}, {v(vV)} offset:608")
    for i in range(4):
        a(f"v_mov_b32 {v(V1F+4+i)}, 0")
    for i in range(8):
        a(f"v_mov_b32 {v(SY+24+i)}, 0")
    a("s_waitcnt lgkmcnt(4)")
    a(m2b(SX, 0))
    a("s_waitcnt lgkmcnt(0)")
    a(mS(SX, 0, QA))
    a(mS(SX + 16, 0, QB))
    a("s_nop 10")
    a(".p2align 3")
    a("L_att:")
    for t in range(8):
        cur, nxt = (SX, SY) if t % 2 == 0 else (SY, SX)
        ex = [f"v_exp_f32 {v(cur+i)}, {v(cur+i)}" for i in range(32)]
        tn = (t + 1) & 7
        q = []
        q += ex[0:2]
        q.append(smf(OB, V1F, t - 1, nxt + 24))
        q.append("s_waitcnt lgkmcnt(0)")
        if t == 5:
            q.append(f"v_readfirstlane_b32 {s(T0)}, {v(vFl)}")
        q += ex[2:5]
        q.append(m2b(nxt, tn))
        if t == 5:
            q.append(f"s_cmp_le_u32 {s(T0)}, {s(T0+1)}")
            q.append("s_cbranch_scc1 L_rw")
            q.append("L_rwd:")
        q += ex[5:13]
        q.append(smf(OA, V0F, t, cur))
        q.append(f"ds_read_b128 {v(KF+4*(t&1),4)}, {v(vK)} offset:{2240*((t+2)&7)}")
        q += ex[13:18]
        q.append(smf(OA, V1F, t, cur + 8))
        q.append(f"ds_read_b128 {v(V0F+4*(tn&1),4)}, {v(vV)} offset:{2240*tn}")
        q += ex[18:22]
        q.append(mS(nxt, tn, QA))
        q.append(f"ds_read_b128 {v(V1F+4*(tn&1),4)}, {v(vV)} offset:{2240*tn+608}")
        q += ex[22:26]
        q.append(smf(OB, V0F, t, cur + 16))
        if t == 3:
            q.append(f"s_and_b32 {s(sNB)}, {s(sSEQ)}, 15")
            q.append(f"s_mul_i32 {s(sNB)}, {s(sNB)}, {CH_SZ}")
        if t == 4:
            q.append(f"ds_read_b32 {v(vFl)}, {v(vFa)}")
        if t == 6:
            q.append(f"ds_read_b128 {v(KXF,4)}, {v(vK)} offset:17920")
        if t == 7:
            q.append(f"ds_write_b32 {v(vCo)}, {v(vCv)}")
        q += ex[26:29]
        q.append(mS(nxt + 16, tn, QB))
        if t == 2:
            q.append(f"s_add_u32 {s(sI)}, {s(sI)}, 1")
        if t == 3:
            q.append(f"s_add_u32 {s(sNB)}, {s(sNB)}, {SLOT0}")
        if t == 4:
            q.append(f"s_min_u32 {s(T0+1)}, {s(sI)}, 7")
        if t == 5:
            q.append(f"s_lshr_b32 {s(sSEQ)}, {s(sSEQ)}, 4")
            q.append(f"v_add_u32 {v(vK)}, {s(sNB)}, {v(vKl)}")
        if t == 6:
            q.append(f"v_add_u32 {v(vV)}, {s(sNB)}, {v(vVl)}")
            q.append(f"v_mov_b32 {v(vCv)}, {s(sI)}")
        if t == 7:
            q.append(f"s_cmp_lt_u32 {s(sI)}, 8")
        q += ex[29:32]
        for x in q:
            a(x)
    a("s_cbranch_scc1 L_att")
    a(smf(OB, V1F, 7, SY + 24))
    stamp(9)
    a(f"v_and_b32 v2, 15, {v(vL)}")
    a(f"v_bfe_u32 v3, {v(vL)}, 4, 1")
    a(f"v_lshrrev_b32 v4, 5, {v(vL)}")
    a(f"s_movk_i32 {s(T0)}, {72*256}")
    a("v_lshlrev_b32 v2, 4, v2")
    a(f"v_mad_u32_u24 v2, v3, {s(T0)}, v2")
    a(f"s_lshl_b32 {s(T0)}, {s(sQB)}, 2")
    a(f"s_and_b32 {s(T0+1)}, {s(sWV)}, 2")
    a(f"s_add_u32 {s(T0)}, {s(T0)}, {s(T0+1)}")
    a(f"s_mul_i32 {s(T0)}, {s(T0)}, 72")
    a(f"s_mul_i32 {s(T0+1)}, {s(sG)}, 9")
    a(f"s_add_u32 {s(T0)}, {s(T0)}, {s(T0+1)}")
    a(f"s_lshl_b32 {s(T0)}, {s(T0)}, 8")
    a(f"s_add_u32 {s(T0)}, {s(T0)}, {WS_O}")
    a(f"s_and_b32 {s(T0+1)}, {s(sWV)}, 1")
    a(f"s_lshl_b32 {s(T0+2)}, {s(T0+1)}, 10")
    a(f"s_add_u32 {s(T0+2)}, {s(T0+2)}, {s(T0)}")
    a(f"s_lshl_b32 {s(T0+1)}, {s(T0+1)}, 3")
    a(f"s_add_u32 {s(T0+1)}, {s(T0+1)}, {s(T0)}")
    a(f"v_add_u32 v5, {s(T0+1)}, v2")
    a("v_lshl_add_u32 v2, v4, 8, v2")
    a(f"v_add_u32 v2, {s(T0+2)}, v2")
    for T, O in enumerate((OA, OB)):
        a(f"v_rcp_f32 v6, {v(O+10)}")
        a(f"s_nop 0")
        a("v_mov_b32 v7, v6")
        for i in range(0, 10, 2):
            a(f"v_pk_mul_f32 {v(O+i,2)}, {v(O+i,2)}, v[6:7]")
        for i in range(4):
            a(f"v_cvt_pk_bf16_f32 {v(16+4*T+i)}, {v(O+2*i)}, {v(O+2*i+1)}")
        a(f"v_cvt_pk_bf16_f32 {v(24+T)}, {v(O+8)}, {v(O+9)}")
        a(f"global_store_dwordx4 v2, {v(16+4*T,4)}, {s(pWS,2)} offset:{512*T} sc1")
    a("s_mov_b32 exec_hi, 0")
    a(f"global_store_dwordx2 v5, v[24:25], {s(pWS,2)} offset:2048 sc1")
    a(f"s_lshl_b32 {s(T0)}, {s(sQB)}, 3")
    a(f"s_add_u32 {s(T0)}, {s(T0)}, {s(sG)}")
    a(f"s_lshl_b32 {s(T0)}, {s(T0)}, 7")
    a(f"s_lshl_b32 {s(T0+1)}, {s(sWV)}, 2")
    a(f"s_add_u32 {s(T0)}, {s(T0)}, {s(T0+1)}")
    a(f"s_add_u32 {s(T0)}, {s(T0)}, {WS_FO}")
    a("s_mov_b64 exec, 1")
    a(f"v_mov_b32 v4, {s(T0)}")
    a(f"v_mov_b32 v5, {s(sTAG)}")
    a("s_waitcnt vmcnt(0)")
    a(f"global_store_dword v4, v5, {s(pWS,2)} sc1")
    a("s_mov_b64 exec, -1")
    a("s_branch L_fin")
    a("L_rw:")
    a("s_sleep 1")
    a(f"ds_read_b32 {v(vFl)}, {v(vFa)}")
    a("s_waitcnt lgkmcnt(0)")
    a(f"v_readfirstlane_b32 {s(T0)}, {v(vFl)}")
    a(f"s_cmp_le_u32 {s(T0)}, {s(T0+1)}")
    a("s_cbranch_scc1 L_rw")
    a("s_branch L_rwd")

    def chunk_dma(i):
        a(f"s_add_u32 {s(T0+1)}, {s(sXCD)}, {i}")
        a(f"s_and_b32 {s(T0+1)}, {s(T0+1)}, 7")
        a(f"s_mul_i32 {s(T0+1)}, {s(T0+1)}, {CH_SZ}")
        a(f"s_add_u32 {s(T0+1)}, {s(T0+1)}, {WS_KV}")
        a(f"s_add_u32 {s(T0+2)}, {s(pWS)}, {s(T0+1)}")
        a(f"s_addc_u32 {s(T0+3)}, {s(pWS+1)}, 0")
        base = SLOT0 + CH_SZ * SLOTSEQ[i]
        for j in range(19):
            if j % 4 == 0:
                a(f"s_mov_b32 m0, {base + 1024*j}")
                if j:
                    a(f"s_add_u32 {s(T0+2)}, {s(T0+2)}, 4096")
                    a(f"s_addc_u32 {s(T0+3)}, {s(T0+3)}, 0")
            if j == 18:
                a("s_mov_b32 exec_hi, 0")
            a(f"global_load_lds_dwordx4 v14, {s(T0+2,2)} offset:{1024*(j%4)} sc1")
        a("s_mov_b32 exec_hi, -1")

    def set_rdy(n):
        a(f"v_mov_b32 v2, {F_RDY}")
        a(f"v_mov_b32 v3, {n}")
        a("ds_write_b32 v2, v3")

    a("L_loader:")
    stamp(12)
    mktag()
    srd(SRB, pWQ, 576 * 1152)
    a("s_waitcnt vmcnt(0)")
    stamp(13)
    lds_add(F_WK, 2)
    lds_wait(F_XP, 1, 2, T0)
    w_dma(SRB, XW, WX, False, sPW)
    a(f"v_lshlrev_b32 v14, 4, {v(vL)}")
    a(f"v_and_b32 v16, 31, {v(vL)}")
    a("v_lshlrev_b32 v16, 7, v16")
    a(f"s_lshl_b32 {s(T0)}, {s(sXCD)}, 12")
    a(f"s_add_u32 {s(T0)}, {s(T0)}, {WS_FKV}")
    a(f"v_add_u32 v16, {s(T0)}, v16")
    a("s_waitcnt vmcnt(0)")
    stamp(14)
    lds_add(F_WQ, 2)
    poll(16, 20, "L_pk0")
    stamp(5)
    chunk_dma(0)
    a(f"v_lshlrev_b32 v16, 7, {v(vL)}")
    a(f"v_add_u32 v16, {WS_FKV}, v16")
    for i in range(1, 4):
        a(f"v_add_u32 v{16+i}, {8192*i}, v16")
    a("s_waitcnt vmcnt(0)")
    set_rdy(1)
    stamp(15)
    poll(16, 20, "L_pk1", n=4)
    lds_wait(F_QD, 4, 2, T0)
    stamp(16)
    chunk_dma(1)
    chunk_dma(2)
    a("s_waitcnt vmcnt(19)")
    set_rdy(2)
    chunk_dma(3)
    a("s_waitcnt vmcnt(19)")
    set_rdy(3)
    chunk_dma(4)
    a("s_waitcnt vmcnt(19)")
    set_rdy(4)
    a("s_waitcnt vmcnt(0)")
    set_rdy(5)
    stamp(17)
    a("s_branch L_ssm")

    a("L_kgen:")
    stamp(12)
    mktag()
    a(f"s_mul_i32 {s(T0+3)}, {s(T0)}, {S_SZ}")
    a(f"v_add_u32 v11, {s(T0+3)}, v2")
    a(f"v_and_b32 v12, 31, {v(vL)}")
    a(f"v_lshrrev_b32 v13, 5, {v(vL)}")
    a("v_mul_u32_u24 v14, 272, v12")
    a("v_lshl_add_u32 v14, v13, 4, v14")
    a(f"v_add_u32 v14, {s(T0+3)}, v14")
    KD = 16
    for i in range(16):
        a(f"v_mov_b32 {v(KD+i)}, 0")
    a("s_waitcnt vmcnt(0)")
    stamp(1)
    a("v_lshlrev_b32 v10, 16, v10")
    a(f"v_mul_f32 v10, {f32(LOG2E)}, v10")
    a("v_exp_f32 v10, v10")
    a("v_cvt_pk_bf16_f32 v10, v10, v10")
    a("v_lshlrev_b32 v10, 16, v10")
    a(f"s_mov_b32 {s(T0+4)}, 0")
    a("L_kround:")
    U0 = 32
    for i in range(6):
        a(f"v_lshlrev_b32 {v(U0+i)}, 16, v{PR+i}")
    for i in range(6):
        a(f"v_lshrrev_b32 v{PR+i}, 16, v{PR+i}")
    a(f"v_mul_f32 {v(U0)}, v10, {v(U0)}")
    a(f"v_mul_f32 {v(U0+1)}, v10, {v(U0+1)}")
    a(f"v_mul_f32 {v(U0+2)}, v10, {v(U0+2)}")
    a(f"v_mul_f32 {v(U0+3)}, v10, {v(U0+3)}")
    a(f"v_mul_f32 {v(U0)}, {f32(LOG2E)}, {v(U0)}")
    a(f"v_mul_f32 {v(U0+1)}, 0.15915494, {v(U0+1)}")
    Z1, Z8, Z256 = 38, 40, 42
    TT = 44

    def cmul(r, x, y):
        a(f"v_pk_mul_f32 {v(r,2)}, {v(x,2)}, {v(y,2)} op_sel:[0,0] op_sel_hi:[0,1]")
        a(f"v_pk_fma_f32 {v(r,2)}, {v(x,2)}, {v(y,2)}, {v(r,2)} op_sel:[1,1,0] op_sel_hi:[1,0,1] neg_lo:[0,1,0]")

    for z, pw in ((Z1, 1.0), (Z8, 8.0), (Z256, 256.0)):
        a(f"v_mul_f32 {v(TT)}, {f32(pw)}, {v(U0)}")
        a(f"v_mul_f32 {v(TT+1)}, {f32(pw)}, {v(U0+1)}")
        a(f"v_exp_f32 {v(TT)}, {v(TT)}")
        a(f"v_fract_f32 {v(TT+1)}, {v(TT+1)}")
        a(f"v_cos_f32 {v(z)}, {v(TT+1)}")
        a(f"v_sin_f32 {v(z+1)}, {v(TT+1)}")
        a(f"v_mul_f32 {v(z)}, {v(TT)}, {v(z)}")
        a(f"v_mul_f32 {v(z+1)}, {v(TT)}, {v(z+1)}")
    H, G1, G2, LO, CV = 46, 64, 74, 84, 88
    cvn = [0]

    def put(row, r, neg):
        t = CV + (cvn[0] % 8)
        cvn[0] += 1
        a(f"v_cvt_pk_bf16_f32 {v(t)}, {v(r)}, {'-' if neg else ''}{v(r+1)}")
        rows = row if isinstance(row, (list, tuple)) else [row]
        for rw in rows:
            a(f"ds_write_b32 v11, {v(t)} offset:{rw*272}")

    def mrow(r, h):
        return (r % 4) + 4 * h + 8 * (r // 4)

    hi_ops = []
    hi_ops.append(lambda: (cmul(H, U0 + 4, U0 + 2), put(mrow(0, 0), H, True)))
    for e in range(1, 9):
        if e < 8:
            hi_ops.append(lambda e=e: (cmul(H + 2 * e, H + 2 * e - 2, Z1), put(mrow(e, 0), H + 2 * e, True)))
        else:
            hi_ops.append(lambda e=e: cmul(H + 2 * e, H + 2 * e - 2, Z1))
    s1rows = {0: [0, 1], 2: [2], 4: [3, 4, 5], 6: [6], 8: [7]}
    for n, e in enumerate((0, 2, 4, 6, 8)):
        hi_ops.append(lambda n=n, e=e: (cmul(G1 + 2 * n, H + 2 * e, Z256), put([mrow(r, 1) for r in s1rows[e]], G1 + 2 * n, True)))
    for n, src in enumerate((0, 2, 4)):
        hi_ops.append(lambda n=n, src=src: (cmul(G2 + 2 * n, G1 + 2 * src, Z256), put(mrow(8 + n, 0), G2 + 2 * n, True)))
    for n in range(3):
        hi_ops.append(lambda n=n: (cmul(G1 + 2 * n, G2 + 2 * n, Z256), put(mrow(8 + n, 1), G1 + 2 * n, True)))
    for n, src in enumerate((0, 2)):
        hi_ops.append(lambda n=n, src=src: (cmul(G2 + 2 * n, G1 + 2 * src, Z256), put(mrow(11 + n, 0), G2 + 2 * n, True)))
    for n in range(2):
        hi_ops.append(lambda n=n: (cmul(G1 + 2 * n, G2 + 2 * n, Z256), put(mrow(11 + n, 1), G1 + 2 * n, True)))
    for n in range(2):
        hi_ops.append(lambda n=n: (cmul(G2 + 2 * n, G1 + 2 * n, Z256), put(mrow(13 + n, 0), G2 + 2 * n, True)))
    for n in range(2):
        hi_ops.append(lambda n=n: (cmul(G1 + 2 * n, G2 + 2 * n, Z256), put(mrow(13 + n, 1), G1 + 2 * n, True)))
    lo_ops = []

    def lo0():
        a(f"v_mov_b32 {v(CV)}, 0x3f80")
        a(f"ds_write_b32 v11, {v(CV)} offset:{32*272}")
        cvn[0] = 1
        put(33, Z8, False)
    lo_ops.append(lo0)
    for j in range(2, 32):
        src = Z8 if j == 2 else LO + 2 * ((j - 1) & 1)
        lo_ops.append(lambda j=j, src=src: (cmul(LO + 2 * (j & 1), src, Z8), put(32 + j, LO + 2 * (j & 1), False)))
    for i in range(max(len(hi_ops), len(lo_ops))):
        if i < len(lo_ops):
            lo_ops[i]()
        if i < len(hi_ops):
            hi_ops[i]()
    stamp(13)
    FR = 96
    for ks in range(8):
        b = FR + 8 * ks
        a(f"ds_read_b128 {v(b,4)}, v14 offset:{32*ks}")
        a(f"ds_read_b128 {v(b+4,4)}, v14 offset:{32*272+32*ks}")
    for ks in range(8):
        a(f"s_waitcnt lgkmcnt({2*(7-ks)})")
        bb = FR + 8 * ks
        a(f"v_mfma_f32_32x32x16_bf16 {v(KD,16)}, {v(bb,4)}, {v(bb+4,4)}, {v(KD,16)}")
    a(f"s_add_u32 {s(T0+4)}, {s(T0+4)}, 1")
    a(f"s_cmp_lt_u32 {s(T0+4)}, 2")
    a("s_cbranch_scc1 L_kround")
    stamp(14)
    E = 32
    a("v_lshlrev_b32 v2, 4, v12")
    a("v_lshl_add_u32 v2, v13, 9, v2")
    a(f"v_add_u32 v2, {s(T0+3)}, v2")
    a("v_and_b32 v3, 1, v12")
    a("v_cmp_eq_u32 vcc, 1, v3")
    for i in range(4):
        a(f"v_mov_b32 {v(E+16+i)}, 0")
    for i in range(4):
        a(f"v_cvt_pk_bf16_f32 {v(E+i)}, {v(KD+2*i)}, {v(KD+2*i+1)}")
    a(f"ds_write_b128 v2, {v(E,4)} offset:32")
    a(f"v_cvt_pk_bf16_f32 {v(E+4)}, {v(KD+8)}, {v(KD+8)}")
    a(f"v_cvt_pk_bf16_f32 {v(E+5)}, {v(KD+8)}, {v(KD+9)}")
    a(f"v_cvt_pk_bf16_f32 {v(E+6)}, {v(KD+9)}, {v(KD+9)}")
    a(f"v_cvt_pk_bf16_f32 {v(E+7)}, {v(KD+10)}, {v(KD+10)}")
    a(f"ds_write_b128 v2, {v(E+4,4)} offset:{32+1024}")
    for n, r0 in enumerate((11, 13)):
        b = E + 8 + 4 * n
        a(f"v_cndmask_b32 v3, {v(KD+r0)}, {v(KD+r0+1)}, vcc")
        a(f"v_cvt_pk_bf16_f32 {v(b)}, {v(KD+r0)}, {v(KD+r0)}")
        a(f"v_mov_b32 {v(b+1)}, {v(b)}")
        a(f"v_cvt_pk_bf16_f32 {v(b+2)}, v3, {v(KD+r0+1)}")
        a(f"v_cvt_pk_bf16_f32 {v(b+3)}, {v(KD+r0+1)}, {v(KD+r0+1)}")
        a(f"ds_write_b128 v2, {v(b,4)} offset:{32+2048+1024*n}")
    a(f"v_mov_b32 v3, {s(T0+3)}")
    a("s_mov_b64 exec, 1")
    a(f"ds_write_b128 v3, {v(E+16,4)}")
    a(f"ds_write_b128 v3, {v(E+16,4)} offset:16")
    for c in range(1, 4):
        a(f"ds_write_b128 v3, {v(E+16,4)} offset:{CST*c}")
    a("s_mov_b64 exec, -1")
    a(f"v_lshlrev_b32 v2, 4, {v(vL)}")
    a(f"v_add_u32 v2, {s(T0+3)}, v2")
    goffs = (1, 65, 129, 193, 194)
    D0 = 56
    for n, go in enumerate(goffs):
        a(f"ds_read_b128 {v(D0+6*n,4)}, v2 offset:{16*go}")
        a(f"ds_read_b64 {v(D0+6*n+4,2)}, v2 offset:{16*go+16}")
    for n, go in enumerate(goffs):
        d = D0 + 6 * n
        t = 96 + 12 * n
        a(f"s_waitcnt lgkmcnt({min(15, 2*(4-n) + 3*n)})")
        for i in range(4):
            a(f"v_alignbit_b32 {v(t+i)}, {v(d+i+1)}, {v(d+i)}, 16")
        for i in range(4):
            a(f"v_mov_b32 {v(t+4+i)}, {v(d+1+i)}")
        for i in range(4):
            a(f"v_alignbit_b32 {v(t+8+i)}, {v(d+i+2)}, {v(d+i+1)}, 16")
        for c in range(1, 4):
            a(f"ds_write_b128 v2, {v(t+4*(c-1),4)} offset:{CST*c+16*go}")
    stamp(2)
    lds_wait(F_RDY, opts.get("urdy", 3), 2, T0)

    a("L_ssm:")
    stamp(7)
    UR = 160
    sS = T0 + 10
    a(f"s_sub_u32 {s(sS)}, {s(sWV)}, 4")
    a("v_subrev_u32 v2, 256, v0")
    a("v_mul_u32_u24 v2, 1152, v2")
    a(f"s_lshl_b32 {s(T0)}, {s(sCH0)}, 1")
    a(f"s_lshl_b32 {s(T0+1)}, {s(sCHS)}, 1")
    a(f"v_add_u32 v3, {s(T0+1)}, v2")
    a(f"v_add_u32 v2, {s(T0)}, v2")
    a(f"v_mov_b32 v4, {s(T0)}")
    a(f"v_mov_b32 v5, {s(T0+1)}")
    a(f"global_load_dword v149, v4, {s(pDSK,2)}")
    a(f"global_load_ushort v150, v5, {s(pDSK,2)}")
    a(f"s_mov_b64 {s(T0+2,2)}, {s(pU,2)}")
    for r in range(8):
        a(f"global_load_dword {v(UR+r)}, v2, {s(T0+2,2)}")
        a(f"global_load_ushort {v(UR+8+r)}, v3, {s(T0+2,2)}")
        if r < 7:
            a(f"s_add_u32 {s(T0+2)}, {s(T0+2)}, {256*1152}")
            a(f"s_addc_u32 {s(T0+3)}, {s(T0+3)}, 0")
    a(f"s_lshr_b32 {s(T0+5)}, s2, 3")
    a(f"s_mul_i32 {s(T0+5)}, {s(T0+5)}, 20736")
    a(f"s_mul_i32 {s(T0+4)}, {s(sS)}, 5248")
    a(f"s_add_u32 {s(T0+4)}, {s(T0+4)}, {s(T0+5)}")
    a(f"v_min_u32 v3, 38, {v(vL)}")
    a("v_lshlrev_b32 v3, 7, v3")
    a(f"v_add_u32 v3, {s(T0+4)}, v3")
    a(f"global_load_dword v151, v3, {s(pWO,2)}")
    stamp(18)
    a(f"s_cmp_lg_u32 {s(sWV)}, 7")
    a("s_cbranch_scc1 L_s1")
    lds_wait4(F_CONS, 1, 2)
    chunk_dma(5)
    a("L_s1:")
    a("v_sub_u32 v2, 511, v0")
    a("v_lshlrev_b32 v2, 1, v2")
    a(f"v_add_u32 v2, {UI}, v2")
    a(f"s_mul_i32 {s(T0)}, {s(sS)}, {U_SZ}")
    a(f"s_min_u32 {s(T0)}, {s(T0)}, {2*U_SZ}")
    a(f"s_add_u32 {s(T0)}, {s(T0)}, {UI+4096}")
    a(f"v_lshlrev_b32 v3, 3, {v(vL)}")
    a(f"v_add_u32 v3, {s(T0)}, v3")
    a("v_mov_b32 v4, 0")
    a("v_mov_b32 v5, 0")
    a("ds_write_b64 v3, v[4:5]")
    a(f"v_and_b32 v6, 15, {v(vL)}")
    a(f"v_lshrrev_b32 v7, 4, {v(vL)}")
    a("v_add_u32 v8, 1, v6")
    a("v_and_b32 v9, 3, v8")
    a("v_sub_u32 v8, v8, v9")
    a("v_lshlrev_b32 v8, 1, v8")
    a(f"s_movk_i32 {s(T0)}, {CST}")
    a(f"v_mad_u32_u24 v8, v9, {s(T0)}, v8")
    a("v_lshl_add_u32 v8, v7, 4, v8")
    a("v_lshlrev_b32 v9, 5, v6")
    a(f"v_sub_u32 v9, {UI+480}, v9")
    a("v_lshl_add_u32 v9, v7, 4, v9")
    a(f"s_lshr_b32 {s(T0)}, {s(sS)}, 1")
    a(f"s_and_b32 {s(T0+1)}, {s(sS)}, 1")
    a(f"s_lshl_b32 {s(T0+1)}, {s(T0+1)}, 8")
    a(f"s_mul_i32 {s(T0+2)}, {s(T0)}, {S_SZ}")
    a(f"s_add_u32 {s(T0+2)}, {s(T0+2)}, {s(T0+1)}")
    a(f"v_add_u32 v10, {s(T0+2)}, v8")
    a(f"s_mul_i32 {s(T0+2)}, {s(T0)}, {U_SZ}")
    a(f"s_add_u32 {s(T0+2)}, {s(T0+2)}, {s(T0+1)}")
    a(f"v_add_u32 v11, {s(T0+2)}, v9")
    a(f"s_lshl_b32 {s(T0+1)}, {s(sS)}, 7")
    a(f"s_add_u32 {s(T0+2)}, {s(T0+1)}, {2*S_SZ}")
    a(f"v_add_u32 v12, {s(T0+2)}, v8")
    a(f"s_add_u32 {s(T0+2)}, {s(T0+1)}, {2*U_SZ}")
    a(f"v_add_u32 v13, {s(T0+2)}, v9")
    CA, CBf, CC, CS = 16, 48, 80, 112
    for i in range(40):
        a(f"v_mov_b32 {v(CC+i)}, 0")
    a("s_waitcnt vmcnt(0)")
    stamp(19)
    a(f"s_cmp_lg_u32 {s(sWV)}, 7")
    a("s_cbranch_scc1 L_s2")
    a(f"v_mov_b32 v4, {F_RDY}")
    a(f"v_mov_b32 v5, 6")
    a("ds_write_b32 v4, v5")
    a("L_s2:")
    for r in range(8):
        a(f"ds_write_b16 v2, {v(UR+r)} offset:{512*(7-r)}")
        a(f"ds_write_b16_d16_hi v2, {v(UR+r)} offset:{U_SZ+512*(7-r)}")
        a(f"ds_write_b16 v2, {v(UR+8+r)} offset:{2*U_SZ+512*(7-r)}")
    lds_add(F_U, 2)
    lds_wait(F_U, 4, 2, T0)
    stamp(20)
    a(f"s_mov_b32 {s(T0+1)}, 4")
    a("L_cl:")

    def conv_block(va, vb, off, kmax, pairs):
        LOOK = 4
        for k in range(kmax + 1 + LOOK):
            if k <= kmax:
                a(f"ds_read_b128 {v(CBf+4*k,4)}, v{vb} offset:{off+512*(7-k)}")
                a(f"ds_read_b64 {v(CA+4*k,2)}, v{va} offset:{off+512*k}")
                a(f"ds_read_b64 {v(CA+4*k+2,2)}, v{va} offset:{off+512*k+8}")
            kk = k - LOOK
            if kk >= 0:
                todo = [p for p in pairs if max(p[1], p[2]) == kk]
                if todo:
                    a(f"s_waitcnt lgkmcnt({3*(min(k, kmax)-kk)})")
                for acc, aa, jj_ in todo:
                    a(f"v_mfma_f32_16x16x32_bf16 {v(acc,4)}, {v(CA+4*aa,4)}, {v(CBf+4*jj_,4)}, {v(acc,4)}")

    conv_block(10, 11, 0, 7, [(CC + 4 * (x + y), x, y) for x in range(8) for y in range(8 - x)])
    a("v_add_u32 v10, 64, v10")
    a("v_add_u32 v11, 64, v11")
    a(f"s_sub_u32 {s(T0+1)}, {s(T0+1)}, 1")
    a(f"s_cmp_lg_u32 {s(T0+1)}, 0")
    a("s_cbranch_scc1 L_cl")
    stamp(21)
    a(f"s_mov_b32 {s(T0+1)}, 2")
    for jj in range(4):
        if jj < 3:
            a(f"s_cmp_lg_u32 {s(sJJ)}, {jj}")
            a(f"s_cbranch_scc1 L_cs{jj+1}")
        i1, i2 = jj, 7 - jj
        pairs = [(CS + 4, x, i2 - x) for x in range(i2 + 1)] + [(CS, x, i1 - x) for x in range(i1 + 1)]
        a(f"L_csl{jj}:")
        conv_block(12, 13, 0, i2, pairs)
        a("v_add_u32 v12, 64, v12")
        a("v_add_u32 v13, 64, v13")
        a(f"s_sub_u32 {s(T0+1)}, {s(T0+1)}, 1")
        a(f"s_cmp_lg_u32 {s(T0+1)}, 0")
        a(f"s_cbranch_scc1 L_csl{jj}")
        if jj < 3:
            a("s_branch L_csd")
            a(f"L_cs{jj+1}:")
    a("L_csd:")
    stamp(22)
    lds_add(F_C1, 14)
    a(f"v_lshlrev_b32 v2, 4, {v(vL)}")
    a(f"s_lshl_b32 {s(T0)}, {s(sS)}, 13")
    a(f"s_add_u32 {s(T0)}, {s(T0)}, {CB}")
    a(f"v_add_u32 v3, {s(T0)}, v2")
    a(f"s_lshl_b32 {s(T0)}, {s(sS)}, 11")
    a(f"s_add_u32 {s(T0+1)}, {s(T0)}, {CB+32768}")
    a(f"v_add_u32 v4, {s(T0+1)}, v2")
    a(f"s_add_u32 {s(T0+1)}, {s(T0)}, {CB}")
    a(f"v_add_u32 v5, {s(T0+1)}, v2")
    lds_wait(F_C1, 4, 14, T0)
    for i in range(8):
        a(f"ds_write_b128 v3, {v(CC+4*i,4)} offset:{1024*i}")
    for i in range(2):
        a(f"ds_write_b128 v4, {v(CS+4*i,4)} offset:{1024*i}")
    lds_add(F_C2, 14)
    a(f"s_lshr_b32 {s(T0)}, {s(sS)}, 1")
    a(f"s_and_b32 {s(T0+1)}, {s(sS)}, 1")
    a(f"s_lshl_b32 {s(T0+2)}, {s(T0)}, 10")
    a(f"s_lshl_b32 {s(T0+3)}, {s(T0+1)}, 3")
    a(f"s_add_u32 {s(T0+2)}, {s(T0+2)}, {s(T0+3)}")
    a(f"s_add_u32 {s(T0+2)}, {s(T0+2)}, {CB+32768}")
    a(f"v_add_u32 v4, {s(T0+2)}, v2")
    a("v_lshlrev_b32 v8, 5, v6")
    a("v_lshl_add_u32 v8, v7, 3, v8")
    a(f"s_lshl_b32 {s(T0+2)}, {s(sS)}, 10")
    a(f"s_sub_u32 {s(T0+2)}, {UI+4088-512}, {s(T0+2)}")
    a(f"v_sub_u32 v9, {s(T0+2)}, v8")
    a(f"s_sub_u32 {s(T0+2)}, 7, {s(sJJ)}")
    a(f"s_cmp_eq_u32 {s(T0)}, 0")
    a(f"s_cselect_b32 {s(T0+4)}, {s(sJJ)}, {s(T0+2)}")
    a(f"s_lshl_b32 {s(T0+2)}, {s(T0+4)}, 9")
    a(f"s_lshl_b32 {s(T0+3)}, {s(T0+1)}, 2")
    a(f"s_add_u32 {s(T0+2)}, {s(T0+2)}, {s(T0+3)}")
    a(f"s_sub_u32 {s(T0+2)}, {UI+2*U_SZ+4092}, {s(T0+2)}")
    a(f"v_sub_u32 v10, {s(T0+2)}, v8")
    a(f"s_movk_i32 {s(T0+2)}, 1152")
    a(f"v_mul_lo_u32 v11, v8, {s(T0+2)}")
    srd(SRA, pOUT, 2048 * 2304)
    a(f"s_mul_i32 {s(T0+5)}, {s(sS)}, {512*2304}")
    a(f"s_lshl_b32 {s(T0+2)}, {s(sCH0)}, 1")
    a(f"s_add_u32 {s(T0+5)}, {s(T0+5)}, {s(T0+2)}")
    a(f"s_add_u32 {s(T0+5)}, {s(T0+5)}, 1152")
    a(f"s_mul_i32 {s(T0+6)}, {s(T0+4)}, {256*2304}")
    a(f"s_mul_i32 {s(T0+2)}, {s(T0+1)}, {2*2304}")
    a(f"s_add_u32 {s(T0+6)}, {s(T0+6)}, {s(T0+2)}")
    a(f"s_lshl_b32 {s(T0+2)}, {s(sCHS)}, 1")
    a(f"s_add_u32 {s(T0+6)}, {s(T0+6)}, {s(T0+2)}")
    a(f"s_add_u32 {s(T0+6)}, {s(T0+6)}, 1152")
    a("v_lshlrev_b32 v12, 16, v149")
    a("v_and_b32 v13, 0xffff0000, v149")
    a("v_lshlrev_b32 v150, 16, v150")
    lds_wait(F_C2, 4, 14, T0)
    Y, UU, YS = 16, 48, 56
    for tl in range(2):
        for src in range(4):
            a(f"ds_read_b128 {v(Y+16*tl+4*src,4)}, v5 offset:{8192*src+1024*tl}")
    for tl in range(2):
        for ch in range(2):
            a(f"ds_read_b64 {v(UU+4*tl+2*ch,2)}, v9 offset:{U_SZ*ch+512*(1-tl)}")
    for src in range(4):
        a(f"ds_read_b64 {v(YS+2*src,2)}, v4 offset:{2048*src}")
    a("ds_read_b32 v64, v10")
    lds_add(F_C1, 14)
    a("s_waitcnt lgkmcnt(0)")
    for tl in range(2):
        for ch in range(2):
            y = Y + 16 * tl + 8 * ch
            a(f"v_pk_add_f32 {v(y,2)}, {v(y,2)}, {v(y+4,2)}")
            a(f"v_pk_add_f32 {v(y+2,2)}, {v(y+2,2)}, {v(y+6,2)}")
            u_ = UU + 4 * tl + 2 * ch
            a(f"v_and_b32 {v(y+4)}, 0xffff0000, {v(u_+1)}")
            a(f"v_lshlrev_b32 {v(y+5)}, 16, {v(u_+1)}")
            a(f"v_and_b32 {v(y+6)}, 0xffff0000, {v(u_)}")
            a(f"v_lshlrev_b32 {v(y+7)}, 16, {v(u_)}")
            for r in range(4):
                a(f"v_fmac_f32 {v(y+r)}, {v(y+4+r)}, v{12+ch}")
        for r in range(4):
            y = Y + 16 * tl
            a(f"v_cvt_pk_bf16_f32 {v(130+4*tl+r)}, {v(y+r)}, {v(y+8+r)}")
    a(f"v_pk_add_f32 {v(YS,2)}, {v(YS,2)}, {v(YS+2,2)}")
    a(f"v_pk_add_f32 {v(YS+4,2)}, {v(YS+4,2)}, {v(YS+6,2)}")
    a(f"v_pk_add_f32 {v(YS,2)}, {v(YS,2)}, {v(YS+4,2)}")
    a(f"v_and_b32 v65, 0xffff0000, v64")
    a(f"v_lshlrev_b32 v64, 16, v64")
    a(f"v_fmac_f32 {v(YS)}, v65, v150")
    a(f"v_fmac_f32 {v(YS+1)}, v64, v150")
    a(f"v_cvt_pk_bf16_f32 v138, {v(YS)}, {v(YS+1)}")
    stamp(23)
    a(f"s_cmp_lg_u32 {s(sWV)}, 7")
    a("s_cbranch_scc1 L_s3")
    a(f"v_lshlrev_b32 v14, 4, {v(vL)}")
    lds_wait4(F_CONS, 3, 2)
    chunk_dma(6)
    lds_wait4(F_CONS, 4, 2)
    chunk_dma(7)
    a("s_waitcnt vmcnt(19)")
    set_rdy(7)
    a("s_waitcnt vmcnt(0)")
    set_rdy(8)
    a("L_s3:")
    for tl in range(2):
        for r in range(4):
            a(f"s_add_u32 {s(T0+2)}, {s(T0+5)}, {(256*tl+r)*2304}")
            a(f"buffer_store_dword {v(130+4*tl+r)}, v11, {s(SRA,4)}, {s(T0+2)} offen")
    a(f"buffer_store_short v138, v11, {s(SRA,4)}, {s(T0+6)} offen")
    a(f"buffer_store_short_d16_hi v138, v11, {s(SRA,4)}, {s(T0+6)} offen offset:2304")
    stamp(8)

    lds_wait(F_C1, 8, 2, T0)
    lds_wait4(F_CONS, 2, 2)
    srd(SRB, pWO, 576 * 1152)
    w_dma(SRB, WO_M, WO_X, True, sS)
    proj_setup(ACC, WO_M, WO_X)
    a(f"v_and_b32 v2, 15, {v(vL)}")
    a(f"v_lshrrev_b32 v3, 4, {v(vL)}")
    a(f"v_mul_u32_u24 v2, 160, v2")
    a("v_lshl_add_u32 v2, v3, 3, v2")
    a(f"s_mul_i32 {s(T0)}, {s(sS)}, 2560")
    a(f"s_add_u32 {s(T0)}, {s(T0)}, {OT}")
    a(f"v_add_u32 v249, {s(T0)}, v2")
    for i in range(3):
        a(f"v_add_u32 v4, {64*i}, {v(vL)}")
        a("v_mul_u32_u24 v5, 7282, v4")
        a("v_lshrrev_b32 v5, 16, v5")
        a("v_mul_u32_u24 v6, 9, v5")
        a("v_sub_u32 v6, v4, v6")
        a("v_lshlrev_b32 v6, 4, v6")
        a(f"v_mul_u32_u24 v7, 160, v5")
        a(f"v_add3_u32 v{8+i}, v7, v6, {s(T0)}")
        a(f"v_mul_u32_u24 v7, 2304, v5")
        a(f"v_add_u32 v{11+i}, v7, v6")
    a(f"s_lshl_b32 {s(T0)}, {s(sQB)}, 2")
    a(f"s_add_u32 {s(T0)}, {s(T0)}, {s(sS)}")
    a(f"s_mul_i32 {s(T0+8)}, {s(T0)}, {16*2304}")
    a(f"s_mul_i32 {s(T0+1)}, {s(sG)}, 144")
    a(f"s_add_u32 {s(T0+8)}, {s(T0+8)}, {s(T0+1)}")
    a(f"s_mul_i32 {s(T0)}, {s(T0)}, 18432")
    a(f"s_add_u32 {s(T0)}, {s(T0)}, {WS_O}")
    a(f"v_lshlrev_b32 v14, 4, {v(vL)}")
    a(f"v_add_u32 v14, {s(T0)}, v14")
    a(f"v_bfe_u32 v3, {v(vL)}, 1, 3")
    a("v_lshlrev_b32 v3, 7, v3")
    a(f"v_and_b32 v4, 1, {v(vL)}")
    a("v_lshl_add_u32 v3, v4, 2, v3")
    a(f"s_lshl_b32 {s(T0)}, {s(sQB)}, 10")
    a(f"s_and_b32 {s(T0+1)}, {s(sS)}, 2")
    a(f"s_lshl_b32 {s(T0+1)}, {s(T0+1)}, 2")
    a(f"s_add_u32 {s(T0)}, {s(T0)}, {s(T0+1)}")
    a(f"s_add_u32 {s(T0)}, {s(T0)}, {WS_FO}")
    a(f"v_add_u32 v15, {s(T0)}, v3")
    a("s_waitcnt vmcnt(0)")
    lds_add(F_WO, 2)
    lds_wait(F_WO, 4, 2, T0)
    stamp(24)
    NST = 32

    def wf(st_):
        if st_ == -1:
            lds_wait4(F_CONS, 8, 2)
            stamp(25)
            poll(15, 2, "L_pollo")
            stamp(26)
            for k in range(18):
                a(f"global_load_dwordx4 {v(XF+4*k,4)}, v14, {s(pWS,2)} offset:{1024*(k%4)} sc1")
                if k % 4 == 3:
                    a("v_add_u32 v14, 4096, v14")
        else:
            a(f"s_waitcnt vmcnt({17-st_})")
    proj_run(XF, ACC, ST, NST, NST - 1, wf)
    stamp(27)
    for ct in range(5):
        b = ACC + 4 * ct
        a(f"v_cvt_pk_bf16_f32 {v(b)}, {v(b)}, {v(b+1)}")
        a(f"v_cvt_pk_bf16_f32 {v(b+1)}, {v(b+2)}, {v(b+3)}")
        a(f"ds_write_b64 v249, {v(b,2)} offset:{32*ct}")
    for i in range(3):
        a(f"ds_read_b128 {v(16+4*i,4)}, v{8+i}")
    for i in range(3):
        a(f"s_waitcnt lgkmcnt({2-i})")
        if i == 2:
            a("s_mov_b64 exec, 0xffff")
        a(f"buffer_store_dwordx4 {v(16+4*i,4)}, v{11+i}, {s(SRA,4)}, {s(T0+8)} offen")
    a("s_mov_b64 exec, -1")
    a(f"s_cmp_lg_u32 s2, 0")
    a("s_cbranch_scc1 L_fin")
    a(f"s_cmp_lg_u32 {s(sWV)}, 7")
    a("s_cbranch_scc1 L_fin")
    a("v_mov_b32 v4, 0")
    a(f"v_mov_b32 v5, {s(sTAG)}")
    a("s_mov_b64 exec, 1")
    a(f"global_store_dword v4, v5, {s(pWS,2)}")
    a("s_mov_b64 exec, -1")
    a("L_fin:")
    if probe is not None:
        a("s_waitcnt vmcnt(0)")
        stamp(10)
        if opts.get("wb"):
            a("s_sleep 127")
            a("s_sleep 127")
            a("s_sleep 127")
            a("buffer_wbl2 sc1")
            a("s_waitcnt vmcnt(0)")
        a("s_sub_u32 s98, s98, s96")
        a("s_lshl_b32 s98, s98, 2")
        a("s_add_u32 s98, s98, 6000")
        a("L_probe:")
        a("s_sleep 4")
        a("s_memrealtime s[94:95]")
        a("s_waitcnt lgkmcnt(0)")
        a("s_sub_u32 s94, s94, s96")
        a("s_cmp_lt_u32 s94, s98")
        a("s_cbranch_scc1 L_probe")
    if stamps:
        a("s_waitcnt vmcnt(0)")
        stamp(10)
        a(f"s_lshl_b32 {s(T0)}, s2, 11")
        a(f"s_add_u32 {s(T0)}, {s(T0)}, {WS_DBG}")
        a(f"v_lshlrev_b32 v4, 2, v0")
        a(f"v_add_u32 v4, {s(T0)}, v4")
        a(f"global_store_dword v4, v255, {s(pWS,2)}")
    a("L_exit:")
    a("s_endpgm")

    lines, nins = fix_hazards(a.L, verbose=opts.get("verbose", False))
    hdr = [ln.rstrip("\n") for ln in open(REF) if ln.startswith(";") and "@launch" not in ln]
    txt = "\n".join(hdr) + f"\n; @launch grid=(256,1,1) block=(512,1,1) lds={LDS_TOTAL}\n"
    txt += '.amdgcn_target "amdgcn-amd-amdhsa--gfx950"\n.text\n'
    txt += f".globl {kname}\n.p2align 8\n.type {kname},@function\n"
    txt += "\n".join(lines) + "\n"
    txt += f""".section .rodata,"a"
.p2align 6
.amdhsa_kernel {kname}
  .amdhsa_next_free_vgpr 256
  .amdhsa_next_free_sgpr 102
  .amdhsa_accum_offset 256
  .amdhsa_group_segment_fixed_size 0
  .amdhsa_kernarg_size 136
  .amdhsa_user_sgpr_count 2
  .amdhsa_user_sgpr_kernarg_segment_ptr 1
  .amdhsa_system_sgpr_workgroup_id_x 1
.end_amdhsa_kernel
"""
    size = text_size(txt.replace("CODE_END_OFF", "0x12345"))
    txt = txt.replace("CODE_END_OFF", str((size - 256) & ~3))
    print("code bytes", size)
    return txt, nins


if __name__ == "__main__":
    out = sys.argv[1] if len(sys.argv) > 1 else f"cdna_kernels/{NAME}.s"
    opts = {}
    for x in sys.argv[2:]:
        k, _, val = x.partition("=")
        opts[k] = int(val) if val else 1
    txt, n = gen(opts)
    open(out, "w").write(txt)
    print("wrote", out, "bytes", len(txt), "nop states inserted", n)
```

```python
import sys, os, math, struct
sys.path.insert(0, os.path.dirname(os.path.abspath(__file__)))
from asmlib import *

NAME = "concat_heads__grouped_kv_mqa__ssm_conv_s4__prompt"
REF = f"cdna_kernels/{NAME}.s.ref"


def f32(x):
    return "0x%08x" % struct.unpack("<I", struct.pack("<f", x))[0]


LOG2E = 1.4426950408889634
QSCALE = LOG2E * (18 ** -0.5)

S_SZ = 17408
XW = 52224
WX = 125952
WK = 135424
QI = 135424
QST = 144
FL = 163584
UI = 52224
U_SZ = 4608
CB = 0
CH_SZ = 18944
SLOT0 = 68864
SLOTSEQ = [4, 0, 1, 2, 3, 4, 1, 2]
WO_M = 0
WO_X = 73728
OT = 125696
LDS_TOTAL = 163840
CST = 4160
F_XP, F_KVD, F_QW, F_QD, F_U, F_C1, F_C2, F_TAG, F_XO = [FL + 4 * i for i in range(9)]
F_CONS = FL + 48
F_WK = FL + 64
F_WO = FL + 80
F_RDY = FL + 96
F_WQ = FL + 144

WS_FKV = 4096
WS_FO = 0x300000
WS_KV = 0x20000
WS_O = 0x50000
WS_DBG = 0x400000

sWV, sQB, sG, sCID, sTAG = 3, 4, 5, 6, 7
SRA, SRB = 8, 12
pX, pWQ, pWK, pWV, pWO, pU, pARE, pAIM, pBRE, pBIM, pCRE, pCIM, pLDT, pDSK, pOUT, pDBG, pWS = range(16, 50, 2)
sCH0, sCHS, sJJ, sXCD = 50, 51, 52, 53
T0 = 54
sPW, sG144 = 80, 81
sPC = 82
vZ = 254

vL = 1


def gen(opts):
    a = Asm()
    stamps = opts.get("stamps", 0)
    SLP = opts.get("sleep", 1)

    probe = opts.get("probe", None)
    YF = ["", " nt", " sc1", " sc0 sc1", " sc0"][opts.get("yf", 0)]
    OF = ["", " nt", " sc1", " sc0 sc1", " sc0"][opts.get("of", 0)]
    fast = opts.get("fast", None)

    def stamp(i, dyn=None):
        if probe is not None:
            if i == 0:
                a("s_memrealtime s[96:97]")
                a("s_waitcnt lgkmcnt(0)")
                a("s_mov_b32 s98, s96")
            elif i == probe:
                a("s_memrealtime s[98:99]")
                a("s_waitcnt lgkmcnt(0)")
        if fast is not None:
            if i in fast and dyn is None:
                k = fast.index(i)
                a(f"s_memrealtime {s(84+2*k,2)}")
            return
        if stamps:
            a("s_memrealtime s[100:101]")
            if dyn is not None:
                a(f"s_add_u32 s99, {s(dyn)}, {i}")
            a("s_waitcnt lgkmcnt(0)")
            if dyn is not None:
                a("s_mov_b32 m0, s99")
                a("v_writelane_b32 v255, s100, m0")
            else:
                a(f"v_writelane_b32 v255, s100, {i}")

    def lds_wait(addr, val, vt, st, slp=1):
        lab = a.label("Lspin")
        a(f"v_mov_b32 {v(vt+1)}, {addr}")
        a(f"s_branch {lab}_e")
        a(f"{lab}:")
        a(f"s_sleep {slp}")
        a(f"{lab}_e:")
        a(f"ds_read_b32 {v(vt)}, {v(vt+1)}")
        a("s_waitcnt lgkmcnt(0)")
        a(f"v_readfirstlane_b32 {s(st)}, {v(vt)}")
        a(f"s_cmp_lt_u32 {s(st)}, {val}")
        a(f"s_cbranch_scc1 {lab}")

    def lds_wait4(addr, val, vt, slp=8):
        lab = a.label("Lspin")
        a(f"v_and_b32 {v(vt+1)}, 3, {v(vL)}")
        a(f"v_lshlrev_b32 {v(vt+1)}, 2, {v(vt+1)}")
        a(f"v_add_u32 {v(vt+1)}, {addr}, {v(vt+1)}")
        a(f"s_branch {lab}_e")
        a(f"{lab}:")
        a(f"s_sleep {slp}")
        a(f"{lab}_e:")
        a(f"ds_read_b32 {v(vt)}, {v(vt+1)}")
        a("s_waitcnt lgkmcnt(0)")
        a(f"v_cmp_gt_u32 vcc, {val}, {v(vt)}")
        a(f"s_cbranch_vccnz {lab}")

    def lds_add(addr, vt):
        a(f"v_mov_b32 {v(vt)}, {addr}")
        a(f"v_mov_b32 {v(vt+1)}, 1")
        a("s_mov_b64 exec, 1")
        a(f"ds_add_u32 {v(vt)}, {v(vt+1)}")
        a("s_mov_b64 exec, -1")

    def srd(r, p, nbytes):
        a(f"s_mov_b32 {s(r)}, {s(p)}")
        a(f"s_and_b32 {s(r+1)}, {s(p+1)}, 0xffff")
        a(f"s_mov_b32 {s(r+2)}, {nbytes}")
        a(f"s_mov_b32 {s(r+3)}, 0x20000")

    def poll(vaddr, vt, lab, n=1, stride=0):
        a(f"s_mov_b32 {s(T0)}, 0")
        a(f"s_branch {lab}_e")
        a(f"{lab}:")
        a("s_sleep 2")
        a(f"{lab}_e:")
        for i in range(n):
            a(f"global_load_dword {v(vt+i)}, {v(vaddr+i)}, {s(pWS,2)} sc1")
        a(f"s_add_u32 {s(T0)}, {s(T0)}, 1")
        a("s_waitcnt vmcnt(0)")
        for i in range(n):
            a(f"v_xor_b32 {v(vt+i)}, {s(sTAG)}, {v(vt+i)}")
        for i in range(1, n):
            a(f"v_or_b32 {v(vt)}, {v(vt)}, {v(vt+i)}")
        a(f"v_cmp_ne_u32 vcc, 0, {v(vt)}")
        a(f"s_cmp_gt_u32 {s(T0)}, 0x100000")
        a(f"s_cbranch_scc1 {lab}_d")
        a(f"s_cbranch_vccnz {lab}")
        a(f"{lab}_d:")

    def dflag(addr):
        if isinstance(addr, int):
            a(f"s_mov_b32 m0, {addr}")
        else:
            a(addr)
        a("s_mov_b64 exec, 1")
        a(f"global_load_lds_dword {v(vZ)}, {s(sPC,2)}")
        a("s_mov_b64 exec, -1")

    def gettag(vt):
        a(f"v_mov_b32 {v(vt)}, {F_TAG}")
        a(f"ds_read_b32 {v(vt)}, {v(vt)}")
        a("s_waitcnt lgkmcnt(0)")
        a(f"v_readfirstlane_b32 {s(sTAG)}, {v(vt)}")

    def lds_set(addr, val, vt):
        a(f"v_mov_b32 {v(vt)}, {addr}")
        a(f"v_mov_b32 {v(vt+1)}, {val}")
        a(f"ds_write_b32 {v(vt)}, {v(vt+1)}")

    def wo_dma(sW):
        a(f"v_lshrrev_b32 v2, 3, {v(vL)}")
        a(f"v_and_b32 v3, 7, {v(vL)}")
        a("v_and_b32 v4, 2, v2")
        a("v_xor_b32 v4, v3, v4")
        a(f"s_and_b32 {s(T0)}, {s(sW)}, 1")
        a(f"s_lshl_b32 {s(T0)}, {s(T0)}, 2")
        a(f"v_xor_b32 v4, {s(T0)}, v4")
        a("v_lshlrev_b32 v4, 4, v4")
        a(f"s_movk_i32 {s(T0)}, 1152")
        a(f"v_mad_u32_u24 v5, v2, {s(T0)}, v4")
        a("v_lshrrev_b32 v7, 1, v2")
        a("v_mul_u32_u24 v7, 18, v7")
        a("v_and_b32 v8, 1, v2")
        a("v_add_u32 v7, v7, v8")
        a(f"v_mad_u32_u24 v6, v7, {s(T0)}, v4")
        a("v_mul_u32_u24 v10, 1152, v3")
        a("v_add_u32 v10, 128, v10")
        a("v_lshrrev_b32 v7, 1, v3")
        a("v_mul_u32_u24 v7, 18, v7")
        a("v_and_b32 v8, 1, v3")
        a("v_add_u32 v7, v7, v8")
        a("v_mul_u32_u24 v11, 1152, v7")
        a("v_add_u32 v11, 128, v11")
        a(f"s_mul_i32 {s(T0+3)}, {s(sW)}, 18432")
        a(f"s_lshl_b32 {s(T0+4)}, {s(sW)}, 7")
        a(f"s_mov_b32 {s(T0+6)}, {s(sW)}")
        a(f"s_mov_b32 {s(T0+7)}, 0")
        lab = a.label("Lwo")
        a(f"{lab}:")
        a(f"s_mul_i32 {s(T0+1)}, {s(T0+6)}, 7282")
        a(f"s_lshr_b32 {s(T0+1)}, {s(T0+1)}, 16")
        a(f"s_mul_i32 {s(T0+2)}, {s(T0+1)}, 9")
        a(f"s_sub_u32 {s(T0+2)}, {s(T0+6)}, {s(T0+2)}")
        a(f"s_mul_i32 {s(T0+1)}, {s(T0+1)}, 72")
        a(f"s_mul_i32 {s(T0+5)}, {s(T0+2)}, 9")
        a(f"s_and_b32 {s(T0+8)}, {s(T0+2)}, 1")
        a(f"s_sub_u32 {s(T0+5)}, {s(T0+5)}, {s(T0+8)}")
        a(f"s_cmp_eq_u32 {s(T0+2)}, 8")
        a(f"s_cselect_b32 {s(T0+5)}, 16, {s(T0+5)}")
        a(f"s_cselect_b64 vcc, -1, 0")
        a(f"s_add_u32 {s(T0+5)}, {s(T0+5)}, {s(T0+1)}")
        a(f"s_mul_i32 {s(T0+5)}, {s(T0+5)}, 1152")
        a(f"s_add_u32 {s(T0+5)}, {s(T0+5)}, {s(sG144)}")
        a("v_cndmask_b32 v7, v5, v6, vcc")
        a(f"s_add_u32 m0, {s(T0+3)}, {WO_M}")
        a(f"s_add_u32 {s(T0+3)}, {s(T0+3)}, 1024")
        a(f"buffer_load_dwordx4 v7, {s(SRB,4)}, {s(T0+5)} offen lds")
        a("v_cndmask_b32 v8, v10, v11, vcc")
        a(f"s_add_u32 m0, {s(T0+4)}, {WO_X}")
        a(f"s_add_u32 {s(T0+4)}, {s(T0+4)}, 512")
        a("s_mov_b64 exec, 0xff")
        a(f"buffer_load_dwordx4 v8, {s(SRB,4)}, {s(T0+5)} offen lds")
        a("s_mov_b64 exec, -1")
        a(f"s_add_u32 {s(T0+6)}, {s(T0+6)}, 4")
        a(f"s_cmp_lt_u32 {s(T0+6)}, 72")
        a(f"s_cbranch_scc1 {lab}")

    def proj_setup(ACC, ldsM, ldsX, rot=False):
        a(f"v_lshrrev_b32 v2, 4, {v(vL)}")
        a(f"v_bfe_u32 v3, {v(vL)}, 2, 2")
        a(f"v_and_b32 v4, 3, {v(vL)}")
        a("v_lshrrev_b32 v6, 1, v3")
        a("v_and_b32 v7, 1, v2")
        a("v_lshl_or_b32 v6, v7, 1, v6")
        if rot:
            a(f"v_subrev_u32 v5, {s(sPW)}, v2")
            a("v_add_u32 v5, 3, v5")
            a("v_and_b32 v5, 3, v5")
            a("v_mul_u32_u24 v5, 2304, v5")
        else:
            a("v_mul_u32_u24 v5, 2304, v2")
        a("v_lshl_add_u32 v5, v3, 4, v5")
        a("v_lshlrev_b32 v7, 3, v5")
        a("v_lshl_add_u32 v7, v4, 3, v7")
        a(f"v_add_u32 v7, {ldsM}, v7")
        a("v_and_b32 v4, 1, v4")
        a("v_lshl_add_u32 v5, v2, 3, v3")
        a("v_lshlrev_b32 v5, 4, v5")
        a("v_lshl_add_u32 v244, v4, 3, v5")
        a(f"v_add_u32 v244, {ldsX}, v244")
        for ct in range(4):
            a(f"v_xor_b32 v2, {ct}, v6")
            a(f"v_lshl_add_u32 v{240+ct}, v2, 5, v7")
        for i in range(20):
            a(f"v_mov_b32 {v(ACC+i)}, 0")

    def proj_run(XF, ACC, ST, NST, pre, wait_fn, rwait_fn=None, rev=False):
        def rd(f):
            st_, ct = divmod(f, 5)
            if rwait_fn and ct == 0:
                rwait_fn(st_)
            b = ST + 4 * (f % NST)
            if ct < 4:
                o = 1024 * ((17 - st_) if rev else st_)
                a(f"ds_read_b64_tr_b16 {v(b,2)}, v{240+ct} offset:{o}")
                a(f"ds_read_b64_tr_b16 {v(b+2,2)}, v{240+ct} offset:{o+512}")
            else:
                a(f"ds_read_b64_tr_b16 {v(b,2)}, v244 offset:{512*st_}")
                a(f"ds_read_b64_tr_b16 {v(b+2,2)}, v244 offset:{512*st_+64}")
        for f in range(pre):
            rd(f)
        wait_fn(-1)
        W = opts.get("pw", 3)
        for f in range(90):
            st_, ct = divmod(f, 5)
            if ct == 0:
                wait_fn(st_)
            if f % W == 0:
                issued = min(90, f + pre)
                needed = min(90, f + W)
                a(f"s_waitcnt lgkmcnt({min(15, 2*(issued-needed))})")
            b = ST + 4 * (f % NST)
            a(f"v_mfma_f32_16x16x32_bf16 {v(ACC+4*ct,4)}, {v(b,4)}, {v(XF+4*st_,4)}, {v(ACC+4*ct,4)}")
            if f + pre < 90:
                rd(f + pre)

    kname = NAME + "_kernel"
    a(f"{kname}:")
    if stamps:
        a("v_mov_b32 v255, 0")
    if fast is not None:
        for k in range(1, len(fast)):
            a(f"s_mov_b32 {s(84+2*k)}, 0")
    stamp(0)
    a("s_cmp_ge_u32 s2, 256")
    a("s_cbranch_scc1 L_exit")
    a("s_load_dwordx16 s[16:31], s[0:1], 0")
    a("s_load_dwordx16 s[32:47], s[0:1], 64")
    a("s_load_dwordx2 s[48:49], s[0:1], 128")
    a(f"s_getpc_b64 {s(sPC,2)}")
    a(f"v_lshrrev_b32 v2, 6, v0")
    a(f"v_mov_b32 {v(vZ)}, 0")
    a(f"v_and_b32 {v(vL)}, 63, v0")
    a(f"v_readfirstlane_b32 {s(sWV)}, v2")
    a(f"s_and_b32 {s(sXCD)}, s2, 7")
    a(f"s_lshr_b32 {s(T0+1)}, s2, 3")
    a(f"s_and_b32 {s(T0+2)}, {s(T0+1)}, 3")
    a(f"s_lshl_b32 {s(sQB)}, {s(sXCD)}, 2")
    a(f"s_add_u32 {s(sQB)}, {s(sQB)}, {s(T0+2)}")
    a(f"s_lshr_b32 {s(sG)}, {s(T0+1)}, 2")
    a(f"s_lshl_b32 {s(sCID)}, {s(sXCD)}, 5")
    a(f"s_add_u32 {s(sCID)}, {s(sCID)}, {s(T0+1)}")
    a(f"s_cmp_lg_u32 {s(sWV)}, 6")
    a("s_cbranch_scc1 L_e1")
    a(f"s_and_b32 {s(T0+3)}, {s(T0+1)}, 15")
    a(f"s_lshl_b32 {s(T0+3)}, {s(T0+3)}, 11")
    a(f"v_and_b32 v2, 15, {v(vL)}")
    a(f"v_lshlrev_b32 v2, 7, v2")
    a(f"v_add_u32 v2, {s(T0+3)}, v2")
    a(f"v_min_u32 v2, CODE_END_OFF, v2")
    a(f"global_load_dword v253, v2, {s(sPC,2)}")
    a(f"v_lshlrev_b32 v2, 2, {v(vL)}")
    a(f"v_add_u32 v2, {FL}, v2")
    a("v_mov_b32 v4, 0")
    a("ds_write_b32 v2, v4")
    a("L_e1:")
    a(f"s_lshr_b32 {s(T0)}, {s(sCID)}, 2")
    a(f"s_and_b32 {s(sJJ)}, {s(sCID)}, 3")
    a(f"s_mul_i32 {s(T0+1)}, {s(T0)}, 9")
    a(f"s_and_b32 {s(T0+2)}, {s(T0)}, 1")
    a(f"s_lshl_b32 {s(sCH0)}, {s(sJJ)}, 1")
    a(f"s_add_u32 {s(sCH0)}, {s(sCH0)}, {s(T0+1)}")
    a(f"s_add_u32 {s(sCH0)}, {s(sCH0)}, {s(T0+2)}")
    a(f"s_cmp_eq_u32 {s(T0+2)}, 0")
    a(f"s_cselect_b32 {s(sCHS)}, 8, 0")
    a(f"s_add_u32 {s(sCHS)}, {s(sCHS)}, {s(T0+1)}")
    a(f"s_lshr_b32 {s(sPW)}, {s(sG)}, 1")
    a(f"s_mul_i32 {s(sG144)}, {s(sG)}, 144")
    a(f"s_sub_u32 {s(T0)}, {s(sWV)}, 4")
    a(f"s_cmp_lt_u32 {s(T0)}, 3")
    a("s_cbranch_scc1 L_h0")
    a(f"v_lshrrev_b32 v2, 3, {v(vL)}")
    a(f"v_xor_b32 v2, v2, {v(vL)}")
    a("v_lshlrev_b32 v2, 4, v2")
    a(f"s_cmp_eq_u32 {s(sWV)}, 7")
    a(f"s_cselect_b32 {s(T0+2)}, {s(sPW)}, {s(sWV)}")
    a(f"s_cselect_b32 {s(T0+3)}, 1, 0")
    a(f"s_mul_i32 {s(T0+1)}, {s(T0+2)}, 18432")
    a(f"s_mul_i32 {s(T0)}, {s(sQB)}, 73728")
    a(f"s_add_u32 {s(T0)}, {s(T0)}, {s(T0+1)}")
    a(f"s_sub_u32 {s(T0+4)}, {s(T0+2)}, {s(sPW)}")
    a(f"s_and_b32 {s(T0+4)}, {s(T0+4)}, 3")
    a(f"s_cmp_eq_u32 {s(T0+4)}, 0")
    a("s_cbranch_scc1 L_x0")
    a(f"s_sub_u32 {s(T0+4)}, {s(T0+4)}, 1")
    a(f"s_mul_i32 {s(T0+1)}, {s(T0+4)}, 18432")
    a(f"s_mov_b32 {s(T0+8)}, {s(T0+1)}")
    a(f"s_lshl_b32 {s(T0+5)}, {s(T0+4)}, 6")
    a(f"v_add_u32 v3, {s(T0+5)}, {v(vL)}")
    a("v_mul_u32_u24 v4, 21846, v3")
    a("v_lshrrev_b32 v4, 16, v4")
    a("v_mul_u32_u24 v5, 3, v4")
    a("v_sub_u32 v5, v3, v5")
    a("v_lshlrev_b32 v5, 4, v5")
    a("v_min_u32 v5, 20, v5")
    a(f"v_mad_u32_u24 v6, v4, 36, v5")
    a(f"s_lshl_b32 {s(T0+5)}, {s(T0+4)}, 10")
    a(f"s_and_b32 {s(T0+6)}, {s(sQB)}, 3")
    a(f"s_cmp_eq_u32 {s(T0+6)}, 3")
    a(f"s_cselect_b32 {s(T0+6)}, 0, {s(T0+6)}")
    for k in range(3):
        a(f"s_mul_i32 {s(T0+7)}, {s(T0+6)}, 6912")
        a(f"v_add_u32 v{8+k}, {s(T0+7)}, v6")
        a(f"s_mul_i32 {s(T0+9+k)}, {s(T0+6)}, 9216")
        a(f"s_add_u32 {s(T0+9+k)}, {s(T0+9+k)}, {s(T0+5)}")
        if k < 2:
            a(f"s_add_u32 {s(T0+6)}, {s(T0+6)}, 1")
            a(f"s_cmp_eq_u32 {s(T0+6)}, 3")
            a(f"s_cselect_b32 {s(T0+6)}, 0, {s(T0+6)}")
    a(f"s_lshr_b32 {s(T0+6)}, s2, 3")
    a(f"s_mul_i32 {s(T0+6)}, {s(T0+6)}, 3")
    a(f"s_add_u32 {s(T0+4)}, {s(T0+4)}, {s(T0+6)}")
    a(f"s_mul_i32 {s(T0+4)}, {s(T0+4)}, 6912")
    a(f"v_min_u32 v3, 53, {v(vL)}")
    a("v_lshlrev_b32 v3, 7, v3")
    a(f"v_add_u32 v3, {s(T0+4)}, v3")
    a(f"s_bitcmp1_b32 {s(sG)}, 0")
    a("s_waitcnt lgkmcnt(0)")
    a(f"s_cselect_b32 {s(T0+6)}, {s(pWV)}, {s(pWK)}")
    a(f"s_cselect_b32 {s(T0+7)}, {s(pWV+1)}, {s(pWK+1)}")
    for j in range(9):
        a(f"s_add_u32 m0, {s(T0+9+j//3)}, {WK+3072*(j%3)}")
        a(f"v_add_u32 v7, {2304*(j%3)}, v{8+j//3}")
        a(f"global_load_lds_dwordx4 v7, {s(T0+6,2)}")
    a(f"s_lshr_b32 {s(T0+5)}, {s(T0+5)}, 8")
    a("s_barrier")
    dflag(f"s_add_u32 m0, {s(T0+5)}, {F_WK}")
    a("s_barrier")
    a(f"global_load_dword v159, v3, {s(pWQ,2)}")
    a(f"s_mov_b32 {s(T0+4)}, 6")
    a("s_branch L_x1")
    a("L_x0:")
    a(f"s_cmp_eq_u32 {s(T0+3)}, 1")
    a("s_cbranch_scc1 L_x0b")
    a("s_setprio 2")
    a("L_x0b:")
    a(f"s_xor_b32 {s(T0+3)}, {s(T0+3)}, {s(sG)}")
    a(f"s_and_b32 {s(T0+3)}, {s(T0+3)}, 1")
    a(f"s_mul_i32 {s(T0+3)}, {s(T0+3)}, 9216")
    a(f"s_add_u32 {s(T0)}, {s(T0)}, {s(T0+3)}")
    a(f"s_mov_b32 {s(T0+1)}, {XW+3*18432}")
    a(f"s_add_u32 {s(T0+8)}, {s(T0+1)}, {s(T0+3)}")
    a(f"s_mov_b32 {s(T0+4)}, 3")
    a("s_waitcnt lgkmcnt(0)")
    a("L_x1:")
    a(f"s_add_u32 {s(T0+2)}, {s(pX)}, {s(T0)}")
    a(f"s_addc_u32 {s(T0+3)}, {s(pX+1)}, 0")
    a(f"s_mov_b32 m0, {s(T0+8)}")
    a("L_xl:")
    a(f"s_sub_u32 {s(T0+4)}, {s(T0+4)}, 1")
    for j in range(3):
        a(f"global_load_lds_dwordx4 v2, {s(T0+2,2)} offset:{1024*j}")
    a("s_add_u32 m0, m0, 3072")
    a("v_add_u32 v2, 3072, v2")
    a(f"s_cmp_lg_u32 {s(T0+4)}, 0")
    a("s_cbranch_scc1 L_xl")
    a(f"s_cmp_eq_u32 {s(sWV)}, 7")
    a("s_cbranch_scc1 L_x7")
    a(f"s_cmp_lg_u32 {s(sWV)}, {s(sPW)}")
    a("s_cbranch_scc1 L_a1")
    a("s_barrier")
    a("s_barrier")
    a("s_branch L_a1")
    a("L_x7:")
    a("s_barrier")
    dflag(F_WK + 12)
    a("s_barrier")
    a("s_branch L_loader")
    a("L_h0:")
    a("s_setprio 3")
    a(f"s_add_u32 {s(T0+1)}, {s(sCH0)}, {s(T0)}")
    a(f"s_cmp_eq_u32 {s(T0)}, 2")
    a(f"s_cselect_b32 {s(T0+1)}, {s(sCHS)}, {s(T0+1)}")
    a(f"s_lshl_b32 {s(T0+2)}, {s(T0+1)}, 8")
    a(f"v_lshlrev_b32 v2, 2, {v(vL)}")
    a(f"v_add_u32 v3, {s(T0+2)}, v2")
    a(f"s_lshl_b32 {s(T0+2)}, {s(T0+1)}, 1")
    a(f"v_mov_b32 v11, {s(T0+2)}")
    a("s_waitcnt lgkmcnt(0)")
    PR = 4
    a(f"global_load_ushort v10, v11, {s(pLDT,2)}")
    for i, p in enumerate((pARE, pAIM, pBRE, pBIM, pCRE, pCIM)):
        a(f"global_load_dword v{PR+i}, v3, {s(p,2)}")
    a("s_barrier")
    a("s_barrier")
    a("s_branch L_kgen")

    XF, ACC, ST = 16, 88, 108
    a("L_a1:")
    stamp(12)
    a(f"v_and_b32 v2, 15, {v(vL)}")
    a(f"v_lshrrev_b32 v3, 4, {v(vL)}")
    a(f"v_mul_u32_u24 v4, 1152, v2")
    a(f"v_add_u32 v4, {s(T0+1)}, v4")
    for t in range(8):
        a(f"v_add_u32 v5, {t}, v2")
        a("v_and_b32 v5, 7, v5")
        a("v_xor_b32 v5, v5, v3")
        a(f"v_lshl_add_u32 {v(ST+t)}, v5, 4, v4")
        a(f"v_xor_b32 {v(ST+8+t)}, 64, {v(ST+t)}")
    a(f"s_cmp_lg_u32 {s(sPW)}, {s(sWV)}")
    a("s_cbranch_scc1 L_np")
    a("s_setprio 3")
    a(f"s_load_dword {s(sTAG)}, {s(pWS,2)}, 0")
    a(f"v_lshrrev_b32 v2, 4, {v(vL)}")
    a(f"v_bfe_u32 v3, {v(vL)}, 2, 2")
    a(f"v_and_b32 v4, 3, {v(vL)}")
    a("v_lshl_add_u32 v5, v2, 3, v3")
    a("v_mul_u32_u24 v5, 48, v5")
    a(f"v_add_u32 v5, {WK}, v5")
    a("v_lshl_add_u32 v6, v4, 3, v5")
    a("v_add_u32 v7, 40, v5")
    for i in range(8):
        a(f"v_mov_b32 {v(ACC+i)}, 0")
    a(f"s_lshr_b32 {s(T0+1)}, {s(sQB)}, 2")
    a(f"s_mul_i32 {s(T0+1)}, {s(T0+1)}, {CH_SZ}")
    a(f"s_add_u32 {s(T0+1)}, {s(T0+1)}, {WS_KV}")
    a(f"s_and_b32 {s(T0+2)}, {s(sQB)}, 3")
    a(f"s_lshl_b32 {s(T0+3)}, {s(T0+2)}, 1")
    a(f"s_lshr_b32 {s(T0+4)}, {s(sWV)}, 1")
    a(f"s_add_u32 {s(T0+3)}, {s(T0+3)}, {s(T0+4)}")
    a(f"s_mul_i32 {s(T0+3)}, {s(T0+3)}, 2240")
    a(f"s_add_u32 {s(T0+3)}, {s(T0+3)}, {s(T0+1)}")
    a(f"s_and_b32 {s(T0+4)}, {s(sWV)}, 1")
    a(f"v_and_b32 v3, 15, {v(vL)}")
    a("v_lshrrev_b32 v12, 1, v2")
    a("v_and_b32 v13, 1, v2")
    a("v_lshlrev_b32 v13, 3, v13")
    a("v_lshl_add_u32 v13, v3, 4, v13")
    a("v_lshl_add_u32 v130, v12, 9, v13")
    a(f"s_lshl_b32 {s(T0+5)}, {s(T0+4)}, 8")
    a(f"s_add_u32 {s(T0+5)}, {s(T0+5)}, {s(T0+3)}")
    a(f"v_add_u32 v150, {s(T0+5)}, v130")
    a(f"s_lshl_b32 {s(T0+2)}, {s(T0+2)}, 2")
    a(f"s_lshl_b32 {s(T0+5)}, {s(sWV)}, 8")
    a(f"s_add_u32 {s(T0+2)}, {s(T0+2)}, {s(T0+5)}")
    a(f"s_add_u32 {s(T0+2)}, {s(T0+2)}, {s(T0+1)}")
    a(f"s_add_u32 {s(T0+2)}, {s(T0+2)}, 17920")
    a("v_lshlrev_b32 v151, 4, v3")
    a(f"v_add_u32 v151, {s(T0+2)}, v151")
    a(f"s_movk_i32 {s(T0)}, 288")
    a(f"v_mad_u32_u24 v152, v12, {s(T0)}, v13")
    a(f"s_mul_i32 {s(T0+4)}, {s(T0+4)}, 608")
    a(f"s_add_u32 {s(T0+3)}, {s(T0+3)}, {s(T0+4)}")
    a(f"s_add_u32 {s(T0+3)}, {s(T0+3)}, 1024")
    a(f"v_add_u32 v152, {s(T0+3)}, v152")
    a("v_cmp_eq_u32 vcc, 4, v3")
    a("v_mov_b32 v153, 0x3f803f80")
    a(f"s_lshl_b32 {s(T0)}, {s(sQB)}, 3")
    a("v_cndmask_b32 v153, 0, v153, vcc")
    a(f"s_add_u32 {s(T0)}, {s(T0)}, {s(sG)}")
    a(f"s_lshl_b32 {s(T0)}, {s(T0)}, 7")
    a(f"s_add_u32 {s(T0)}, {s(T0)}, {WS_FKV}")
    a(f"v_mov_b32 v14, {s(T0)}")
    a("s_waitcnt lgkmcnt(0)")
    a(f"s_mul_i32 {s(sTAG)}, {s(sTAG)}, 0x9E3779B1")
    a(f"s_add_u32 {s(sTAG)}, {s(sTAG)}, 0x632BE5AB")
    a(f"v_mov_b32 v15, {s(sTAG)}")
    a(f"v_mov_b32 v8, {F_TAG}")
    a("ds_write_b32 v8, v15")
    a("s_waitcnt vmcnt(0)")
    stamp(13)
    lds_wait4(F_WK, 1, 8, 0)
    stamp(14)
    for st_ in range(18):
        a(f"ds_read_b128 {v(XF+4*st_,4)}, {v(ST+8*(st_&1)+((st_>>1)&7))} offset:{128*(st_>>1)}")
    lds_set(F_XP, 1, 8)
    a("v_cmp_le_u32 vcc, 4, v3")
    a(f"s_bitcmp1_b32 {s(sG)}, 0")
    a("s_cbranch_scc1 L_pv")

    def kvproj(isV):
        NR, PRE = 8, 7

        def rd(f):
            st_, tl = divmod(f, 2)
            b = ST + 4 * (f % NR)
            o = 48 * 32 * st_
            a(f"ds_read_b64_tr_b16 {v(b,2)}, v{6+tl} offset:{o}")
            a(f"ds_read_b64_tr_b16 {v(b+2,2)}, v{6+tl} offset:{o+192}")
        for f in range(PRE):
            rd(f)
        for f in range(36):
            st_, tl = divmod(f, 2)
            a(f"s_waitcnt lgkmcnt({2*min(PRE-1, 35-f)})")
            w_, x_ = v(ST + 4 * (f % NR), 4), v(XF + 4 * st_, 4)
            A_, B_ = (x_, w_) if isV else (w_, x_)
            a(f"v_mfma_f32_16x16x32_bf16 {v(ACC+4*tl,4)}, {A_}, {B_}, {v(ACC+4*tl,4)}")
            if f + PRE < 36:
                rd(f + PRE)

    kvproj(False)
    a(f"v_cvt_pk_bf16_f32 v8, {v(ACC)}, {v(ACC+1)}")
    a(f"v_cvt_pk_bf16_f32 v9, {v(ACC+2)}, {v(ACC+3)}")
    a(f"global_store_dwordx2 v150, v[8:9], {s(pWS,2)} sc1")
    a(f"v_cvt_pk_bf16_f32 v10, {v(ACC+6)}, {v(ACC+7)}")
    a("s_mov_b64 exec, 0xffff")
    a(f"global_store_dword v151, v10, {s(pWS,2)} sc1")
    a("s_mov_b64 exec, -1")
    a("s_branch L_pub")
    a("L_pv:")
    kvproj(True)
    a(f"v_cvt_pk_bf16_f32 v8, {v(ACC)}, {v(ACC+1)}")
    a(f"v_cvt_pk_bf16_f32 v9, {v(ACC+2)}, {v(ACC+3)}")
    a(f"global_store_dwordx2 v152, v[8:9], {s(pWS,2)} sc1")
    a(f"v_cvt_pk_bf16_f32 v10, {v(ACC+4)}, {v(ACC+5)}")
    a(f"v_cvt_pk_bf16_f32 v11, {v(ACC+6)}, {v(ACC+7)}")
    a("v_cndmask_b32 v10, v10, v153, vcc")
    a("v_cndmask_b32 v11, v11, v153, vcc")
    a(f"s_mov_b32 exec_lo, 0x000c000c")
    a(f"s_mov_b32 exec_hi, 0x003c003c")
    a(f"global_store_dwordx2 v152, v[10:11], {s(pWS,2)} offset:224 sc1")
    a("s_mov_b64 exec, -1")
    a("L_pub:")
    stamp(15)
    proj_setup(ACC, XW, WX, True)
    a("s_waitcnt vmcnt(0)")
    a("s_mov_b64 exec, 1")
    a(f"global_store_dword v14, v15, {s(pWS,2)} sc1")
    a("s_mov_b64 exec, -1")
    lds_set(F_KVD, 1, 2)
    stamp(2)
    a("s_branch L_qproj")
    a("L_np:")
    a("s_waitcnt vmcnt(0) lgkmcnt(0)")
    stamp(1)
    for st_ in range(18):
        a(f"ds_read_b128 {v(XF+4*st_,4)}, {v(ST+8*(st_&1)+((st_>>1)&7))} offset:{128*(st_>>1)}")
    lds_add(F_XO, 2)
    proj_setup(ACC, XW, WX, True)
    a("L_qproj:")
    stamp(16)
    a("s_setprio 0")
    SX, SY, OA, OB = 16, 48, 160, 176
    QA, QB, QX0, QX1, IDX = 192, 196, 200, 202, 204
    KF, V0F, V1F, KXF = 208, 216, 224, 232
    vK, vV, vKl, vVl, vFl, vCo, vCv, vFa, vQa, vQx, vQw = 140, 141, 142, 143, 144, 145, 146, 147, 148, 149, 154
    sI, sSEQ, sNB = T0 + 10, T0 + 11, T0 + 12
    a(f"v_and_b32 v2, 31, {v(vL)}")
    a(f"v_lshrrev_b32 v3, 5, {v(vL)}")
    a(f"v_mul_u32_u24 v4, {QST}, v2")
    a(f"s_lshr_b32 {s(T0)}, {s(sWV)}, 1")
    a(f"s_mul_i32 {s(T0)}, {s(T0)}, {32*QST}")
    a(f"s_and_b32 {s(T0+1)}, {s(sWV)}, 1")
    a(f"s_mul_i32 {s(T0+1)}, {s(T0+1)}, 72")
    a(f"s_add_u32 {s(T0)}, {s(T0)}, {s(T0+1)}")
    a(f"s_add_u32 {s(T0)}, {s(T0)}, {QI}")
    a(f"v_add_u32 v4, {s(T0)}, v4")
    a(f"v_mad_u32_u24 {v(vQx)}, v3, 36, v4")
    a(f"v_lshl_add_u32 {v(vQa)}, v3, 4, v4")
    a(f"v_lshlrev_b32 {v(vKl)}, 4, {v(vL)}")
    a("v_and_b32 v6, 19, v2")
    a("v_bfe_u32 v7, v2, 2, 1")
    a("v_lshl_or_b32 v6, v7, 3, v6")
    a("v_bfe_u32 v7, v2, 3, 1")
    a("v_lshl_or_b32 v6, v7, 2, v6")
    a("v_mad_u32_u24 v6, v3, 18, v6")
    a("v_and_b32 v7, 27, v2")
    a("v_cmp_eq_u32 vcc, 18, v7")
    a("v_mov_b32 v8, 36")
    a("v_cndmask_b32 v7, 37, v8, vcc")
    a("v_cmp_gt_u32 vcc, 18, v2")
    a(f"v_mov_b32 {v(IDX)}, 0xdddd")
    a("v_cndmask_b32 v6, v7, v6, vcc")
    a(f"v_lshlrev_b32 {v(vVl)}, 4, v6")
    a(f"v_add_u32 {v(vVl)}, 1024, {v(vVl)}")
    b0 = SLOT0 + CH_SZ * SLOTSEQ[0]
    a(f"v_add_u32 {v(vK)}, {b0}, {v(vKl)}")
    a(f"v_add_u32 {v(vV)}, {b0}, {v(vVl)}")
    a(f"v_mov_b32 {v(vFa)}, {F_RDY + 4}")
    a(f"s_lshl_b32 {s(T0)}, {s(sWV)}, 2")
    a(f"s_add_u32 {s(T0)}, {s(T0)}, {F_CONS}")
    a(f"v_mov_b32 {v(vCo)}, {s(T0)}")
    a(f"v_mov_b32 {v(vCv)}, 0")
    for i in range(32):
        a(f"v_mov_b32 {v(OA+i)}, 0")
    a(f"v_mov_b32 {v(QX0+1)}, 0")
    a(f"v_mov_b32 {v(QX1)}, 0")
    seq = 0
    for i, k in enumerate(SLOTSEQ[1:] + [SLOTSEQ[-1]]):
        seq |= k << (4 * i)
    a(f"s_mov_b32 {s(sSEQ)}, {hex(seq)}")
    a(f"s_mov_b32 {s(sI)}, 0")
    for i in range(4):
        a(f"v_mov_b32 {v(V1F+4+i)}, 0")
    a(f"v_and_b32 v2, 15, {v(vL)}")
    a(f"v_lshrrev_b32 v3, 4, {v(vL)}")
    a(f"v_mul_u32_u24 v2, {QST}, v2")
    a("v_lshl_add_u32 v2, v3, 3, v2")
    a(f"s_mul_i32 {s(T0)}, {s(sWV)}, {16*QST}")
    a(f"s_add_u32 {s(T0)}, {s(T0)}, {QI}")
    a(f"v_add_u32 {v(vQw)}, {s(T0)}, v2")
    lds_wait(F_KVD, 1, 4, T0, 2)
    gettag(4)

    chk = {0: 3, 6: 5, 10: 7, 14: 8, 16: 9}

    def qr(st_):
        if st_ in chk:
            lds_wait(F_WQ + 4 * (chk[st_] - 1), 1, 2, T0, 1 if st_ else 2)
            if st_ == 0:
                a("s_setprio 2")
                stamp(28)
            if st_ == 16:
                stamp(30)
    proj_run(XF, ACC, ST, 8, 8 - 1, lambda st_: None, qr, True)
    stamp(18)
    a(f"s_mov_b32 {s(T0)}, {f32(QSCALE)}")
    a(f"s_mov_b32 {s(T0+1)}, {f32(QSCALE)}")
    for ct in range(5):
        b = ACC + 4 * ct
        a(f"v_pk_mul_f32 {v(b,2)}, {v(b,2)}, {s(T0,2)}")
        a(f"v_pk_mul_f32 {v(b+2,2)}, {v(b+2,2)}, {s(T0,2)}")
        a(f"v_cvt_pk_bf16_f32 {v(b)}, {v(b)}, {v(b+1)}")
        a(f"v_cvt_pk_bf16_f32 {v(b+1)}, {v(b+2)}, {v(b+3)}")
        if ct == 4:
            a("s_mov_b32 exec_hi, 0")
        a(f"ds_write_b64 {v(vQw)}, {v(b,2)} offset:{32*ct}")
    a("s_mov_b64 exec, -1")
    lds_add(F_QW, 2)
    for i in range(8):
        a(f"v_mov_b32 {v(SY+24+i)}, 0")

    lds_wait(F_QW, 4, 8, T0, 0)
    a(f"ds_read2_b32 {v(QA,2)}, {v(vQa)} offset0:0 offset1:1")
    a(f"ds_read2_b32 {v(QA+2,2)}, {v(vQa)} offset0:2 offset1:3")
    a(f"ds_read2_b32 {v(QB,2)}, {v(vQa)} offset0:9 offset1:10")
    a(f"ds_read2_b32 {v(QB+2,2)}, {v(vQa)} offset0:11 offset1:12")
    a(f"ds_read_b32 {v(QX0)}, {v(vQx)} offset:32")
    a(f"ds_read_b32 {v(QX1+1)}, {v(vQx)} offset:32")
    lds_add(F_QD, 8)
    stamp(4)
    lds_wait(F_RDY, 1, 8, T0, 0)
    stamp(6)
    a("s_setprio 0")

    def m2b(D, t):
        q = QX0 if ((t >> 1) & 1) == 0 else QX1
        return f"v_mfma_f32_32x32x4_2b_bf16 {v(D,32)}, {v(KXF+2*(t>>2),2)}, {v(q,2)}, 0 cbsz:1 abid:{t&1}"

    def mS(D, t, Q):
        return f"v_mfma_f32_32x32x16_bf16 {v(D,16)}, {v(KF+4*(t&1),4)}, {v(Q,4)}, {v(D,16)}"

    def smf(O, VF, t, P):
        return f"v_smfmac_f32_32x32x32_bf16 {v(O,16)}, {v(VF+4*(t&1),4)}, {v(P,8)}, {v(IDX)}"

    a(f"ds_read_b128 {v(KXF,4)}, {v(vK)} offset:17920")
    a(f"ds_read_b128 {v(KF,4)}, {v(vK)}")
    a(f"ds_read_b128 {v(KF+4,4)}, {v(vK)} offset:2240")
    a(f"ds_read_b128 {v(V0F,4)}, {v(vV)}")
    a(f"ds_read_b128 {v(V1F,4)}, {v(vV)} offset:608")
    a("s_waitcnt lgkmcnt(4)")
    a(m2b(SX, 0))
    a("s_waitcnt lgkmcnt(0)")
    a(mS(SX, 0, QA))
    a(mS(SX + 16, 0, QB))
    a("s_nop 10")
    a(".p2align 3")
    a("L_att:")
    if opts.get("cst"):
        stamp(40, sI)
    for t in range(8):
        cur, nxt = (SX, SY) if t % 2 == 0 else (SY, SX)
        ex = [f"v_exp_f32 {v(cur+i)}, {v(cur+i)}" for i in range(32)]
        tn = (t + 1) & 7
        q = []
        q += ex[0:2]
        q.append(smf(OB, V1F, t - 1, nxt + 24))
        q.append("s_waitcnt lgkmcnt(0)")
        if t == 5:
            q.append(f"v_readfirstlane_b32 {s(T0)}, {v(vFl)}")
        q += ex[2:5]
        q.append(m2b(nxt, tn))
        if t == 5:
            q.append(f"s_cmp_eq_u32 {s(T0)}, 0")
            q.append("s_cbranch_scc1 L_rw")
            q.append("L_rwd:")
        q += ex[5:13]
        q.append(smf(OA, V0F, t, cur))
        q.append(f"ds_read_b128 {v(KF+4*(t&1),4)}, {v(vK)} offset:{2240*((t+2)&7)}")
        q += ex[13:18]
        q.append(smf(OA, V1F, t, cur + 8))
        q.append(f"ds_read_b128 {v(V0F+4*(tn&1),4)}, {v(vV)} offset:{2240*tn}")
        q += ex[18:22]
        q.append(mS(nxt, tn, QA))
        q.append(f"ds_read_b128 {v(V1F+4*(tn&1),4)}, {v(vV)} offset:{2240*tn+608}")
        q += ex[22:26]
        q.append(smf(OB, V0F, t, cur + 16))
        if t == 3:
            q.append(f"s_and_b32 {s(sNB)}, {s(sSEQ)}, 15")
            q.append(f"s_mul_i32 {s(sNB)}, {s(sNB)}, {CH_SZ}")
        if t == 4:
            q.append(f"ds_read_b32 {v(vFl)}, {v(vFa)}")
        if t == 6:
            q.append(f"ds_read_b128 {v(KXF,4)}, {v(vK)} offset:17920")
        if t == 7:
            q.append(f"ds_write_b32 {v(vCo)}, {v(vCv)}")
        q += ex[26:29]
        q.append(mS(nxt + 16, tn, QB))
        if t == 2:
            q.append(f"s_add_u32 {s(sI)}, {s(sI)}, 1")
        if t == 3:
            q.append(f"s_add_u32 {s(sNB)}, {s(sNB)}, {SLOT0}")
        if t == 5:
            q.append(f"s_lshr_b32 {s(sSEQ)}, {s(sSEQ)}, 4")
            q.append(f"v_add_u32 {v(vK)}, {s(sNB)}, {v(vKl)}")
        if t == 6:
            q.append(f"v_add_u32 {v(vV)}, {s(sNB)}, {v(vVl)}")
            q.append(f"v_mov_b32 {v(vCv)}, {s(sI)}")
            q.append(f"v_add_u32 {v(vFa)}, 4, {v(vFa)}")
        if t == 7:
            q.append(f"s_cmp_lt_u32 {s(sI)}, 8")
        q += ex[29:32]
        for x in q:
            a(x)
    a("s_cbranch_scc1 L_att")
    a(smf(OB, V1F, 7, SY + 24))
    stamp(9)
    a(f"v_and_b32 v2, 15, {v(vL)}")
    a(f"v_bfe_u32 v3, {v(vL)}, 4, 1")
    a(f"v_lshrrev_b32 v4, 5, {v(vL)}")
    a(f"s_movk_i32 {s(T0)}, {72*256}")
    a("v_lshlrev_b32 v2, 4, v2")
    a(f"v_mad_u32_u24 v2, v3, {s(T0)}, v2")
    a(f"s_lshl_b32 {s(T0)}, {s(sQB)}, 2")
    a(f"s_and_b32 {s(T0+1)}, {s(sWV)}, 2")
    a(f"s_add_u32 {s(T0)}, {s(T0)}, {s(T0+1)}")
    a(f"s_mul_i32 {s(T0)}, {s(T0)}, 72")
    a(f"s_mul_i32 {s(T0+1)}, {s(sG)}, 9")
    a(f"s_add_u32 {s(T0)}, {s(T0)}, {s(T0+1)}")
    a(f"s_lshl_b32 {s(T0)}, {s(T0)}, 8")
    a(f"s_add_u32 {s(T0)}, {s(T0)}, {WS_O}")
    a(f"s_and_b32 {s(T0+1)}, {s(sWV)}, 1")
    a(f"s_lshl_b32 {s(T0+2)}, {s(T0+1)}, 10")
    a(f"s_add_u32 {s(T0+2)}, {s(T0+2)}, {s(T0)}")
    a(f"s_lshl_b32 {s(T0+1)}, {s(T0+1)}, 3")
    a(f"s_add_u32 {s(T0+1)}, {s(T0+1)}, {s(T0)}")
    a(f"v_add_u32 v5, {s(T0+1)}, v2")
    a("v_lshl_add_u32 v2, v4, 8, v2")
    a(f"v_add_u32 v2, {s(T0+2)}, v2")
    for T, O in enumerate((OA, OB)):
        a(f"v_rcp_f32 v6, {v(O+10)}")
        a(f"s_nop 0")
        a("v_mov_b32 v7, v6")
        for i in range(0, 10, 2):
            a(f"v_pk_mul_f32 {v(O+i,2)}, {v(O+i,2)}, v[6:7]")
        for i in range(4):
            a(f"v_cvt_pk_bf16_f32 {v(16+4*T+i)}, {v(O+2*i)}, {v(O+2*i+1)}")
        a(f"v_cvt_pk_bf16_f32 {v(24+T)}, {v(O+8)}, {v(O+9)}")
        a(f"global_store_dwordx4 v2, {v(16+4*T,4)}, {s(pWS,2)} offset:{512*T} sc1")
    a("s_mov_b32 exec_hi, 0")
    a(f"global_store_dwordx2 v5, v[24:25], {s(pWS,2)} offset:2048 sc1")
    a(f"s_lshl_b32 {s(T0)}, {s(sQB)}, 3")
    a(f"s_add_u32 {s(T0)}, {s(T0)}, {s(sG)}")
    a(f"s_lshl_b32 {s(T0)}, {s(T0)}, 2")
    a(f"s_add_u32 {s(T0)}, {s(T0)}, {s(sWV)}")
    a(f"s_lshl_b32 {s(T0)}, {s(T0)}, 7")
    a(f"s_add_u32 {s(T0)}, {s(T0)}, {WS_FO}")
    a("s_mov_b64 exec, 1")
    a(f"v_mov_b32 v4, {s(T0)}")
    a(f"v_mov_b32 v5, {s(sTAG)}")
    a("s_waitcnt vmcnt(0)")
    stamp(11)
    a(f"global_store_dword v4, v5, {s(pWS,2)} sc1")
    a("s_waitcnt vmcnt(0)")
    a(f"v_mov_b32 {v(vCv)}, 9")
    a(f"ds_write_b32 {v(vCo)}, {v(vCv)}")
    a("s_mov_b64 exec, -1")
    a("s_branch L_fin")
    a("L_rw:")
    a("s_sleep 1")
    a(f"ds_read_b32 {v(vFl)}, {v(vFa)}")
    a("s_waitcnt lgkmcnt(0)")
    a(f"v_readfirstlane_b32 {s(T0)}, {v(vFl)}")
    a(f"s_cmp_eq_u32 {s(T0)}, 0")
    a("s_cbranch_scc1 L_rw")
    a("s_branch L_rwd")

    def chunk_dma(i, pace):
        a(f"s_add_u32 {s(T0+1)}, {s(sXCD)}, {i}")
        a(f"s_and_b32 {s(T0+1)}, {s(T0+1)}, 7")
        a(f"s_mul_i32 {s(T0+1)}, {s(T0+1)}, {CH_SZ}")
        a(f"s_add_u32 {s(T0+1)}, {s(T0+1)}, {WS_KV}")
        a(f"v_lshl_add_u32 v14, {v(vL)}, 4, {s(T0+1)}")
        base = SLOT0 + CH_SZ * SLOTSEQ[i]
        a(f"s_mov_b32 m0, {base}")
        lab = a.label("Lch")
        a(f"{lab}:")
        for j in range(3 if not pace else 2):
            a(f"global_load_lds_dwordx4 v14, {s(pWS,2)} offset:{1024*j} sc1")
        step = 3072 if not pace else 2048
        a(f"s_add_u32 m0, m0, {step}")
        a(f"v_add_u32 v14, {step}, v14")
        if pace:
            a(f"s_sleep {pace}")
        a(f"s_cmp_lt_u32 m0, {base + 18432}")
        a(f"s_cbranch_scc1 {lab}")
        a("s_mov_b32 exec_hi, 0")
        a(f"global_load_lds_dwordx4 v14, {s(pWS,2)} sc1")
        dflag(F_RDY + 4 * i)
        if i == 7:
            dflag(F_RDY + 32)

    a("L_loader:")
    stamp(12)
    a("s_setprio 3")
    srd(SRB, pWQ, 576 * 1152)
    a(f"v_lshrrev_b32 v2, 3, {v(vL)}")
    a(f"v_and_b32 v3, 7, {v(vL)}")
    a("v_and_b32 v4, 2, v2")
    a("v_xor_b32 v4, v3, v4")
    a("v_lshlrev_b32 v4, 4, v4")
    a(f"s_movk_i32 {s(T0)}, 1152")
    a(f"v_mad_u32_u24 v5, v2, {s(T0)}, v4")
    for k in range(4):
        a(f"s_add_u32 {s(T0+1)}, {s(sPW)}, {k+1}")
        a(f"s_and_b32 {s(T0+1)}, {s(T0+1)}, 3")
        a(f"s_mul_i32 {s(T0+2)}, {s(T0+1)}, 9216")
        a(f"s_and_b32 {s(T0+1)}, {s(T0+1)}, 1")
        a(f"s_lshl_b32 {s(T0+1)}, {s(T0+1)}, 6")
        a(f"v_xor_b32 v6, {s(T0+1)}, v5")
        a(f"v_add_u32 v{24+k}, {s(T0+2)}, v6")
    a(f"v_mul_u32_u24 v28, 1152, {v(vL)}")
    a("v_add_u32 v28, 128, v28")
    a(f"s_mov_b32 {s(T0+1)}, {s(sG144)}")
    a(f"s_mov_b32 {s(T0+3)}, {WX}")
    a(f"s_mov_b32 {s(T0+4)}, {F_WQ}")
    a(f"s_mov_b32 {s(T0+5)}, {XW+16*1024}")
    lds_wait(F_XP, 1, 2, T0, 1)
    stamp(13)
    a("s_setprio 0")
    a("L_wqb:")
    a(f"s_cmp_lg_u32 {s(T0+4)}, {F_WQ+28}")
    a("s_cbranch_scc1 L_wqc")
    lds_wait(F_XO, 3, 2, T0, 0)
    a("L_wqc:")
    a(f"s_add_u32 {s(T0+2)}, {s(T0+1)}, {32*1152}")
    for h in range(2):
        for k in range(4):
            a(f"s_add_u32 m0, {s(T0+5)}, {18432*k + 1024*(1-h)}")
            a(f"s_nop 0")
            a(f"buffer_load_dwordx4 v{24+k}, {s(SRB,4)}, {s(T0+1+h)} offen lds")
    a(f"s_mov_b32 m0, {s(T0+3)}")
    a(f"s_sub_u32 {s(T0+5)}, {s(T0+5)}, 2048")
    a(f"buffer_load_dwordx4 v28, {s(SRB,4)}, {s(T0+1)} offen lds")
    dflag(f"s_mov_b32 m0, {s(T0+4)}")
    a(f"s_add_u32 {s(T0+1)}, {s(T0+1)}, {64*1152}")
    a(f"s_add_u32 {s(T0+3)}, {s(T0+3)}, 1024")
    a(f"s_add_u32 {s(T0+4)}, {s(T0+4)}, 4")
    a(f"s_cmp_lt_u32 {s(T0+3)}, {WX+9216}")
    a("s_cbranch_scc1 L_wqb")
    a("s_setprio 3")
    gettag(2)
    stamp(29)
    a(f"v_lshlrev_b32 v16, 7, {v(vL)}")
    a(f"v_add_u32 v16, {WS_FKV}, v16")
    for i in range(1, 4):
        a(f"v_add_u32 v{16+i}, {8192*i}, v16")
    poll(16, 20, "L_pk1", n=4)
    stamp(15)
    lds_wait(F_QD, 4, 2, T0)
    stamp(16)
    PACE = opts.get("pace", 1)
    for i in range(1, 5):
        chunk_dma(i, PACE)
    stamp(17)
    a("s_branch L_ssm")

    a("L_kgen:")
    stamp(12)
    a("s_setprio 1")
    a(f"s_mul_i32 {s(T0+3)}, {s(T0)}, {S_SZ}")
    a(f"v_and_b32 v12, 31, {v(vL)}")
    a(f"v_lshrrev_b32 v13, 5, {v(vL)}")
    KD = 16
    for i in range(16):
        a(f"v_mov_b32 {v(KD+i)}, 0")
    a(f"v_and_b32 v2, 3, {v(vL)}")
    a(f"v_bfe_u32 v3, {v(vL)}, 1, 2")
    a("v_lshl_or_b32 v2, v2, 2, v3")
    a("v_lshlrev_b32 v2, 4, v2")
    a(f"v_lshl_add_u32 v11, {v(vL)}, 8, v2")
    a(f"v_add_u32 v11, {s(T0+3)}, v11")
    a(f"v_bfe_u32 v2, {v(vL)}, 2, 2")
    a("v_lshl_add_u32 v3, v13, 2, v2")
    a("v_lshrrev_b32 v14, 1, v3")
    a("v_lshl_or_b32 v2, v2, 2, v14")
    a(f"v_bfe_u32 v14, {v(vL)}, 4, 1")
    a(f"v_bfe_u32 v15, {v(vL)}, 1, 1")
    a("v_lshl_or_b32 v14, v14, 1, v15")
    a("v_xor_b32 v2, v2, v14")
    a("v_lshlrev_b32 v2, 4, v2")
    a("v_lshl_add_u32 v2, v3, 8, v2")
    a(f"v_and_b32 v14, 1, {v(vL)}")
    a("s_waitcnt vmcnt(0)")
    a("v_lshl_add_u32 v2, v14, 3, v2")
    a(f"v_add_u32 v250, {s(T0+3)}, v2")
    for pl in range(1, 4):
        a(f"v_xor_b32 v{250+pl}, {64*pl}, v250")
    stamp(1)
    if opts.get("nokgen"):
        a("s_branch L_kend")
    a("v_lshlrev_b32 v10, 16, v10")
    a(f"v_mul_f32 v10, {f32(LOG2E)}, v10")
    a("v_exp_f32 v10, v10")
    a("v_cvt_pk_bf16_f32 v10, v10, v10")
    a("v_lshlrev_b32 v10, 16, v10")
    U0 = 32
    Z1, Z8, Z256, TT = 38, 40, 42, 44
    HV = 46
    LO = 102
    ONE = 106
    PK = 120

    def cmul(r, x, y):
        a(f"v_pk_mul_f32 {v(r,2)}, {v(x,2)}, {v(y,2)} op_sel:[0,0] op_sel_hi:[0,1]")
        a(f"v_pk_fma_f32 {v(r,2)}, {v(x,2)}, {v(y,2)}, {v(r,2)} op_sel:[1,1,0] op_sel_hi:[1,0,1] neg_lo:[0,1,0]")

    def mrow(r, h):
        return (r % 4) + 4 * h + 8 * (r // 4)

    vals = [(0, e) for e in range(9)] + [(1, e) for e in (0, 2, 4, 6, 8)] + [(2, e) for e in (0, 4, 8)] + \
           [(3, e) for e in (0, 4, 8)] + [(sg, e) for sg in (4, 5, 6, 7) for e in (0, 8)]
    reg = {k: HV + 2 * n for n, k in enumerate(vals)}
    rowval = {}
    for r in range(8):
        rowval[mrow(r, 0)] = (0, r)
        rowval[mrow(r, 1)] = (1, [0, 0, 2, 4, 4, 4, 6, 8][r])
    for h in range(2):
        for n, e in enumerate((0, 4, 8)):
            rowval[mrow(8 + n, h)] = (2 + h, e)
        for n, e in enumerate((0, 8)):
            rowval[mrow(11 + n, h)] = (4 + h, e)
            rowval[mrow(13 + n, h)] = (6 + h, e)
        rowval[mrow(15, h)] = (6 + h, 8)
    a(f"v_mov_b32 {v(ONE)}, 1.0")
    a(f"v_mov_b32 {v(ONE+1)}, 0")
    for rnd in range(2):
        P0 = PK + 64 * rnd
        for i in range(6):
            if rnd == 0:
                a(f"v_lshlrev_b32 {v(U0+i)}, 16, v{PR+i}")
            else:
                a(f"v_and_b32 {v(U0+i)}, 0xffff0000, v{PR+i}")
        for i in range(4):
            a(f"v_mul_f32 {v(U0+i)}, v10, {v(U0+i)}")
        a(f"v_mul_f32 {v(U0)}, {f32(LOG2E)}, {v(U0)}")
        a(f"v_mul_f32 {v(U0+1)}, 0.15915494, {v(U0+1)}")
        for z, pw in ((Z1, 1.0), (Z8, 8.0), (Z256, 256.0)):
            a(f"v_mul_f32 {v(TT)}, {f32(pw)}, {v(U0)}")
            a(f"v_mul_f32 {v(TT+1)}, {f32(pw)}, {v(U0+1)}")
            a(f"v_exp_f32 {v(TT)}, {v(TT)}")
            a(f"v_fract_f32 {v(TT+1)}, {v(TT+1)}")
            a(f"v_cos_f32 {v(z)}, {v(TT+1)}")
            a(f"v_sin_f32 {v(z+1)}, {v(TT+1)}")
            a(f"v_mul_f32 {v(z)}, {v(TT)}, {v(z)}")
            a(f"v_mul_f32 {v(z+1)}, {v(TT)}, {v(z+1)}")
        hi_ops = []
        for (sg, e) in vals:
            if sg == 0:
                if e == 0:
                    hi_ops.append(lambda: cmul(reg[(0, 0)], U0 + 4, U0 + 2))
                else:
                    hi_ops.append(lambda e=e: cmul(reg[(0, e)], reg[(0, e - 1)], Z1))
            else:
                hi_ops.append(lambda sg=sg, e=e: cmul(reg[(sg, e)], reg[(sg - 1, e)], Z256))
        lo_ops = []

        def lopack(j, ra, rb):
            a(f"v_cvt_pk_bf16_f32 {v(P0+32+j//2)}, {v(ra)}, {v(rb)}")
            a(f"v_cvt_pk_bf16_f32 {v(P0+48+j//2)}, {v(ra+1)}, {v(rb+1)}")
        lo_ops.append(lambda: lopack(0, ONE, Z8))
        for j in range(2, 32):
            src = Z8 if j == 2 else LO + 2 * ((j - 1) & 1)
            if j & 1:
                lo_ops.append(lambda j=j, src=src: (cmul(LO + 2, src, Z8), lopack(j - 1, LO, LO + 2)))
            else:
                lo_ops.append(lambda j=j, src=src: cmul(LO, src, Z8))
        for i in range(max(len(hi_ops), len(lo_ops))):
            if i < len(lo_ops):
                lo_ops[i]()
            if i < len(hi_ops):
                hi_ops[i]()
        for j in range(0, 32, 2):
            ra, rb = reg[rowval[j]], reg[rowval[j + 1]]
            a(f"v_cvt_pk_bf16_f32 {v(P0+j//2)}, {v(ra)}, {v(rb)}")
            a(f"v_cvt_pk_bf16_f32 {v(P0+16+j//2)}, -{v(ra+1)}, -{v(rb+1)}")
    WA = 32
    for u in range(16):
        a(f"v_xor_b32 {v(WA+u)}, {16*u}, v11")
    stamp(13)
    a(f"s_cmp_lg_u32 {s(sWV)}, 4")
    a("s_cbranch_scc1 L_k2")
    a("s_setprio 3")
    a(f"v_lshlrev_b32 v4, 7, v12")
    a(f"s_lshl_b32 {s(T0)}, {s(sXCD)}, 12")
    a(f"s_add_u32 {s(T0)}, {s(T0)}, {WS_FKV}")
    a(f"v_add_u32 v4, {s(T0)}, v4")
    lds_wait(F_KVD, 1, 2, T0, 2)
    gettag(2)
    poll(4, 5, "L_pk0")
    stamp(5)
    chunk_dma(0, 0)
    a("s_setprio 1")
    a("L_k2:")
    lds_wait(F_WQ + 32, 1, 2, T0 + 5, 4)
    lds_wait(F_RDY, 1, 2, T0 + 5, 2)
    stamp(28)
    FR = 48
    for rnd in range(2):
        P0 = PK + 64 * rnd
        for u in range(16):
            a(f"ds_write_b128 {v(WA+u)}, {v(P0+4*u,4)}")
        for ks in range(8):
            b = FR + 8 * ks
            for pl in range(4):
                a(f"ds_read_b64_tr_b16 {v(b+2*pl,2)}, v{250+pl} offset:{2048*ks}")
            if ks >= 2:
                bb = FR + 8 * (ks - 2)
                a("s_waitcnt lgkmcnt(8)")
                a(f"v_mfma_f32_32x32x16_bf16 {v(KD,16)}, {v(bb,4)}, {v(bb+4,4)}, {v(KD,16)}")
        for ks in range(6, 8):
            bb = FR + 8 * ks
            a(f"s_waitcnt lgkmcnt({4*(7-ks)})")
            a(f"v_mfma_f32_32x32x16_bf16 {v(KD,16)}, {v(bb,4)}, {v(bb+4,4)}, {v(KD,16)}")
    stamp(14)
    E = 32
    a("v_lshlrev_b32 v2, 4, v12")
    a("v_lshl_add_u32 v2, v13, 9, v2")
    a(f"v_add_u32 v2, {s(T0+3)}, v2")
    a("v_and_b32 v3, 1, v12")
    a("v_cmp_eq_u32 vcc, 1, v3")
    for i in range(4):
        a(f"v_mov_b32 {v(E+16+i)}, 0")
    for i in range(4):
        a(f"v_cvt_pk_bf16_f32 {v(E+i)}, {v(KD+2*i)}, {v(KD+2*i+1)}")
    a(f"ds_write_b128 v2, {v(E,4)} offset:32")
    a(f"v_cvt_pk_bf16_f32 {v(E+4)}, {v(KD+8)}, {v(KD+8)}")
    a(f"v_cvt_pk_bf16_f32 {v(E+5)}, {v(KD+8)}, {v(KD+9)}")
    a(f"v_cvt_pk_bf16_f32 {v(E+6)}, {v(KD+9)}, {v(KD+9)}")
    a(f"v_cvt_pk_bf16_f32 {v(E+7)}, {v(KD+10)}, {v(KD+10)}")
    a(f"ds_write_b128 v2, {v(E+4,4)} offset:{32+1024}")
    for n, r0 in enumerate((11, 13)):
        b = E + 8 + 4 * n
        a(f"v_cndmask_b32 v3, {v(KD+r0)}, {v(KD+r0+1)}, vcc")
        a(f"v_cvt_pk_bf16_f32 {v(b)}, {v(KD+r0)}, {v(KD+r0)}")
        a(f"v_mov_b32 {v(b+1)}, {v(b)}")
        a(f"v_cvt_pk_bf16_f32 {v(b+2)}, v3, {v(KD+r0+1)}")
        a(f"v_cvt_pk_bf16_f32 {v(b+3)}, {v(KD+r0+1)}, {v(KD+r0+1)}")
        a(f"ds_write_b128 v2, {v(b,4)} offset:{32+2048+1024*n}")
    a(f"v_mov_b32 v3, {s(T0+3)}")
    a("s_mov_b64 exec, 1")
    a(f"ds_write_b128 v3, {v(E+16,4)}")
    a(f"ds_write_b128 v3, {v(E+16,4)} offset:16")
    for c in range(1, 4):
        a(f"ds_write_b128 v3, {v(E+16,4)} offset:{CST*c}")
    a("s_mov_b64 exec, -1")
    a(f"v_lshlrev_b32 v2, 4, {v(vL)}")
    a(f"v_add_u32 v2, {s(T0+3)}, v2")
    goffs = (1, 65, 129, 193, 194)
    D0 = 56
    for n, go in enumerate(goffs):
        a(f"ds_read_b128 {v(D0+6*n,4)}, v2 offset:{16*go}")
        a(f"ds_read_b64 {v(D0+6*n+4,2)}, v2 offset:{16*go+16}")
    for n, go in enumerate(goffs):
        d = D0 + 6 * n
        t = 96 + 12 * n
        a(f"s_waitcnt lgkmcnt({min(15, 2*(4-n) + 3*n)})")
        for i in range(4):
            a(f"v_alignbit_b32 {v(t+i)}, {v(d+i+1)}, {v(d+i)}, 16")
        for i in range(4):
            a(f"v_mov_b32 {v(t+4+i)}, {v(d+1+i)}")
        for i in range(4):
            a(f"v_alignbit_b32 {v(t+8+i)}, {v(d+i+2)}, {v(d+i+1)}, 16")
        for c in range(1, 4):
            a(f"ds_write_b128 v2, {v(t+4*(c-1),4)} offset:{CST*c+16*go}")
    a("L_kend:")
    stamp(2)
    lds_wait(F_RDY + 4 * opts.get("urdy", 3), 1, 2, T0, 4)

    a("L_ssm:")
    stamp(7)
    UR = 160
    sS = T0 + 10
    a(f"s_sub_u32 {s(sS)}, {s(sWV)}, 4")
    a("v_subrev_u32 v2, 256, v0")
    a("v_mul_u32_u24 v2, 1152, v2")
    a(f"s_lshl_b32 {s(T0)}, {s(sCH0)}, 1")
    a(f"s_lshl_b32 {s(T0+1)}, {s(sCHS)}, 1")
    a(f"v_add_u32 v3, {s(T0+1)}, v2")
    a(f"v_add_u32 v2, {s(T0)}, v2")
    a(f"v_mov_b32 v4, {s(T0)}")
    a(f"v_mov_b32 v5, {s(T0+1)}")
    a(f"global_load_dword v149, v4, {s(pDSK,2)}")
    a(f"global_load_ushort v150, v5, {s(pDSK,2)}")
    srd(SRA, pU, 2048 * 1152)
    for r in range(8):
        a(f"s_add_u32 {s(T0+2)}, {s(sCID)}, {r}")
        a(f"s_and_b32 {s(T0+2)}, {s(T0+2)}, 7")
        a(f"s_mul_i32 {s(T0+2)}, {s(T0+2)}, {256*1152}")
        a(f"buffer_load_dword {v(UR+r)}, v2, {s(SRA,4)}, {s(T0+2)} offen")
        a(f"buffer_load_ushort {v(UR+8+r)}, v3, {s(SRA,4)}, {s(T0+2)} offen")
    a(f"s_lshr_b32 {s(T0+5)}, s2, 3")
    a(f"s_mul_i32 {s(T0+5)}, {s(T0+5)}, 20736")
    a(f"s_mul_i32 {s(T0+4)}, {s(sS)}, 5248")
    a(f"s_add_u32 {s(T0+4)}, {s(T0+4)}, {s(T0+5)}")
    a(f"v_min_u32 v3, 38, {v(vL)}")
    a("v_lshlrev_b32 v3, 7, v3")
    a(f"v_add_u32 v3, {s(T0+4)}, v3")
    a(f"global_load_dword v151, v3, {s(pWO,2)}")
    stamp(18)
    a(f"s_cmp_lg_u32 {s(sWV)}, 7")
    a("s_cbranch_scc1 L_s1")
    lds_wait4(F_CONS, 1, 2)
    chunk_dma(5, PACE)
    a("L_s1:")
    a("v_sub_u32 v2, 511, v0")
    a("v_lshlrev_b32 v2, 1, v2")
    a(f"v_add_u32 v2, {UI+3584}, v2")
    for r in range(8):
        a(f"s_add_u32 {s(T0+2)}, {s(sCID)}, {r}")
        a(f"s_and_b32 {s(T0+2)}, {s(T0+2)}, 7")
        a(f"s_lshl_b32 {s(T0+2)}, {s(T0+2)}, 9")
        a(f"v_subrev_u32 {v(180+r)}, {s(T0+2)}, v2")
    a(f"s_mul_i32 {s(T0)}, {s(sS)}, {U_SZ}")
    a(f"s_min_u32 {s(T0)}, {s(T0)}, {2*U_SZ}")
    a(f"s_add_u32 {s(T0)}, {s(T0)}, {UI+4096}")
    a(f"v_lshlrev_b32 v3, 3, {v(vL)}")
    a(f"v_add_u32 v3, {s(T0)}, v3")
    a("v_mov_b32 v4, 0")
    a("v_mov_b32 v5, 0")
    a("ds_write_b64 v3, v[4:5]")
    a(f"v_and_b32 v6, 15, {v(vL)}")
    a(f"v_lshrrev_b32 v7, 4, {v(vL)}")
    a("v_add_u32 v8, 1, v6")
    a("v_and_b32 v9, 3, v8")
    a("v_sub_u32 v8, v8, v9")
    a("v_lshlrev_b32 v8, 1, v8")
    a(f"s_movk_i32 {s(T0)}, {CST}")
    a(f"v_mad_u32_u24 v8, v9, {s(T0)}, v8")
    a("v_lshl_add_u32 v8, v7, 4, v8")
    a("v_lshlrev_b32 v9, 5, v6")
    a(f"v_sub_u32 v9, {UI+480}, v9")
    a("v_lshl_add_u32 v9, v7, 4, v9")
    a(f"s_lshr_b32 {s(T0)}, {s(sS)}, 1")
    a(f"s_and_b32 {s(T0+1)}, {s(sS)}, 1")
    a(f"s_lshl_b32 {s(T0+1)}, {s(T0+1)}, 8")
    a(f"s_mul_i32 {s(T0+2)}, {s(T0)}, {S_SZ}")
    a(f"s_add_u32 {s(T0+2)}, {s(T0+2)}, {s(T0+1)}")
    a(f"v_add_u32 v10, {s(T0+2)}, v8")
    a(f"s_mul_i32 {s(T0+2)}, {s(T0)}, {U_SZ}")
    a(f"s_add_u32 {s(T0+2)}, {s(T0+2)}, {s(T0+1)}")
    a(f"v_add_u32 v11, {s(T0+2)}, v9")
    a(f"s_lshl_b32 {s(T0+1)}, {s(sS)}, 7")
    a(f"s_add_u32 {s(T0+2)}, {s(T0+1)}, {2*S_SZ}")
    a(f"v_add_u32 v12, {s(T0+2)}, v8")
    a(f"s_add_u32 {s(T0+2)}, {s(T0+1)}, {2*U_SZ}")
    a(f"v_add_u32 v13, {s(T0+2)}, v9")
    CA, CBf, CC, CS = 16, 48, 80, 112
    for i in range(40):
        a(f"v_mov_b32 {v(CC+i)}, 0")
    a("s_waitcnt vmcnt(0)")
    stamp(19)
    for r in range(8):
        a(f"ds_write_b16 {v(180+r)}, {v(UR+r)}")
        a(f"ds_write_b16_d16_hi {v(180+r)}, {v(UR+r)} offset:{U_SZ}")
        a(f"ds_write_b16 {v(180+r)}, {v(UR+8+r)} offset:{2*U_SZ}")
    lds_add(F_U, 2)
    lds_wait(F_U, 4, 2, T0)
    stamp(20)
    if opts.get("cprio") is not None:
        a(f"s_setprio {opts['cprio']}")
    if opts.get("noconv"):
        a("s_branch L_csd")
    a(f"s_mov_b32 {s(T0+1)}, 4")
    a("L_cl:")

    def conv_block(va, vb, off, kmax, pairs):
        LOOK = 4
        for k in range(kmax + 1 + LOOK):
            if k <= kmax:
                a(f"ds_read_b128 {v(CBf+4*k,4)}, v{vb} offset:{off+512*(7-k)}")
                a(f"ds_read_b64 {v(CA+4*k,2)}, v{va} offset:{off+512*k}")
                a(f"ds_read_b64 {v(CA+4*k+2,2)}, v{va} offset:{off+512*k+8}")
            kk = k - LOOK
            if kk >= 0:
                todo = [p for p in pairs if max(p[1], p[2]) == kk]
                if todo:
                    a(f"s_waitcnt lgkmcnt({3*(min(k, kmax)-kk)})")
                for acc, aa, jj_ in todo:
                    a(f"v_mfma_f32_16x16x32_bf16 {v(acc,4)}, {v(CA+4*aa,4)}, {v(CBf+4*jj_,4)}, {v(acc,4)}")

    conv_block(10, 11, 0, 7, [(CC + 4 * (x + y), x, y) for x in range(8) for y in range(8 - x)])
    a("v_add_u32 v10, 64, v10")
    a("v_add_u32 v11, 64, v11")
    a(f"s_sub_u32 {s(T0+1)}, {s(T0+1)}, 1")
    a(f"s_cmp_lg_u32 {s(T0+1)}, 0")
    a("s_cbranch_scc1 L_cl")
    stamp(21)
    a(f"s_mov_b32 {s(T0+1)}, 2")
    for jj in range(4):
        if jj < 3:
            a(f"s_cmp_lg_u32 {s(sJJ)}, {jj}")
            a(f"s_cbranch_scc1 L_cs{jj+1}")
        i1, i2 = jj, 7 - jj
        pairs = [(CS + 4, x, i2 - x) for x in range(i2 + 1)] + [(CS, x, i1 - x) for x in range(i1 + 1)]
        a(f"L_csl{jj}:")
        conv_block(12, 13, 0, i2, pairs)
        a("v_add_u32 v12, 64, v12")
        a("v_add_u32 v13, 64, v13")
        a(f"s_sub_u32 {s(T0+1)}, {s(T0+1)}, 1")
        a(f"s_cmp_lg_u32 {s(T0+1)}, 0")
        a(f"s_cbranch_scc1 L_csl{jj}")
        if jj < 3:
            a("s_branch L_csd")
            a(f"L_cs{jj+1}:")
    a("L_csd:")
    a("s_setprio 1")
    stamp(22)
    lds_add(F_C1, 14)
    a(f"v_lshlrev_b32 v2, 4, {v(vL)}")
    a(f"s_lshl_b32 {s(T0)}, {s(sS)}, 13")
    a(f"s_add_u32 {s(T0)}, {s(T0)}, {CB}")
    a(f"v_add_u32 v3, {s(T0)}, v2")
    a(f"s_lshl_b32 {s(T0)}, {s(sS)}, 11")
    a(f"s_add_u32 {s(T0+1)}, {s(T0)}, {CB+32768}")
    a(f"v_add_u32 v4, {s(T0+1)}, v2")
    a(f"s_add_u32 {s(T0+1)}, {s(T0)}, {CB}")
    a(f"v_add_u32 v5, {s(T0+1)}, v2")
    lds_wait(F_C1, 4, 14, T0)
    for i in range(8):
        a(f"ds_write_b128 v3, {v(CC+4*i,4)} offset:{1024*i}")
    for i in range(2):
        a(f"ds_write_b128 v4, {v(CS+4*i,4)} offset:{1024*i}")
    lds_add(F_C2, 14)
    a(f"s_lshr_b32 {s(T0)}, {s(sS)}, 1")
    a(f"s_and_b32 {s(T0+1)}, {s(sS)}, 1")
    a(f"s_lshl_b32 {s(T0+2)}, {s(T0)}, 10")
    a(f"s_lshl_b32 {s(T0+3)}, {s(T0+1)}, 3")
    a(f"s_add_u32 {s(T0+2)}, {s(T0+2)}, {s(T0+3)}")
    a(f"s_add_u32 {s(T0+2)}, {s(T0+2)}, {CB+32768}")
    a(f"v_add_u32 v4, {s(T0+2)}, v2")
    a("v_lshlrev_b32 v8, 5, v6")
    a("v_lshl_add_u32 v8, v7, 3, v8")
    a(f"s_lshl_b32 {s(T0+2)}, {s(sS)}, 10")
    a(f"s_sub_u32 {s(T0+2)}, {UI+4088-512}, {s(T0+2)}")
    a(f"v_sub_u32 v9, {s(T0+2)}, v8")
    a(f"s_sub_u32 {s(T0+2)}, 7, {s(sJJ)}")
    a(f"s_cmp_eq_u32 {s(T0)}, 0")
    a(f"s_cselect_b32 {s(T0+4)}, {s(sJJ)}, {s(T0+2)}")
    a(f"s_lshl_b32 {s(T0+2)}, {s(T0+4)}, 9")
    a(f"s_lshl_b32 {s(T0+3)}, {s(T0+1)}, 2")
    a(f"s_add_u32 {s(T0+2)}, {s(T0+2)}, {s(T0+3)}")
    a(f"s_sub_u32 {s(T0+2)}, {UI+2*U_SZ+4092}, {s(T0+2)}")
    a(f"v_sub_u32 v10, {s(T0+2)}, v8")
    a(f"s_movk_i32 {s(T0+2)}, 1152")
    a(f"v_mul_lo_u32 v11, v8, {s(T0+2)}")
    srd(SRA, pOUT, 2048 * 2304)
    a(f"s_mul_i32 {s(T0+5)}, {s(sS)}, {512*2304}")
    a(f"s_lshl_b32 {s(T0+2)}, {s(sCH0)}, 1")
    a(f"s_add_u32 {s(T0+5)}, {s(T0+5)}, {s(T0+2)}")
    a(f"s_add_u32 {s(T0+5)}, {s(T0+5)}, 1152")
    a(f"s_mul_i32 {s(T0+6)}, {s(T0+4)}, {256*2304}")
    a(f"s_mul_i32 {s(T0+2)}, {s(T0+1)}, {2*2304}")
    a(f"s_add_u32 {s(T0+6)}, {s(T0+6)}, {s(T0+2)}")
    a(f"s_lshl_b32 {s(T0+2)}, {s(sCHS)}, 1")
    a(f"s_add_u32 {s(T0+6)}, {s(T0+6)}, {s(T0+2)}")
    a(f"s_add_u32 {s(T0+6)}, {s(T0+6)}, 1152")
    a("v_lshlrev_b32 v12, 16, v149")
    a("v_and_b32 v13, 0xffff0000, v149")
    a("v_lshlrev_b32 v150, 16, v150")
    lds_wait(F_C2, 4, 14, T0)
    Y, UU, YS = 16, 48, 56
    for tl in range(2):
        for src in range(4):
            a(f"ds_read_b128 {v(Y+16*tl+4*src,4)}, v5 offset:{8192*src+1024*tl}")
    for tl in range(2):
        for ch in range(2):
            a(f"ds_read_b64 {v(UU+4*tl+2*ch,2)}, v9 offset:{U_SZ*ch+512*(1-tl)}")
    for src in range(4):
        a(f"ds_read_b64 {v(YS+2*src,2)}, v4 offset:{2048*src}")
    a("ds_read_b32 v64, v10")
    lds_add(F_C1, 14)
    a("s_waitcnt lgkmcnt(0)")
    for tl in range(2):
        for ch in range(2):
            y = Y + 16 * tl + 8 * ch
            a(f"v_pk_add_f32 {v(y,2)}, {v(y,2)}, {v(y+4,2)}")
            a(f"v_pk_add_f32 {v(y+2,2)}, {v(y+2,2)}, {v(y+6,2)}")
            u_ = UU + 4 * tl + 2 * ch
            a(f"v_and_b32 {v(y+4)}, 0xffff0000, {v(u_+1)}")
            a(f"v_lshlrev_b32 {v(y+5)}, 16, {v(u_+1)}")
            a(f"v_and_b32 {v(y+6)}, 0xffff0000, {v(u_)}")
            a(f"v_lshlrev_b32 {v(y+7)}, 16, {v(u_)}")
            for r in range(4):
                a(f"v_fmac_f32 {v(y+r)}, {v(y+4+r)}, v{12+ch}")
        for r in range(4):
            y = Y + 16 * tl
            a(f"v_cvt_pk_bf16_f32 {v(130+4*tl+r)}, {v(y+r)}, {v(y+8+r)}")
    a(f"v_pk_add_f32 {v(YS,2)}, {v(YS,2)}, {v(YS+2,2)}")
    a(f"v_pk_add_f32 {v(YS+4,2)}, {v(YS+4,2)}, {v(YS+6,2)}")
    a(f"v_pk_add_f32 {v(YS,2)}, {v(YS,2)}, {v(YS+4,2)}")
    a(f"v_and_b32 v65, 0xffff0000, v64")
    a(f"v_lshlrev_b32 v64, 16, v64")
    a(f"v_fmac_f32 {v(YS)}, v65, v150")
    a(f"v_fmac_f32 {v(YS+1)}, v64, v150")
    a(f"v_cvt_pk_bf16_f32 v138, {v(YS)}, {v(YS+1)}")
    stamp(23)
    a(f"s_cmp_lg_u32 {s(sWV)}, 7")
    a("s_cbranch_scc1 L_s4")
    lds_wait4(F_CONS, 3, 2)
    chunk_dma(6, 1)
    lds_wait4(F_CONS, 4, 2)
    chunk_dma(7, 1)
    a("L_s4:")
    lds_wait(F_RDY + 28, 1, 2, T0, 4)
    for tl in range(2):
        for r in range(4):
            a(f"s_add_u32 {s(T0+2)}, {s(T0+5)}, {(256*tl+r)*2304}")
            a(f"buffer_store_dword {v(130+4*tl+r)}, v11, {s(SRA,4)}, {s(T0+2)} offen{YF}")
    a(f"buffer_store_short v138, v11, {s(SRA,4)}, {s(T0+6)} offen{YF}")
    a(f"buffer_store_short_d16_hi v138, v11, {s(SRA,4)}, {s(T0+6)} offen offset:2304{YF}")
    stamp(8)
    stamp(31)

    lds_wait(F_C1, 8, 2, T0)
    lds_wait4(F_CONS, 2, 2)
    srd(SRB, pWO, 576 * 1152)
    wo_dma(sS)
    a(f"s_lshl_b32 {s(T0)}, {s(sS)}, 2")
    dflag(f"s_add_u32 m0, {s(T0)}, {F_WO}")
    gettag(2)
    proj_setup(ACC, WO_M, WO_X)
    a(f"v_and_b32 v2, 15, {v(vL)}")
    a(f"v_lshrrev_b32 v3, 4, {v(vL)}")
    a(f"v_mul_u32_u24 v2, 160, v2")
    a("v_lshl_add_u32 v2, v3, 3, v2")
    a(f"s_mul_i32 {s(T0)}, {s(sS)}, 2560")
    a(f"s_add_u32 {s(T0)}, {s(T0)}, {OT}")
    a(f"v_add_u32 v249, {s(T0)}, v2")
    for i in range(3):
        a(f"v_add_u32 v4, {64*i}, {v(vL)}")
        a("v_mul_u32_u24 v5, 7282, v4")
        a("v_lshrrev_b32 v5, 16, v5")
        a("v_mul_u32_u24 v6, 9, v5")
        a("v_sub_u32 v6, v4, v6")
        a("v_lshlrev_b32 v6, 4, v6")
        a(f"v_mul_u32_u24 v7, 160, v5")
        a(f"v_add3_u32 v{8+i}, v7, v6, {s(T0)}")
        a(f"v_mul_u32_u24 v7, 2304, v5")
        a(f"v_add_u32 v{11+i}, v7, v6")
    a(f"s_lshl_b32 {s(T0)}, {s(sQB)}, 2")
    a(f"s_add_u32 {s(T0)}, {s(T0)}, {s(sS)}")
    a(f"s_mul_i32 {s(T0+8)}, {s(T0)}, {16*2304}")
    a(f"s_mul_i32 {s(T0+1)}, {s(sG)}, 144")
    a(f"s_add_u32 {s(T0+8)}, {s(T0+8)}, {s(T0+1)}")
    a(f"s_mul_i32 {s(T0)}, {s(T0)}, 18432")
    a(f"s_add_u32 {s(T0)}, {s(T0)}, {WS_O}")
    a(f"v_lshlrev_b32 v14, 4, {v(vL)}")
    a(f"v_add_u32 v14, {s(T0)}, v14")
    a(f"v_bfe_u32 v3, {v(vL)}, 1, 3")
    a("v_lshlrev_b32 v3, 9, v3")
    a(f"v_and_b32 v4, 1, {v(vL)}")
    a("v_lshl_add_u32 v3, v4, 7, v3")
    a(f"s_lshl_b32 {s(T0)}, {s(sQB)}, 12")
    a(f"s_and_b32 {s(T0+1)}, {s(sS)}, 2")
    a(f"s_lshl_b32 {s(T0+1)}, {s(T0+1)}, 7")
    a(f"s_add_u32 {s(T0)}, {s(T0)}, {s(T0+1)}")
    a(f"s_add_u32 {s(T0)}, {s(T0)}, {WS_FO}")
    a(f"v_add_u32 v15, {s(T0)}, v3")
    a("s_waitcnt vmcnt(0)")
    lds_wait4(F_WO, 1, 2, 4)
    stamp(24)
    NST = 32

    def wf(st_):
        if st_ == -1:
            lds_wait4(F_CONS, 8, 2, 16)
            lds_wait4(F_CONS, 9, 2, 1)
            stamp(25)
            poll(15, 2, "L_pollo")
            stamp(26)
            for k in range(18):
                a(f"global_load_dwordx4 {v(XF+4*k,4)}, v14, {s(pWS,2)} offset:{1024*(k%4)} sc1")
                if k % 4 == 3:
                    a("v_add_u32 v14, 4096, v14")
        else:
            a(f"s_waitcnt vmcnt({17-st_})")
    proj_run(XF, ACC, ST, NST, NST - 1, wf)
    stamp(27)
    for ct in range(5):
        b = ACC + 4 * ct
        a(f"v_cvt_pk_bf16_f32 {v(b)}, {v(b)}, {v(b+1)}")
        a(f"v_cvt_pk_bf16_f32 {v(b+1)}, {v(b+2)}, {v(b+3)}")
        a(f"ds_write_b64 v249, {v(b,2)} offset:{32*ct}")
    for i in range(3):
        a(f"ds_read_b128 {v(16+4*i,4)}, v{8+i}")
    for i in range(3):
        a(f"s_waitcnt lgkmcnt({2-i})")
        if i == 2:
            a("s_mov_b64 exec, 0xffff")
        a(f"buffer_store_dwordx4 {v(16+4*i,4)}, v{11+i}, {s(SRA,4)}, {s(T0+8)} offen{OF}")
    a("s_mov_b64 exec, -1")
    a(f"s_cmp_lg_u32 s2, 0")
    a("s_cbranch_scc1 L_fin")
    a(f"s_cmp_lg_u32 {s(sWV)}, 7")
    a("s_cbranch_scc1 L_fin")
    a("v_mov_b32 v4, 0")
    a(f"v_mov_b32 v5, {s(sTAG)}")
    a("s_mov_b64 exec, 1")
    a(f"global_store_dword v4, v5, {s(pWS,2)}")
    a("s_mov_b64 exec, -1")
    a("L_fin:")
    if probe is not None:
        a("s_waitcnt vmcnt(0)")
        stamp(10)
        if opts.get("wb"):
            a("s_sleep 127")
            a("s_sleep 127")
            a("s_sleep 127")
            a("buffer_wbl2 sc1")
            a("s_waitcnt vmcnt(0)")
        a("s_sub_u32 s98, s98, s96")
        a("s_lshl_b32 s98, s98, 2")
        a("s_add_u32 s98, s98, 6000")
        a("L_probe:")
        a("s_sleep 4")
        a("s_memrealtime s[94:95]")
        a("s_waitcnt lgkmcnt(0)")
        a("s_sub_u32 s94, s94, s96")
        a("s_cmp_lt_u32 s94, s98")
        a("s_cbranch_scc1 L_probe")
    if stamps:
        a("s_waitcnt vmcnt(0)")
        stamp(10)
        if fast is not None:
            a("s_waitcnt lgkmcnt(0)")
            for k, i in enumerate(fast):
                a(f"v_writelane_b32 v255, {s(84+2*k)}, {i}")
        a(f"s_lshl_b32 {s(T0)}, s2, 11")
        a(f"s_add_u32 {s(T0)}, {s(T0)}, {WS_DBG}")
        a(f"v_lshlrev_b32 v4, 2, v0")
        a(f"v_add_u32 v4, {s(T0)}, v4")
        a(f"global_store_dword v4, v255, {s(pWS,2)}")
    a("L_exit:")
    a("s_endpgm")

    lines, nins = fix_hazards(a.L, verbose=opts.get("verbose", False))
    hdr = [ln.rstrip("\n") for ln in open(REF) if ln.startswith(";") and "@launch" not in ln]
    txt = "\n".join(hdr) + f"\n; @launch grid=(256,1,1) block=(512,1,1) lds={LDS_TOTAL}\n"
    txt += '.amdgcn_target "amdgcn-amd-amdhsa--gfx950"\n.text\n'
    txt += f".globl {kname}\n.p2align 8\n.type {kname},@function\n"
    txt += "\n".join(lines) + "\n"
    txt += f""".section .rodata,"a"
.p2align 6
.amdhsa_kernel {kname}
  .amdhsa_next_free_vgpr 256
  .amdhsa_next_free_sgpr 102
  .amdhsa_accum_offset 256
  .amdhsa_group_segment_fixed_size 0
  .amdhsa_kernarg_size 136
  .amdhsa_user_sgpr_count 2
  .amdhsa_user_sgpr_kernarg_segment_ptr 1
  .amdhsa_system_sgpr_workgroup_id_x 1
.end_amdhsa_kernel
"""
    size = text_size(txt.replace("CODE_END_OFF", "0x12345"))
    txt = txt.replace("CODE_END_OFF", str((size - 256) & ~3))
    print("code bytes", size)
    return txt, nins


if __name__ == "__main__":
    out = sys.argv[1] if len(sys.argv) > 1 else f"cdna_kernels/{NAME}.s"
    opts = {}
    for x in sys.argv[2:]:
        k, _, val = x.partition("=")
        if k == "fast":
            opts[k] = [int(y) for y in val.split(",")]
            opts["stamps"] = 1
        else:
            opts[k] = int(val) if val else 1
    txt, n = gen(opts)
    open(out, "w").write(txt)
    print("wrote", out, "bytes", len(txt), "nop states inserted", n)
```

```python
import sys, os, math, struct
sys.path.insert(0, os.path.dirname(os.path.abspath(__file__)))
from asmlib import *

NAME = "concat_heads__grouped_kv_mqa__ssm_conv_s4__prompt"
REF = f"cdna_kernels/{NAME}.s.ref"


def f32(x):
    return "0x%08x" % struct.unpack("<I", struct.pack("<f", x))[0]


LOG2E = 1.4426950408889634
QSCALE = LOG2E * (18 ** -0.5)

S_SZ = 8320
XW = 52224
WX = 125952
WK = 135424
QI = 135424
QST = 144
FL = 163584
UI = 24960
U_SZ = 4608
CB = 43392
CH_SZ = 18944
SLOT0 = 68864
SLOTSEQ = [4, 0, 1, 2, 3, 4, 1, 2]
WO_M = 0
WO_X = 73728
OT = 125696
LDS_TOTAL = 163840
CST = 4160
F_XP, F_KVD, F_QW, F_QD, F_U, F_C1, F_C2, F_TAG, F_XO, F_LOC = [FL + 4 * i for i in range(10)]
F_CONS = FL + 48
F_WK = FL + 64
F_WO = FL + 80
F_RDY = FL + 96
F_WQ = FL + 144

WS_FKV = 4096
WS_FO = 0x300000
WS_FL = 0x310000
KVL = 0x300000
WS_KV = 0x20000
WS_O = 0x50000
WS_DBG = 0x400000

sWV, sQB, sG, sCID, sTAG = 3, 4, 5, 6, 7
SRA, SRB = 8, 12
pX, pWQ, pWK, pWV, pWO, pU, pARE, pAIM, pBRE, pBIM, pCRE, pCIM, pLDT, pDSK, pOUT, pDBG, pWS = range(16, 50, 2)
sCH0, sCHS, sJJ, sXCD = 50, 51, 52, 53
T0 = 54
sPW, sG144 = 80, 81
sPC = 82
vZ = 254
vFB = 253
sTL = 79

vL = 1


def gen(opts):
    a = Asm()
    stamps = opts.get("stamps", 0)
    SLP = opts.get("sleep", 1)

    probe = opts.get("probe", None)
    YF = ["", " nt", " sc1", " sc0 sc1", " sc0"][opts.get("yf", 0)]
    OF = ["", " nt", " sc1", " sc0 sc1", " sc0"][opts.get("of", 0)]
    fast = opts.get("fast", None)

    def stamp(i, dyn=None):
        if probe is not None:
            if i == 0:
                a("s_memrealtime s[96:97]")
                a("s_waitcnt lgkmcnt(0)")
                a("s_mov_b32 s98, s96")
            elif i == probe:
                a("s_memrealtime s[98:99]")
                a("s_waitcnt lgkmcnt(0)")
        if fast is not None:
            if i in fast and dyn is None:
                k = fast.index(i)
                a(f"s_memrealtime {s(84+2*k,2)}")
            return
        if stamps:
            a("s_memrealtime s[100:101]")
            if dyn is not None:
                a(f"s_add_u32 s99, {s(dyn)}, {i}")
            a("s_waitcnt lgkmcnt(0)")
            if dyn is not None:
                a("s_mov_b32 m0, s99")
                a("v_writelane_b32 v255, s100, m0")
            else:
                a(f"v_writelane_b32 v255, s100, {i}")

    stubs = []

    def flush_stubs():
        for lab, slp in stubs:
            a(f"{lab}_s:")
            a(f"s_sleep {slp}")
            a(f"s_branch {lab}")
        stubs.clear()

    def lds_wait(addr, val, vt, st, slp=1):
        lab = a.label("Lspin")
        a(f"{lab}:")
        a(f"ds_read_b32 {v(vt)}, {v(vFB)} offset:{addr-FL}")
        a("s_waitcnt lgkmcnt(0)")
        a(f"v_cmp_gt_u32 vcc, {val}, {v(vt)}")
        if slp:
            a(f"s_cbranch_vccnz {lab}_s")
            stubs.append((lab, slp))
        else:
            a(f"s_cbranch_vccnz {lab}")

    def lds_wait4(addr, val, vt, slp=8):
        lab = a.label("Lspin")
        a(f"v_and_b32 {v(vt+1)}, 3, {v(vL)}")
        a(f"v_lshl_add_u32 {v(vt+1)}, {v(vt+1)}, 2, {v(vFB)}")
        a(f"{lab}:")
        a(f"ds_read_b32 {v(vt)}, {v(vt+1)} offset:{addr-FL}")
        a("s_waitcnt lgkmcnt(0)")
        a(f"v_cmp_gt_u32 vcc, {val}, {v(vt)}")
        if slp:
            a(f"s_cbranch_vccnz {lab}_s")
            stubs.append((lab, slp))
        else:
            a(f"s_cbranch_vccnz {lab}")

    def lds_add(addr, vt):
        a(f"v_mov_b32 {v(vt)}, 1")
        a("s_mov_b64 exec, 1")
        a(f"ds_add_u32 {v(vFB)}, {v(vt)} offset:{addr-FL}")
        a("s_mov_b64 exec, -1")

    def srd(r, p, nbytes):
        a(f"s_mov_b32 {s(r)}, {s(p)}")
        a(f"s_and_b32 {s(r+1)}, {s(p+1)}, 0xffff")
        a(f"s_mov_b32 {s(r+2)}, {nbytes}")
        a(f"s_mov_b32 {s(r+3)}, 0x20000")

    def poll(vaddr, vt, lab, n=1, tag=sTAG, limit=0x100000, slp=2):
        a(f"s_mov_b32 {s(T0)}, 0")
        a(f"{lab}:")
        for i in range(n):
            a(f"global_load_dword {v(vt+i)}, {v(vaddr+i)}, {s(pWS,2)} sc1")
        a(f"s_add_u32 {s(T0)}, {s(T0)}, 1")
        a("s_waitcnt vmcnt(0)")
        if n == 1:
            a(f"v_cmp_ne_u32 vcc, {s(tag)}, {v(vt)}")
        else:
            for i in range(n):
                a(f"v_xor_b32 {v(vt+i)}, {s(tag)}, {v(vt+i)}")
            for i in range(1, n):
                a(f"v_or_b32 {v(vt)}, {v(vt)}, {v(vt+i)}")
            a(f"v_cmp_ne_u32 vcc, 0, {v(vt)}")
        a(f"s_cmp_gt_u32 {s(T0)}, {limit}")
        a(f"s_cbranch_scc1 {lab}_d")
        a(f"s_cbranch_vccnz {lab}_s")
        stubs.append((lab, slp))
        a(f"{lab}_d:")

    def mkloc():
        a(f"s_getreg_b32 {s(sTL)}, hwreg(HW_REG_XCC_ID, 0, 4)")
        a(f"s_add_u32 {s(sTL)}, {s(sTL)}, 1")
        a(f"s_mul_i32 {s(sTL)}, {s(sTL)}, 0x01010101")
        a(f"s_xor_b32 {s(sTL)}, {s(sTL)}, {s(sTAG)}")

    def dflag(addr):
        if isinstance(addr, int):
            a(f"s_mov_b32 m0, {addr}")
        else:
            a(addr)
        a("s_mov_b64 exec, 1")
        a(f"global_load_lds_dword {v(vZ)}, {s(sPC,2)}")
        a("s_mov_b64 exec, -1")

    def gettag(vt):
        a(f"ds_read_b32 {v(vt)}, {v(vFB)} offset:{F_TAG-FL}")
        a("s_waitcnt lgkmcnt(0)")
        a(f"v_readfirstlane_b32 {s(sTAG)}, {v(vt)}")

    def lds_set(addr, val, vt):
        a(f"v_mov_b32 {v(vt)}, {val}")
        a(f"ds_write_b32 {v(vFB)}, {v(vt)} offset:{addr-FL}")

    def wo_dma(sW):
        a(f"v_lshrrev_b32 v2, 3, {v(vL)}")
        a(f"v_and_b32 v3, 7, {v(vL)}")
        a("v_and_b32 v4, 2, v2")
        a("v_xor_b32 v4, v3, v4")
        a(f"s_and_b32 {s(T0)}, {s(sW)}, 1")
        a(f"s_lshl_b32 {s(T0)}, {s(T0)}, 2")
        a(f"v_xor_b32 v4, {s(T0)}, v4")
        a("v_lshlrev_b32 v4, 4, v4")
        a(f"s_movk_i32 {s(T0)}, 1152")
        a(f"v_mad_u32_u24 v5, v2, {s(T0)}, v4")
        a("v_lshrrev_b32 v7, 1, v2")
        a("v_mul_u32_u24 v7, 18, v7")
        a("v_and_b32 v8, 1, v2")
        a("v_add_u32 v7, v7, v8")
        a(f"v_mad_u32_u24 v6, v7, {s(T0)}, v4")
        a("v_mul_u32_u24 v10, 1152, v3")
        a("v_add_u32 v10, 128, v10")
        a("v_lshrrev_b32 v7, 1, v3")
        a("v_mul_u32_u24 v7, 18, v7")
        a("v_and_b32 v8, 1, v3")
        a("v_add_u32 v7, v7, v8")
        a("v_mul_u32_u24 v11, 1152, v7")
        a("v_add_u32 v11, 128, v11")
        a(f"s_mul_i32 {s(T0+3)}, {s(sW)}, 18432")
        a(f"s_lshl_b32 {s(T0+4)}, {s(sW)}, 7")
        a(f"s_mov_b32 {s(T0+6)}, {s(sW)}")
        a(f"s_mov_b32 {s(T0+7)}, 0")
        lab = a.label("Lwo")
        a(f"{lab}:")
        a(f"s_mul_i32 {s(T0+1)}, {s(T0+6)}, 7282")
        a(f"s_lshr_b32 {s(T0+1)}, {s(T0+1)}, 16")
        a(f"s_mul_i32 {s(T0+2)}, {s(T0+1)}, 9")
        a(f"s_sub_u32 {s(T0+2)}, {s(T0+6)}, {s(T0+2)}")
        a(f"s_mul_i32 {s(T0+1)}, {s(T0+1)}, 72")
        a(f"s_mul_i32 {s(T0+5)}, {s(T0+2)}, 9")
        a(f"s_and_b32 {s(T0+8)}, {s(T0+2)}, 1")
        a(f"s_sub_u32 {s(T0+5)}, {s(T0+5)}, {s(T0+8)}")
        a(f"s_cmp_eq_u32 {s(T0+2)}, 8")
        a(f"s_cselect_b32 {s(T0+5)}, 16, {s(T0+5)}")
        a(f"s_cselect_b64 vcc, -1, 0")
        a(f"s_add_u32 {s(T0+5)}, {s(T0+5)}, {s(T0+1)}")
        a(f"s_mul_i32 {s(T0+5)}, {s(T0+5)}, 1152")
        a(f"s_add_u32 {s(T0+5)}, {s(T0+5)}, {s(sG144)}")
        a("v_cndmask_b32 v7, v5, v6, vcc")
        a(f"s_add_u32 m0, {s(T0+3)}, {WO_M}")
        a(f"s_add_u32 {s(T0+3)}, {s(T0+3)}, 1024")
        a(f"buffer_load_dwordx4 v7, {s(SRB,4)}, {s(T0+5)} offen lds")
        a("v_cndmask_b32 v8, v10, v11, vcc")
        a(f"s_add_u32 m0, {s(T0+4)}, {WO_X}")
        a(f"s_add_u32 {s(T0+4)}, {s(T0+4)}, 512")
        a("s_mov_b64 exec, 0xff")
        a(f"buffer_load_dwordx4 v8, {s(SRB,4)}, {s(T0+5)} offen lds")
        a("s_mov_b64 exec, -1")
        a(f"s_add_u32 {s(T0+6)}, {s(T0+6)}, 4")
        a(f"s_cmp_lt_u32 {s(T0+6)}, 72")
        a(f"s_cbranch_scc1 {lab}")

    def proj_setup(ACC, ldsM, ldsX, rot=False):
        a(f"v_lshrrev_b32 v2, 4, {v(vL)}")
        a(f"v_bfe_u32 v3, {v(vL)}, 2, 2")
        a(f"v_and_b32 v4, 3, {v(vL)}")
        a("v_lshrrev_b32 v6, 1, v3")
        a("v_and_b32 v7, 1, v2")
        a("v_lshl_or_b32 v6, v7, 1, v6")
        if rot:
            a(f"v_subrev_u32 v5, {s(sPW)}, v2")
            a("v_add_u32 v5, 3, v5")
            a("v_and_b32 v5, 3, v5")
            a("v_mul_u32_u24 v5, 2304, v5")
        else:
            a("v_mul_u32_u24 v5, 2304, v2")
        a("v_lshl_add_u32 v5, v3, 4, v5")
        a("v_lshlrev_b32 v7, 3, v5")
        a("v_lshl_add_u32 v7, v4, 3, v7")
        a(f"v_add_u32 v7, {ldsM}, v7")
        a("v_and_b32 v4, 1, v4")
        a("v_lshl_add_u32 v5, v2, 3, v3")
        a("v_lshlrev_b32 v5, 4, v5")
        a("v_lshl_add_u32 v244, v4, 3, v5")
        a(f"v_add_u32 v244, {ldsX}, v244")
        for ct in range(4):
            a(f"v_xor_b32 v2, {ct}, v6")
            a(f"v_lshl_add_u32 v{240+ct}, v2, 5, v7")
        for i in range(20):
            a(f"v_mov_b32 {v(ACC+i)}, 0")

    def proj_run(XF, ACC, ST, NST, pre, wait_fn, rwait_fn=None, rev=False):
        def rd(f):
            st_, ct = divmod(f, 5)
            if rwait_fn and ct == 0:
                rwait_fn(st_)
            b = ST + 4 * (f % NST)
            if ct < 4:
                o = 1024 * ((17 - st_) if rev else st_)
                a(f"ds_read_b64_tr_b16 {v(b,2)}, v{240+ct} offset:{o}")
                a(f"ds_read_b64_tr_b16 {v(b+2,2)}, v{240+ct} offset:{o+512}")
            else:
                a(f"ds_read_b64_tr_b16 {v(b,2)}, v244 offset:{512*st_}")
                a(f"ds_read_b64_tr_b16 {v(b+2,2)}, v244 offset:{512*st_+64}")
        for f in range(pre):
            rd(f)
        wait_fn(-1)
        W = opts.get("pw", 3)
        for f in range(90):
            st_, ct = divmod(f, 5)
            if ct == 0:
                wait_fn(st_)
            if f % W == 0:
                issued = min(90, f + pre)
                needed = min(90, f + W)
                a(f"s_waitcnt lgkmcnt({min(15, 2*(issued-needed))})")
            b = ST + 4 * (f % NST)
            a(f"v_mfma_f32_16x16x32_bf16 {v(ACC+4*ct,4)}, {v(b,4)}, {v(XF+4*st_,4)}, {v(ACC+4*ct,4)}")
            if f + pre < 90:
                rd(f + pre)

    XF, ACC, ST = 16, 88, 108
    SX, SY, OA, OB = 16, 48, 160, 176
    QA, QB, QX0, QX1, IDX = 192, 196, 200, 202, 204
    KF, V0F, V1F, KXF = 208, 216, 224, 232
    vK, vV, vKl, vVl, vFl, vCo, vCv, vFa, vQa, vQx, vQw = 140, 141, 142, 143, 144, 145, 146, 147, 148, 149, 154
    sI, sSEQ, sNB, sLOC = T0 + 10, T0 + 11, T0 + 12, T0 + 13

    def a_setup():
        a(f"v_and_b32 v2, 15, {v(vL)}")
        a(f"v_lshrrev_b32 v3, 4, {v(vL)}")
        a(f"v_mul_u32_u24 v4, 1152, v2")
        a(f"v_add_u32 v4, {s(T0+1)}, v4")
        for t in range(8):
            a(f"v_add_u32 v5, {t}, v2")
            a("v_and_b32 v5, 7, v5")
            a("v_xor_b32 v5, v5, v3")
            a(f"v_lshl_add_u32 {v(ST+t)}, v5, 4, v4")
            a(f"v_xor_b32 {v(ST+8+t)}, 64, {v(ST+t)}")

        a(f"v_and_b32 v2, 31, {v(vL)}")
        a(f"v_lshrrev_b32 v3, 5, {v(vL)}")
        a(f"v_mul_u32_u24 v4, {QST}, v2")
        a(f"s_lshr_b32 {s(T0+16)}, {s(sWV)}, 1")
        a(f"s_mul_i32 {s(T0+16)}, {s(T0+16)}, {32*QST}")
        a(f"s_and_b32 {s(T0+17)}, {s(sWV)}, 1")
        a(f"s_mul_i32 {s(T0+17)}, {s(T0+17)}, 72")
        a(f"s_add_u32 {s(T0+16)}, {s(T0+16)}, {s(T0+17)}")
        a(f"s_add_u32 {s(T0+16)}, {s(T0+16)}, {QI}")
        a(f"v_add_u32 v4, {s(T0+16)}, v4")
        a(f"v_mad_u32_u24 {v(vQx)}, v3, 36, v4")
        a(f"v_lshl_add_u32 {v(vQa)}, v3, 4, v4")
        a(f"v_lshlrev_b32 {v(vKl)}, 4, {v(vL)}")
        a("v_and_b32 v6, 19, v2")
        a("v_bfe_u32 v7, v2, 2, 1")
        a("v_lshl_or_b32 v6, v7, 3, v6")
        a("v_bfe_u32 v7, v2, 3, 1")
        a("v_lshl_or_b32 v6, v7, 2, v6")
        a("v_mad_u32_u24 v6, v3, 18, v6")
        a("v_and_b32 v7, 27, v2")
        a("v_cmp_eq_u32 vcc, 18, v7")
        a("v_mov_b32 v8, 36")
        a("v_cndmask_b32 v7, 37, v8, vcc")
        a("v_cmp_gt_u32 vcc, 18, v2")
        a(f"v_mov_b32 {v(IDX)}, 0xdddd")
        a("v_cndmask_b32 v6, v7, v6, vcc")
        a(f"v_lshlrev_b32 {v(vVl)}, 4, v6")
        a(f"v_add_u32 {v(vVl)}, 1024, {v(vVl)}")
        b0 = SLOT0 + CH_SZ * SLOTSEQ[0]
        a(f"v_add_u32 {v(vK)}, {b0}, {v(vKl)}")
        a(f"v_add_u32 {v(vV)}, {b0}, {v(vVl)}")
        a(f"v_mov_b32 {v(vFa)}, {F_RDY + 4}")
        a(f"s_lshl_b32 {s(T0+16)}, {s(sWV)}, 2")
        a(f"s_add_u32 {s(T0+16)}, {s(T0+16)}, {F_CONS}")
        a(f"v_mov_b32 {v(vCo)}, {s(T0+16)}")
        a(f"v_mov_b32 {v(vCv)}, 0")
        for i in range(32):
            a(f"v_mov_b32 {v(OA+i)}, 0")
        a(f"v_mov_b32 {v(QX0+1)}, 0")
        a(f"v_mov_b32 {v(QX1)}, 0")
        seq = 0
        for i, k in enumerate(SLOTSEQ[1:] + [SLOTSEQ[-1]]):
            seq |= k << (4 * i)
        a(f"s_mov_b32 {s(sSEQ)}, {hex(seq)}")
        a(f"s_mov_b32 {s(sI)}, 0")
        for i in range(4):
            a(f"v_mov_b32 {v(V1F+4+i)}, 0")
        a(f"v_and_b32 v2, 15, {v(vL)}")
        a(f"v_lshrrev_b32 v3, 4, {v(vL)}")
        a(f"v_mul_u32_u24 v2, {QST}, v2")
        a("v_lshl_add_u32 v2, v3, 3, v2")
        a(f"s_mul_i32 {s(T0+16)}, {s(sWV)}, {16*QST}")
        a(f"s_add_u32 {s(T0+16)}, {s(T0+16)}, {QI}")
        a(f"v_add_u32 {v(vQw)}, {s(T0+16)}, v2")

        proj_setup(ACC, XW, WX, True)

    kname = NAME + "_kernel"
    a(f"{kname}:")
    if stamps:
        a("v_mov_b32 v255, 0")
    if fast is not None:
        for k in range(1, len(fast)):
            a(f"s_mov_b32 {s(84+2*k)}, 0")
    stamp(0)
    a("s_cmp_ge_u32 s2, 256")
    a("s_cbranch_scc1 L_exit")
    a("s_load_dwordx16 s[16:31], s[0:1], 0")
    a("s_load_dwordx16 s[32:47], s[0:1], 64")
    a("s_load_dwordx2 s[48:49], s[0:1], 128")
    a(f"s_getpc_b64 {s(sPC,2)}")
    a(f"v_lshrrev_b32 v2, 6, v0")
    a(f"v_mov_b32 {v(vZ)}, 0")
    a(f"v_mov_b32 {v(vFB)}, {FL}")
    a(f"v_and_b32 {v(vL)}, 63, v0")
    a(f"v_readfirstlane_b32 {s(sWV)}, v2")
    a(f"s_and_b32 {s(sXCD)}, s2, 7")
    a(f"s_lshr_b32 {s(T0+1)}, s2, 3")
    a(f"s_and_b32 {s(T0+2)}, {s(T0+1)}, 3")
    a(f"s_lshl_b32 {s(sQB)}, {s(sXCD)}, 2")
    a(f"s_add_u32 {s(sQB)}, {s(sQB)}, {s(T0+2)}")
    a(f"s_lshr_b32 {s(sG)}, {s(T0+1)}, 2")
    a(f"s_lshl_b32 {s(sCID)}, {s(sXCD)}, 5")
    a(f"s_add_u32 {s(sCID)}, {s(sCID)}, {s(T0+1)}")
    a(f"s_cmp_lg_u32 {s(sWV)}, 6")
    a("s_cbranch_scc1 L_e1")
    a(f"s_and_b32 {s(T0+3)}, {s(T0+1)}, 15")
    a(f"s_lshl_b32 {s(T0+3)}, {s(T0+3)}, 11")
    a(f"v_and_b32 v2, 15, {v(vL)}")
    a(f"v_lshlrev_b32 v2, 7, v2")
    a(f"v_add_u32 v2, {s(T0+3)}, v2")
    a(f"v_min_u32 v2, CODE_END_OFF, v2")
    a(f"global_load_dword v252, v2, {s(sPC,2)}")
    a(f"v_lshlrev_b32 v2, 2, {v(vL)}")
    a(f"v_add_u32 v2, {FL}, v2")
    a("v_mov_b32 v4, 0")
    a("ds_write_b32 v2, v4")
    a("L_e1:")
    a(f"s_lshr_b32 {s(T0)}, {s(sCID)}, 2")
    a(f"s_and_b32 {s(sJJ)}, {s(sCID)}, 3")
    a(f"s_mul_i32 {s(T0+1)}, {s(T0)}, 9")
    a(f"s_and_b32 {s(T0+2)}, {s(T0)}, 1")
    a(f"s_lshl_b32 {s(sCH0)}, {s(sJJ)}, 1")
    a(f"s_add_u32 {s(sCH0)}, {s(sCH0)}, {s(T0+1)}")
    a(f"s_add_u32 {s(sCH0)}, {s(sCH0)}, {s(T0+2)}")
    a(f"s_cmp_eq_u32 {s(T0+2)}, 0")
    a(f"s_cselect_b32 {s(sCHS)}, 8, 0")
    a(f"s_add_u32 {s(sCHS)}, {s(sCHS)}, {s(T0+1)}")
    a(f"s_lshr_b32 {s(sPW)}, {s(sG)}, 1")
    a(f"s_mul_i32 {s(sG144)}, {s(sG)}, 144")
    a(f"s_sub_u32 {s(T0)}, {s(sWV)}, 4")
    a(f"s_cmp_lt_u32 {s(T0)}, 3")
    a("s_cbranch_scc1 L_h0")
    a(f"v_lshrrev_b32 v2, 3, {v(vL)}")
    a(f"v_xor_b32 v2, v2, {v(vL)}")
    a("v_lshlrev_b32 v157, 4, v2")
    a(f"s_cmp_eq_u32 {s(sWV)}, 7")
    a(f"s_cselect_b32 {s(T0+2)}, {s(sPW)}, {s(sWV)}")
    a(f"s_cselect_b32 {s(T0+3)}, 1, 0")
    a(f"s_mul_i32 {s(T0+1)}, {s(T0+2)}, 18432")
    a(f"s_mul_i32 {s(T0)}, {s(sQB)}, 73728")
    a(f"s_add_u32 {s(T0)}, {s(T0)}, {s(T0+1)}")
    a(f"s_sub_u32 {s(T0+4)}, {s(T0+2)}, {s(sPW)}")
    a(f"s_and_b32 {s(T0+4)}, {s(T0+4)}, 3")
    a(f"s_cmp_eq_u32 {s(T0+4)}, 0")
    a("s_cbranch_scc1 L_x0")
    a(f"s_sub_u32 {s(T0+4)}, {s(T0+4)}, 1")
    a(f"s_mul_i32 {s(T0+1)}, {s(T0+4)}, 18432")
    a(f"s_mov_b32 {s(T0+8)}, {s(T0+1)}")
    a(f"s_lshl_b32 {s(T0+5)}, {s(T0+4)}, 6")
    a(f"v_add_u32 v3, {s(T0+5)}, {v(vL)}")
    a("v_mul_u32_u24 v4, 21846, v3")
    a("v_lshrrev_b32 v4, 16, v4")
    a("v_mul_u32_u24 v5, 3, v4")
    a("v_sub_u32 v5, v3, v5")
    a("v_lshlrev_b32 v5, 4, v5")
    a("v_min_u32 v5, 20, v5")
    a(f"v_mad_u32_u24 v6, v4, 36, v5")
    a(f"s_lshl_b32 {s(T0+5)}, {s(T0+4)}, 10")
    a(f"s_and_b32 {s(T0+6)}, {s(sQB)}, 3")
    a(f"s_cmp_eq_u32 {s(T0+6)}, 3")
    a(f"s_cselect_b32 {s(T0+6)}, 0, {s(T0+6)}")
    for k in range(3):
        a(f"s_mul_i32 {s(T0+7)}, {s(T0+6)}, 6912")
        a(f"v_add_u32 v{8+k}, {s(T0+7)}, v6")
        a(f"s_mul_i32 {s(T0+9+k)}, {s(T0+6)}, 9216")
        a(f"s_add_u32 {s(T0+9+k)}, {s(T0+9+k)}, {s(T0+5)}")
        if k < 2:
            a(f"s_add_u32 {s(T0+6)}, {s(T0+6)}, 1")
            a(f"s_cmp_eq_u32 {s(T0+6)}, 3")
            a(f"s_cselect_b32 {s(T0+6)}, 0, {s(T0+6)}")
    a(f"s_lshr_b32 {s(T0+6)}, s2, 3")
    a(f"s_mul_i32 {s(T0+6)}, {s(T0+6)}, 3")
    a(f"s_add_u32 {s(T0+4)}, {s(T0+4)}, {s(T0+6)}")
    a(f"s_mul_i32 {s(T0+4)}, {s(T0+4)}, 6912")
    a(f"v_min_u32 v3, 53, {v(vL)}")
    a("v_lshlrev_b32 v3, 7, v3")
    a(f"v_add_u32 v3, {s(T0+4)}, v3")
    a(f"s_bitcmp1_b32 {s(sG)}, 0")
    a("s_waitcnt lgkmcnt(0)")
    a(f"s_cselect_b32 {s(T0+6)}, {s(pWV)}, {s(pWK)}")
    a(f"s_cselect_b32 {s(T0+7)}, {s(pWV+1)}, {s(pWK+1)}")
    for j in range(9):
        a(f"s_add_u32 m0, {s(T0+9+j//3)}, {WK+3072*(j%3)}")
        a(f"v_add_u32 v7, {2304*(j%3)}, v{8+j//3}")
        a(f"global_load_lds_dwordx4 v7, {s(T0+6,2)}")
    a(f"s_lshr_b32 {s(T0+5)}, {s(T0+5)}, 8")
    a("s_barrier")
    dflag(f"s_add_u32 m0, {s(T0+5)}, {F_WK}")
    a("s_barrier")
    a(f"global_load_dword v159, v3, {s(pWQ,2)}")
    a("s_branch L_a1")
    a("L_x0:")
    a(f"s_cmp_eq_u32 {s(T0+3)}, 1")
    a("s_cbranch_scc1 L_x0b")
    a("s_setprio 2")
    a("L_x0b:")
    a(f"s_xor_b32 {s(T0+3)}, {s(T0+3)}, {s(sG)}")
    a(f"s_and_b32 {s(T0+3)}, {s(T0+3)}, 1")
    a(f"s_mul_i32 {s(T0+3)}, {s(T0+3)}, 9216")
    a(f"s_add_u32 {s(T0)}, {s(T0)}, {s(T0+3)}")
    a(f"s_mov_b32 {s(T0+1)}, {XW+3*18432}")
    a(f"s_add_u32 m0, {s(T0+1)}, {s(T0+3)}")
    a(f"v_add_u32 v157, {s(T0)}, v157")
    a("s_waitcnt lgkmcnt(0)")
    for j in range(9):
        a(f"global_load_lds_dwordx4 v157, {s(pX,2)} offset:{1024*(j%3)}")
        if j in (2, 5):
            a("s_add_u32 m0, m0, 3072")
            a("v_add_u32 v157, 3072, v157")
    a(f"s_cmp_lg_u32 {s(sWV)}, 7")
    a("s_cbranch_scc1 L_a1")
    a("s_barrier")
    dflag(F_WK + 12)
    a("s_barrier")
    a("s_branch L_loader")
    a("L_h0:")
    a("s_setprio 3")
    a(f"s_add_u32 {s(T0+1)}, {s(sCH0)}, {s(T0)}")
    a(f"s_cmp_eq_u32 {s(T0)}, 2")
    a(f"s_cselect_b32 {s(T0+1)}, {s(sCHS)}, {s(T0+1)}")
    a(f"s_lshl_b32 {s(T0+2)}, {s(T0+1)}, 8")
    a(f"v_lshlrev_b32 v2, 2, {v(vL)}")
    a(f"v_add_u32 v3, {s(T0+2)}, v2")
    a(f"s_lshl_b32 {s(T0+2)}, {s(T0+1)}, 1")
    a(f"v_mov_b32 v11, {s(T0+2)}")
    a(f"s_lshl_b32 {s(T0+2)}, {s(sXCD)}, 7")
    a(f"s_add_u32 {s(T0+2)}, {s(T0+2)}, {WS_FL}")
    a(f"v_mov_b32 v12, {s(T0+2)}")
    a("s_waitcnt lgkmcnt(0)")
    PR = 4
    a(f"global_load_ushort v10, v11, {s(pLDT,2)}")
    a(f"global_load_dword v251, v12, {s(pWS,2)} sc1")
    a(f"global_load_ushort v11, v11, {s(pDSK,2)}")
    for i, p in enumerate((pARE, pAIM, pBRE, pBIM, pCRE, pCIM)):
        a(f"global_load_dword v{PR+i}, v3, {s(p,2)}")
    a("s_barrier")
    a("s_barrier")
    a("s_branch L_kgen")

    a("L_a1:")
    stamp(12)
    a("s_setprio 2")
    a_setup()
    a(f"s_cmp_lg_u32 {s(sPW)}, {s(sWV)}")
    a("s_cbranch_scc1 L_np")
    a("s_setprio 3")
    a(f"s_load_dword {s(sTAG)}, {s(pWS,2)}, 0")
    a(f"v_lshrrev_b32 v2, 4, {v(vL)}")
    a(f"v_bfe_u32 v3, {v(vL)}, 2, 2")
    a(f"v_and_b32 v4, 3, {v(vL)}")
    a("v_lshl_add_u32 v5, v2, 3, v3")
    a("v_mul_u32_u24 v5, 48, v5")
    a(f"v_add_u32 v5, {WK}, v5")
    a("v_lshl_add_u32 v6, v4, 3, v5")
    a("v_add_u32 v7, 40, v5")
    a(f"s_lshr_b32 {s(T0+1)}, {s(sQB)}, 2")
    a(f"s_mul_i32 {s(T0+1)}, {s(T0+1)}, {CH_SZ}")
    a(f"s_add_u32 {s(T0+1)}, {s(T0+1)}, {WS_KV}")
    a(f"s_and_b32 {s(T0+2)}, {s(sQB)}, 3")
    a(f"s_lshl_b32 {s(T0+3)}, {s(T0+2)}, 1")
    a(f"s_lshr_b32 {s(T0+4)}, {s(sWV)}, 1")
    a(f"s_add_u32 {s(T0+3)}, {s(T0+3)}, {s(T0+4)}")
    a(f"s_mul_i32 {s(T0+3)}, {s(T0+3)}, 2240")
    a(f"s_add_u32 {s(T0+3)}, {s(T0+3)}, {s(T0+1)}")
    a(f"s_and_b32 {s(T0+4)}, {s(sWV)}, 1")
    a(f"v_and_b32 v3, 15, {v(vL)}")
    a("v_lshrrev_b32 v12, 1, v2")
    a("v_and_b32 v13, 1, v2")
    a("v_lshlrev_b32 v13, 3, v13")
    a("v_lshl_add_u32 v13, v3, 4, v13")
    a("v_lshl_add_u32 v130, v12, 9, v13")
    a(f"s_lshl_b32 {s(T0+5)}, {s(T0+4)}, 8")
    a(f"s_add_u32 {s(T0+5)}, {s(T0+5)}, {s(T0+3)}")
    a(f"v_add_u32 v150, {s(T0+5)}, v130")
    a(f"s_lshl_b32 {s(T0+2)}, {s(T0+2)}, 2")
    a(f"s_lshl_b32 {s(T0+5)}, {s(sWV)}, 8")
    a(f"s_add_u32 {s(T0+2)}, {s(T0+2)}, {s(T0+5)}")
    a(f"s_add_u32 {s(T0+2)}, {s(T0+2)}, {s(T0+1)}")
    a(f"s_add_u32 {s(T0+2)}, {s(T0+2)}, 17920")
    a("v_lshlrev_b32 v151, 4, v3")
    a(f"v_add_u32 v151, {s(T0+2)}, v151")
    a(f"s_movk_i32 {s(T0)}, 288")
    a(f"v_mad_u32_u24 v152, v12, {s(T0)}, v13")
    a(f"s_mul_i32 {s(T0+4)}, {s(T0+4)}, 608")
    a(f"s_add_u32 {s(T0+3)}, {s(T0+3)}, {s(T0+4)}")
    a(f"s_add_u32 {s(T0+3)}, {s(T0+3)}, 1024")
    a(f"v_add_u32 v152, {s(T0+3)}, v152")
    a("v_cmp_eq_u32 vcc, 4, v3")
    a("v_mov_b32 v153, 0x3f803f80")
    a(f"s_lshl_b32 {s(T0)}, {s(sQB)}, 3")
    a("v_cndmask_b32 v153, 0, v153, vcc")
    a(f"s_add_u32 {s(T0)}, {s(T0)}, {s(sG)}")
    a(f"s_lshl_b32 {s(T0)}, {s(T0)}, 7")
    a(f"s_add_u32 {s(T0)}, {s(T0)}, {WS_FKV}")
    a(f"v_mov_b32 v14, {s(T0)}")
    a("s_barrier")
    a("s_barrier")
    a("s_waitcnt lgkmcnt(0)")
    a(f"s_mul_i32 {s(sTAG)}, {s(sTAG)}, 0x9E3779B1")
    a(f"s_add_u32 {s(sTAG)}, {s(sTAG)}, 0x632BE5AB")
    a(f"v_mov_b32 v15, {s(sTAG)}")
    a(f"ds_write_b32 {v(vFB)}, v15 offset:{F_TAG-FL}")
    mkloc()
    a(f"s_lshl_b32 {s(T0)}, {s(sQB)}, 3")
    a(f"s_add_u32 {s(T0)}, {s(T0)}, {s(sG)}")
    a(f"s_lshl_b32 {s(T0)}, {s(T0)}, 2")
    a(f"s_add_u32 {s(T0)}, {s(T0)}, {WS_FL}")
    a(f"v_mov_b32 v155, {s(T0)}")
    a(f"v_mov_b32 v156, {s(sTL)}")
    a(f"s_add_u32 {s(T0+6)}, {s(pWS)}, {KVL}")
    a(f"s_addc_u32 {s(T0+7)}, {s(pWS+1)}, 0")
    a("s_waitcnt vmcnt(0)")
    stamp(13)
    lds_wait4(F_WK, 1, 8, 0)
    stamp(14)
    for st_ in range(18):
        a(f"ds_read_b128 {v(XF+4*st_,4)}, {v(ST+8*(st_&1)+((st_>>1)&7))} offset:{128*(st_>>1)}")
    lds_set(F_XP, 1, 8)
    a("v_cmp_le_u32 vcc, 4, v3")
    a(f"s_bitcmp1_b32 {s(sG)}, 0")
    a("s_cbranch_scc1 L_pv")

    def kvproj(isV):
        NR, PRE = 8, 7

        def rd(f):
            st_, tl = divmod(f, 2)
            b = ST + 4 * (f % NR)
            o = 48 * 32 * st_
            a(f"ds_read_b64_tr_b16 {v(b,2)}, v{6+tl} offset:{o}")
            a(f"ds_read_b64_tr_b16 {v(b+2,2)}, v{6+tl} offset:{o+192}")
        for f in range(PRE):
            rd(f)
        for f in range(36):
            st_, tl = divmod(f, 2)
            a(f"s_waitcnt lgkmcnt({2*min(PRE-1, 35-f)})")
            w_, x_ = v(ST + 4 * (f % NR), 4), v(XF + 4 * st_, 4)
            A_, B_ = (x_, w_) if isV else (w_, x_)
            a(f"v_mfma_f32_16x16x32_bf16 {v(ACC+4*tl,4)}, {A_}, {B_}, {v(ACC+4*tl,4)}")
            if f + PRE < 36:
                rd(f + PRE)

    kvproj(False)
    a(f"v_cvt_pk_bf16_f32 v8, {v(ACC)}, {v(ACC+1)}")
    a(f"v_cvt_pk_bf16_f32 v9, {v(ACC+2)}, {v(ACC+3)}")
    a(f"global_store_dwordx2 v150, v[8:9], {s(T0+6,2)}")
    a(f"v_cvt_pk_bf16_f32 v10, {v(ACC+6)}, {v(ACC+7)}")
    a("s_mov_b64 exec, 0xffff")
    a(f"global_store_dword v151, v10, {s(T0+6,2)}")
    a("s_waitcnt vmcnt(0)")
    a("s_mov_b64 exec, 1")
    a(f"global_store_dword v155, v156, {s(pWS,2)}")
    a("s_mov_b64 exec, 0xffff")
    a(f"global_store_dword v151, v10, {s(pWS,2)} sc1")
    a("s_mov_b64 exec, -1")
    a(f"global_store_dwordx2 v150, v[8:9], {s(pWS,2)} sc1")
    a("s_branch L_pub")
    a("L_pv:")
    kvproj(True)
    a(f"v_cvt_pk_bf16_f32 v8, {v(ACC)}, {v(ACC+1)}")
    a(f"v_cvt_pk_bf16_f32 v9, {v(ACC+2)}, {v(ACC+3)}")
    a(f"global_store_dwordx2 v152, v[8:9], {s(T0+6,2)}")
    a(f"v_cvt_pk_bf16_f32 v10, {v(ACC+4)}, {v(ACC+5)}")
    a(f"v_cvt_pk_bf16_f32 v11, {v(ACC+6)}, {v(ACC+7)}")
    a("v_cndmask_b32 v10, v10, v153, vcc")
    a("v_cndmask_b32 v11, v11, v153, vcc")
    a(f"s_mov_b32 exec_lo, 0x000c000c")
    a(f"s_mov_b32 exec_hi, 0x003c003c")
    a(f"global_store_dwordx2 v152, v[10:11], {s(T0+6,2)} offset:224")
    a(f"s_mov_b64 {s(T0+2,2)}, exec")
    a("s_waitcnt vmcnt(0)")
    a("s_mov_b64 exec, 1")
    a(f"global_store_dword v155, v156, {s(pWS,2)}")
    a(f"s_mov_b64 exec, {s(T0+2,2)}")
    a(f"global_store_dwordx2 v152, v[10:11], {s(pWS,2)} offset:224 sc1")
    a("s_mov_b64 exec, -1")
    a(f"global_store_dwordx2 v152, v[8:9], {s(pWS,2)} sc1")
    a("L_pub:")
    stamp(15)
    lds_set(F_KVD, 1, 2)
    for i in range(8):
        a(f"v_mov_b32 {v(ACC+i)}, 0")
    a("s_waitcnt vmcnt(0)")
    a("s_mov_b64 exec, 1")
    a(f"global_store_dword v14, v15, {s(pWS,2)} sc1")
    a("s_mov_b64 exec, -1")
    stamp(2)
    a("s_branch L_qproj")
    a("L_np:")
    a(f"s_mov_b32 m0, {s(T0+1)}")
    a(f"v_add_u32 v157, {s(T0)}, v157")
    for j in range(18):
        a(f"global_load_lds_dwordx4 v157, {s(pX,2)} offset:{1024*(j%4)}")
        if j % 4 == 3:
            a("s_add_u32 m0, m0, 4096")
            a("v_add_u32 v157, 4096, v157")
    a("s_waitcnt vmcnt(0) lgkmcnt(0)")
    stamp(1)
    for st_ in range(18):
        a(f"ds_read_b128 {v(XF+4*st_,4)}, {v(ST+8*(st_&1)+((st_>>1)&7))} offset:{128*(st_>>1)}")
    lds_add(F_XO, 2)
    a("L_qproj:")
    stamp(16)
    a("s_setprio 2")
    lds_wait(F_KVD, 1, 4, T0, 2)
    gettag(4)

    chk = {0: 3, 6: 5, 10: 7, 14: 8, 16: 9}

    def qr(st_):
        if st_ in chk:
            lds_wait(F_WQ + 4 * (chk[st_] - 1), 1, 2, T0, 1 if st_ else 2)
            if st_ == 0:
                stamp(28)
            if st_ == 16:
                stamp(30)
    proj_run(XF, ACC, ST, 8, 8 - 1, lambda st_: None, qr, True)
    stamp(18)
    a(f"s_mov_b32 {s(T0)}, {f32(QSCALE)}")
    a(f"s_mov_b32 {s(T0+1)}, {f32(QSCALE)}")
    for ct in range(5):
        b = ACC + 4 * ct
        a(f"v_pk_mul_f32 {v(b,2)}, {v(b,2)}, {s(T0,2)}")
        a(f"v_pk_mul_f32 {v(b+2,2)}, {v(b+2,2)}, {s(T0,2)}")
        a(f"v_cvt_pk_bf16_f32 {v(b)}, {v(b)}, {v(b+1)}")
        a(f"v_cvt_pk_bf16_f32 {v(b+1)}, {v(b+2)}, {v(b+3)}")
        if ct == 4:
            a("s_mov_b32 exec_hi, 0")
        a(f"ds_write_b64 {v(vQw)}, {v(b,2)} offset:{32*ct}")
    a("s_mov_b64 exec, -1")
    lds_add(F_QW, 2)
    for i in range(8):
        a(f"v_mov_b32 {v(SY+24+i)}, 0")

    lds_wait(F_QW, 4, 8, T0, 0)
    a(f"ds_read2_b32 {v(QA,2)}, {v(vQa)} offset0:0 offset1:1")
    a(f"ds_read2_b32 {v(QA+2,2)}, {v(vQa)} offset0:2 offset1:3")
    a(f"ds_read2_b32 {v(QB,2)}, {v(vQa)} offset0:9 offset1:10")
    a(f"ds_read2_b32 {v(QB+2,2)}, {v(vQa)} offset0:11 offset1:12")
    a(f"ds_read_b32 {v(QX0)}, {v(vQx)} offset:32")
    a(f"ds_read_b32 {v(QX1+1)}, {v(vQx)} offset:32")
    lds_add(F_QD, 8)
    stamp(4)
    lds_wait(F_RDY, 1, 8, T0, 0)
    stamp(6)
    a("s_setprio 0")

    def m2b(D, t):
        q = QX0 if ((t >> 1) & 1) == 0 else QX1
        return f"v_mfma_f32_32x32x4_2b_bf16 {v(D,32)}, {v(KXF+2*(t>>2),2)}, {v(q,2)}, 0 cbsz:1 abid:{t&1}"

    def mS(D, t, Q):
        return f"v_mfma_f32_32x32x16_bf16 {v(D,16)}, {v(KF+4*(t&1),4)}, {v(Q,4)}, {v(D,16)}"

    def smf(O, VF, t, P):
        return f"v_smfmac_f32_32x32x32_bf16 {v(O,16)}, {v(VF+4*(t&1),4)}, {v(P,8)}, {v(IDX)}"

    a(f"ds_read_b128 {v(KXF,4)}, {v(vK)} offset:17920")
    a(f"ds_read_b128 {v(KF,4)}, {v(vK)}")
    a(f"ds_read_b128 {v(KF+4,4)}, {v(vK)} offset:2240")
    a(f"ds_read_b128 {v(V0F,4)}, {v(vV)}")
    a(f"ds_read_b128 {v(V1F,4)}, {v(vV)} offset:608")
    a(f"ds_read_b32 v8, {v(vFB)} offset:{F_LOC-FL}")
    a("s_waitcnt lgkmcnt(5)")
    a(m2b(SX, 0))
    a("s_waitcnt lgkmcnt(0)")
    a(f"v_readfirstlane_b32 {s(sLOC)}, v8")
    a(mS(SX, 0, QA))
    a(mS(SX + 16, 0, QB))
    a("s_nop 10")
    a(".p2align 3")
    a("L_att:")
    if opts.get("cst"):
        stamp(40, sI)
    for t in range(8):
        cur, nxt = (SX, SY) if t % 2 == 0 else (SY, SX)
        ex = [f"v_exp_f32 {v(cur+i)}, {v(cur+i)}" for i in range(32)]
        tn = (t + 1) & 7
        q = []
        q += ex[0:2]
        q.append(smf(OB, V1F, t - 1, nxt + 24))
        q.append("s_waitcnt lgkmcnt(0)")
        if t == 5:
            q.append(f"v_readfirstlane_b32 {s(T0)}, {v(vFl)}")
        q += ex[2:5]
        q.append(m2b(nxt, tn))
        if t == 5:
            q.append(f"s_cmp_eq_u32 {s(T0)}, 0")
            q.append("s_cbranch_scc1 L_rw")
            q.append("L_rwd:")
        q += ex[5:13]
        q.append(smf(OA, V0F, t, cur))
        q.append(f"ds_read_b128 {v(KF+4*(t&1),4)}, {v(vK)} offset:{2240*((t+2)&7)}")
        q += ex[13:18]
        q.append(smf(OA, V1F, t, cur + 8))
        q.append(f"ds_read_b128 {v(V0F+4*(tn&1),4)}, {v(vV)} offset:{2240*tn}")
        q += ex[18:22]
        q.append(mS(nxt, tn, QA))
        q.append(f"ds_read_b128 {v(V1F+4*(tn&1),4)}, {v(vV)} offset:{2240*tn+608}")
        q += ex[22:26]
        q.append(smf(OB, V0F, t, cur + 16))
        if t == 3:
            q.append(f"s_and_b32 {s(sNB)}, {s(sSEQ)}, 15")
            q.append(f"s_mul_i32 {s(sNB)}, {s(sNB)}, {CH_SZ}")
        if t == 4:
            q.append(f"ds_read_b32 {v(vFl)}, {v(vFa)}")
        if t == 6:
            q.append(f"ds_read_b128 {v(KXF,4)}, {v(vK)} offset:17920")
        if t == 7:
            q.append(f"ds_write_b32 {v(vCo)}, {v(vCv)}")
        q += ex[26:29]
        q.append(mS(nxt + 16, tn, QB))
        if t == 2:
            q.append(f"s_add_u32 {s(sI)}, {s(sI)}, 1")
        if t == 3:
            q.append(f"s_add_u32 {s(sNB)}, {s(sNB)}, {SLOT0}")
        if t == 5:
            q.append(f"s_lshr_b32 {s(sSEQ)}, {s(sSEQ)}, 4")
            q.append(f"v_add_u32 {v(vK)}, {s(sNB)}, {v(vKl)}")
        if t == 6:
            q.append(f"v_add_u32 {v(vV)}, {s(sNB)}, {v(vVl)}")
            q.append(f"v_mov_b32 {v(vCv)}, {s(sI)}")
            q.append(f"v_add_u32 {v(vFa)}, 4, {v(vFa)}")
        if t == 7:
            q.append(f"s_cmp_lt_u32 {s(sI)}, 8")
        q += ex[29:32]
        for x in q:
            a(x)
    a("s_cbranch_scc1 L_att")
    a(smf(OB, V1F, 7, SY + 24))
    stamp(9)
    a(f"v_and_b32 v2, 15, {v(vL)}")
    a(f"v_bfe_u32 v3, {v(vL)}, 4, 1")
    a(f"v_lshrrev_b32 v4, 5, {v(vL)}")
    a(f"s_movk_i32 {s(T0)}, {72*256}")
    a("v_lshlrev_b32 v2, 4, v2")
    a(f"v_mad_u32_u24 v2, v3, {s(T0)}, v2")
    a(f"s_lshl_b32 {s(T0)}, {s(sQB)}, 2")
    a(f"s_and_b32 {s(T0+1)}, {s(sWV)}, 2")
    a(f"s_add_u32 {s(T0)}, {s(T0)}, {s(T0+1)}")
    a(f"s_mul_i32 {s(T0)}, {s(T0)}, 72")
    a(f"s_mul_i32 {s(T0+1)}, {s(sG)}, 9")
    a(f"s_add_u32 {s(T0)}, {s(T0)}, {s(T0+1)}")
    a(f"s_lshl_b32 {s(T0)}, {s(T0)}, 8")
    a(f"s_add_u32 {s(T0)}, {s(T0)}, {WS_O}")
    a(f"s_and_b32 {s(T0+1)}, {s(sWV)}, 1")
    a(f"s_lshl_b32 {s(T0+2)}, {s(T0+1)}, 10")
    a(f"s_add_u32 {s(T0+2)}, {s(T0+2)}, {s(T0)}")
    a(f"s_lshl_b32 {s(T0+1)}, {s(T0+1)}, 3")
    a(f"s_add_u32 {s(T0+1)}, {s(T0+1)}, {s(T0)}")
    a(f"v_add_u32 v5, {s(T0+1)}, v2")
    a("v_lshl_add_u32 v2, v4, 8, v2")
    a(f"v_add_u32 v2, {s(T0+2)}, v2")
    a(f"s_lshl_b32 {s(T0)}, {s(sQB)}, 3")
    a(f"s_add_u32 {s(T0)}, {s(T0)}, {s(sG)}")
    a(f"s_lshl_b32 {s(T0)}, {s(T0)}, 2")
    a(f"s_add_u32 {s(T0)}, {s(T0)}, {s(sWV)}")
    a(f"s_lshl_b32 {s(T0)}, {s(T0)}, 2")
    a(f"s_add_u32 {s(T0)}, {s(T0)}, {WS_FO}")
    a(f"v_mov_b32 v8, {s(T0)}")
    a(f"v_mov_b32 v9, {s(sTAG)}")
    a(f"v_mov_b32 {v(vCv)}, 9")
    for T, O in enumerate((OA, OB)):
        a(f"v_rcp_f32 v6, {v(O+10)}")
        a(f"s_nop 0")
        a("v_mov_b32 v7, v6")
        for i in range(0, 10, 2):
            a(f"v_pk_mul_f32 {v(O+i,2)}, {v(O+i,2)}, v[6:7]")
        for i in range(4):
            a(f"v_cvt_pk_bf16_f32 {v(80+4*T+i)}, {v(O+2*i)}, {v(O+2*i+1)}")
        a(f"v_cvt_pk_bf16_f32 {v(88+T)}, {v(O+8)}, {v(O+9)}")
    a(f"s_cmp_eq_u32 {s(sLOC)}, 0")
    a("s_cbranch_scc1 L_pubg")
    for fl in ("", " sc1"):
        for T in range(2):
            a(f"global_store_dwordx4 v2, {v(80+4*T,4)}, {s(pWS,2)} offset:{512*T}{fl}")
        a("s_mov_b32 exec_hi, 0")
        a(f"global_store_dwordx2 v5, v[88:89], {s(pWS,2)} offset:2048{fl}")
        a("s_mov_b64 exec, 1")
        a("s_waitcnt vmcnt(0)")
        if not fl:
            stamp(11)
        a(f"global_store_dword v8, v9, {s(pWS,2)}{fl}")
        a(f"ds_write_b32 {v(vCo)}, {v(vCv)}")
        a("s_mov_b64 exec, -1")
        a("s_branch L_fin")
        if not fl:
            a("L_pubg:")
    a("L_rw:")
    a("s_sleep 1")
    a(f"ds_read_b32 {v(vFl)}, {v(vFa)}")
    a("s_waitcnt lgkmcnt(0)")
    a(f"v_readfirstlane_b32 {s(T0)}, {v(vFl)}")
    a(f"s_cmp_eq_u32 {s(T0)}, 0")
    a("s_cbranch_scc1 L_rw")
    a("s_branch L_rwd")
    flush_stubs()

    def chunk_dma(i, pace, extra=None):
        a(f"s_add_u32 {s(T0+1)}, {s(sXCD)}, {i}")
        a(f"s_and_b32 {s(T0+1)}, {s(T0+1)}, 7")
        a(f"s_mul_i32 {s(T0+1)}, {s(T0+1)}, {CH_SZ}")
        a(f"s_add_u32 {s(T0+1)}, {s(T0+1)}, {WS_KV}")
        if extra is not None:
            a(f"s_add_u32 {s(T0+1)}, {s(T0+1)}, {s(extra)}")
        a(f"v_lshl_add_u32 v14, {v(vL)}, 4, {s(T0+1)}")
        base = SLOT0 + CH_SZ * SLOTSEQ[i]
        a(f"s_mov_b32 m0, {base}")
        lab = a.label("Lch")
        a(f"{lab}:")
        for j in range(3 if not pace else 2):
            a(f"global_load_lds_dwordx4 v14, {s(pWS,2)} offset:{1024*j} sc1")
        step = 3072 if not pace else 2048
        a(f"s_add_u32 m0, m0, {step}")
        a(f"v_add_u32 v14, {step}, v14")
        if pace:
            a(f"s_sleep {pace}")
        a(f"s_cmp_lt_u32 m0, {base + 18432}")
        a(f"s_cbranch_scc1 {lab}")
        a("s_mov_b32 exec_hi, 0")
        a(f"global_load_lds_dwordx4 v14, {s(pWS,2)} sc1")
        dflag(F_RDY + 4 * i)
        if i == 7:
            dflag(F_RDY + 32)

    a("L_loader:")
    stamp(12)
    a("s_setprio 3")
    srd(SRB, pWQ, 576 * 1152)
    a(f"v_lshrrev_b32 v2, 3, {v(vL)}")
    a(f"v_and_b32 v3, 7, {v(vL)}")
    a("v_and_b32 v4, 2, v2")
    a("v_xor_b32 v4, v3, v4")
    a("v_lshlrev_b32 v4, 4, v4")
    a(f"s_movk_i32 {s(T0)}, 1152")
    a(f"v_mad_u32_u24 v5, v2, {s(T0)}, v4")
    for k in range(4):
        a(f"s_add_u32 {s(T0+1)}, {s(sPW)}, {k+1}")
        a(f"s_and_b32 {s(T0+1)}, {s(T0+1)}, 3")
        a(f"s_mul_i32 {s(T0+2)}, {s(T0+1)}, 9216")
        a(f"s_and_b32 {s(T0+1)}, {s(T0+1)}, 1")
        a(f"s_lshl_b32 {s(T0+1)}, {s(T0+1)}, 6")
        a(f"v_xor_b32 v6, {s(T0+1)}, v5")
        a(f"v_add_u32 v{24+k}, {s(T0+2)}, v6")
    a(f"v_mul_u32_u24 v28, 1152, {v(vL)}")
    a("v_add_u32 v28, 128, v28")
    a(f"s_mov_b32 {s(T0+1)}, {s(sG144)}")
    a(f"s_mov_b32 {s(T0+3)}, {WX}")
    a(f"s_mov_b32 {s(T0+4)}, {F_WQ}")
    a(f"s_mov_b32 {s(T0+5)}, {XW+16*1024}")
    a(f"v_and_b32 v12, 31, {v(vL)}")
    a(f"s_lshl_b32 {s(T0)}, {s(sXCD)}, 7")
    a(f"s_add_u32 {s(T0)}, {s(T0)}, {WS_FL}")
    a(f"v_lshl_add_u32 v4, v12, 2, {s(T0)}")
    lds_wait(F_XP, 1, 2, T0, 1)
    gettag(2)
    mkloc()
    stamp(13)
    a("s_setprio 1")
    a("L_wqb:")
    a(f"s_cmp_lg_u32 {s(T0+4)}, {F_WQ+28}")
    a("s_cbranch_scc1 L_wqc")
    lds_wait(F_XO, 3, 2, T0, 0)
    a("L_wqc:")
    a(f"s_add_u32 {s(T0+2)}, {s(T0+1)}, {32*1152}")
    for h in range(2):
        for k in range(4):
            a(f"s_add_u32 m0, {s(T0+5)}, {18432*k + 1024*(1-h)}")
            a(f"s_nop 0")
            a(f"buffer_load_dwordx4 v{24+k}, {s(SRB,4)}, {s(T0+1+h)} offen lds")
    a(f"s_mov_b32 m0, {s(T0+3)}")
    a(f"s_sub_u32 {s(T0+5)}, {s(T0+5)}, 2048")
    a(f"buffer_load_dwordx4 v28, {s(SRB,4)}, {s(T0+1)} offen lds")
    dflag(f"s_mov_b32 m0, {s(T0+4)}")
    a(f"s_add_u32 {s(T0+1)}, {s(T0+1)}, {64*1152}")
    a(f"s_add_u32 {s(T0+3)}, {s(T0+3)}, 1024")
    a(f"s_add_u32 {s(T0+4)}, {s(T0+4)}, 4")
    a(f"s_cmp_lt_u32 {s(T0+3)}, {WX+9216}")
    a("s_cbranch_scc1 L_wqb")
    a("s_setprio 3")
    stamp(29)
    poll(4, 5, "L_pk0", tag=sTL, limit=opts.get("ltry", 24), slp=1)
    a(f"s_mov_b32 {s(T0+2)}, {KVL}")
    a("s_cbranch_vccnz L_pkg")
    dflag(F_LOC)
    a("L_pkd:")
    stamp(5)
    chunk_dma(0, 0, T0 + 2)
    a(f"v_lshrrev_b32 v16, 5, {v(vL)}")
    a(f"v_add3_u32 v16, v16, {s(sXCD)}, 1")
    for i in range(4):
        a(f"v_add_u32 v17, {2*i}, v16")
        a("v_and_b32 v17, 7, v17")
        a("v_lshl_add_u32 v17, v17, 5, v12")
        a("v_lshlrev_b32 v17, 7, v17")
        a(f"v_add_u32 v{20+i}, {WS_FKV}, v17")
    poll(20, 30, "L_pk1")
    stamp(15)
    lds_wait(F_QD, 4, 2, T0)
    stamp(16)
    PACE = opts.get("pace", 0)
    chunk_dma(1, PACE)
    chunk_dma(2, PACE)
    poll(21, 30, "L_pk2", n=3)
    chunk_dma(3, PACE)
    chunk_dma(4, PACE)
    stamp(17)
    a("s_branch L_ssm")
    flush_stubs()

    a("L_kgen:")
    stamp(12)
    a("s_setprio 1")
    sKB = T0 + 9
    a(f"s_mul_i32 {s(sKB)}, {s(T0)}, {S_SZ}")
    SEL, KA, U0 = 16, 24, 40
    Z1, Z8, Z256, TT = 46, 48, 50, 52
    HV, LO, ONE, PK, DT = 54, 110, 114, 116, 180
    a(f"v_and_b32 v2, 1, {v(vL)}")
    a("v_lshlrev_b32 v2, 4, v2")
    a("v_lshlrev_b32 v2, v2, v2")
    a.L.pop()
    a("v_mov_b32 v3, 0x3f80")
    a("v_lshlrev_b32 v2, v2, v3")
    a(f"v_bfe_u32 v3, {v(vL)}, 1, 3")
    a(f"v_lshrrev_b32 v13, 1, {v(vL)}")
    a(f"v_xor_b32 v13, v13, {v(vL)}")
    a("v_and_b32 v13, 16, v13")
    a("v_or_b32 v3, v3, v13")
    for d in range(8):
        a(f"v_cmp_eq_u32 vcc, {d}, v3")
        a(f"v_mov_b32 {v(KA+2*d)}, 0")
        a(f"v_mov_b32 {v(KA+2*d+1)}, 0")
        a(f"v_cndmask_b32 {v(SEL+d)}, 0, v2, vcc")
    a(f"v_mov_b32 {v(ONE)}, 1.0")
    a(f"v_mov_b32 {v(ONE+1)}, 0")
    a("s_waitcnt vmcnt(0)")
    stamp(1)
    a("v_lshlrev_b32 v10, 16, v10")
    a(f"v_mul_f32 v10, {f32(LOG2E)}, v10")
    a("v_exp_f32 v10, v10")
    a("v_lshlrev_b32 v11, 16, v11")
    a("v_cvt_pk_bf16_f32 v10, v10, v10")
    a("v_lshlrev_b32 v10, 16, v10")

    def cmul(r, x, y):
        a(f"v_pk_mul_f32 {v(r,2)}, {v(x,2)}, {v(y,2)} op_sel:[0,0] op_sel_hi:[0,1]")
        a(f"v_pk_fma_f32 {v(r,2)}, {v(x,2)}, {v(y,2)}, {v(r,2)} op_sel:[1,1,0] op_sel_hi:[1,0,1] neg_lo:[0,1,0]")

    vals = [(0, e) for e in range(9)] + [(1, e) for e in (0, 2, 4, 6, 8)] + [(2, e) for e in (0, 4, 8)] + \
           [(3, e) for e in (0, 4, 8)] + [(sg, e) for sg in (4, 5, 6, 7) for e in (0, 8)]
    reg = {k: HV + 2 * n for n, k in enumerate(vals)}
    rowval = [(0, 0), (0, 1), (0, 2), (0, 3), (1, 0), (1, 0), (1, 2), (1, 4),
              (2, 0), (2, 4), (2, 8), (2, 8), (3, 0), (3, 4), (3, 8), (3, 8),
              (0, 4), (0, 5), (0, 6), (0, 7), (1, 4), (1, 4), (1, 6), (1, 8),
              (4, 0), (4, 8), (6, 0), (6, 8), (5, 0), (5, 8), (7, 0), (7, 8)]
    a(f"s_mov_b32 {s(T0+4)}, 0")
    a("L_kround:")
    for i in range(6):
        a(f"v_lshlrev_b32 {v(U0+i)}, 16, v{PR+i}")
    for i in range(6):
        a(f"v_lshrrev_b32 v{PR+i}, 16, v{PR+i}")
    for i in range(4):
        a(f"v_mul_f32 {v(U0+i)}, v10, {v(U0+i)}")
    a(f"v_mul_f32 {v(U0)}, {f32(LOG2E)}, {v(U0)}")
    a(f"v_mul_f32 {v(U0+1)}, 0.15915494, {v(U0+1)}")
    for z, pw in ((Z8, 8.0), (Z1, 1.0), (Z256, 256.0)):
        a(f"v_mul_f32 {v(TT)}, {f32(pw)}, {v(U0)}")
        a(f"v_mul_f32 {v(TT+1)}, {f32(pw)}, {v(U0+1)}")
        a(f"v_exp_f32 {v(TT)}, {v(TT)}")
        a(f"v_fract_f32 {v(TT+1)}, {v(TT+1)}")
        a(f"v_cos_f32 {v(z)}, {v(TT+1)}")
        a(f"v_sin_f32 {v(z+1)}, {v(TT+1)}")
        a(f"v_mul_f32 {v(z)}, {v(TT)}, {v(z)}")
        a(f"v_mul_f32 {v(z+1)}, {v(TT)}, {v(z+1)}")

    def tmf(blk, q):
        d = DT + 16 * (blk % 4)
        a(f"v_mfma_f32_32x32x16_bf16 {v(d,16)}, {v(PK+8*blk+4*q,4)}, {v(SEL+4*q,4)}, {'0' if q == 0 else v(d,16)}")

    def tcv(blk):
        d = DT + 16 * (blk % 4)
        for i in range(8):
            a(f"v_cvt_pk_bf16_f32 {v(PK+8*blk+i)}, {v(d+2*i)}, {v(d+2*i+1)}")

    def lopack(j, ra, rb):
        a(f"v_cvt_pk_bf16_f32 {v(PK+32+j//2)}, {v(ra)}, {v(rb)}")
        a(f"v_cvt_pk_bf16_f32 {v(PK+48+j//2)}, {v(ra+1)}, {v(rb+1)}")
    hi_ops = []
    for (sg, e) in vals:
        if sg == 0:
            if e == 0:
                hi_ops.append(lambda: cmul(reg[(0, 0)], U0 + 4, U0 + 2))
            else:
                hi_ops.append(lambda e=e: cmul(reg[(0, e)], reg[(0, e - 1)], Z1))
        else:
            hi_ops.append(lambda sg=sg, e=e: cmul(reg[(sg, e)], reg[(sg - 1, e)], Z256))
    lo_ops = [lambda: lopack(0, ONE, Z8)]
    for j in range(2, 32):
        src = Z8 if j == 2 else LO + 2 * ((j - 1) & 1)
        if j & 1:
            lo_ops.append(lambda j=j, src=src: (cmul(LO + 2, src, Z8), lopack(j - 1, LO, LO + 2)))
        else:
            lo_ops.append(lambda j=j, src=src: cmul(LO, src, Z8))
    for i in range(31):
        lo_ops[i]()
        if i < len(hi_ops):
            hi_ops[i]()
        j = i + 1
        if j >= 8 and j % 8 in (0, 2):
            o = j // 8 - 1
            tmf((4 if j % 8 == 0 else 6) + o // 2, o % 2)
    hp = []
    for j in range(0, 32, 2):
        ra, rb = reg[rowval[j]], reg[rowval[j + 1]]
        hp.append(f"v_cvt_pk_bf16_f32 {v(PK+j//2)}, {v(ra)}, {v(rb)}")
        hp.append(f"v_cvt_pk_bf16_f32 {v(PK+16+j//2)}, -{v(ra+1)}, -{v(rb+1)}")
    for x in hp[0:4]:
        a(x)
    tmf(5, 1)
    for x in hp[4:10]:
        a(x)
    tmf(7, 1)
    for x in hp[10:16]:
        a(x)
    tcv(4)
    tmf(0, 0)
    tcv(6)
    tmf(2, 0)
    for x in hp[16:24]:
        a(x)
    tmf(0, 1)
    for x in hp[24:32]:
        a(x)
    tmf(2, 1)
    tcv(5)
    tmf(1, 0)
    tcv(7)
    tmf(3, 0)
    tcv(0)
    tmf(1, 1)
    tcv(2)
    tmf(3, 1)

    def gm(ah, bh, pl, fr):
        acc = KA + 8 * ah + 4 * bh
        a(f"v_mfma_f32_16x16x32_bf16 {v(acc,4)}, {v(PK+16*pl+8*ah+4*fr,4)}, {v(PK+32+16*pl+8*bh+4*fr,4)}, {v(acc,4)}")
    for pl in range(2):
        for fr in range(2):
            for bh in range(2):
                gm(0, bh, pl, fr)
    tcv(1)
    tcv(3)
    for pl in range(2):
        for fr in range(2):
            for bh in range(2):
                gm(1, bh, pl, fr)
    a(f"s_add_u32 {s(T0+4)}, {s(T0+4)}, 1")
    a(f"s_cmp_lt_u32 {s(T0+4)}, 2")
    a("s_cbranch_scc1 L_kround")
    stamp(13)
    E = 40
    a(f"v_and_b32 v2, 15, {v(vL)}")
    a(f"v_lshrrev_b32 v3, 4, {v(vL)}")
    a("v_lshlrev_b32 v2, 4, v2")
    a(f"v_add_u32 v2, {s(sKB)}, v2")
    a("v_lshl_add_u32 v6, v3, 9, v2")
    a("v_and_b32 v4, 1, v3")
    a("v_lshl_add_u32 v7, v4, 9, v2")
    a("v_lshrrev_b32 v4, 1, v3")
    a("v_lshlrev_b32 v4, 8, v4")
    a("v_sub_u32 v7, v7, v4")
    a("s_mov_b64 exec, 1")
    a(f"v_add_f32 {v(KA)}, {v(KA)}, v11")
    a("s_mov_b32 exec_lo, -1")
    for b in range(2):
        A0, A1 = KA + 4 * b, KA + 8 + 4 * b
        a(f"v_cvt_pk_bf16_f32 {v(E+4*b)}, {v(A0)}, {v(A0+1)}")
        a(f"v_cvt_pk_bf16_f32 {v(E+4*b+1)}, {v(A0+2)}, {v(A0+3)}")
        a(f"v_cvt_pk_bf16_f32 {v(E+4*b+2)}, {v(A1)}, {v(A1+1)}")
        a(f"v_cvt_pk_bf16_f32 {v(E+4*b+3)}, {v(A1+2)}, {v(A1+3)}")
    a("s_not_b64 exec, exec")
    for b in range(2):
        A0 = KA + 4 * b
        a(f"v_cvt_pk_bf16_f32 {v(E+4*b)}, {v(A0)}, {v(A0)}")
        a(f"v_cvt_pk_bf16_f32 {v(E+4*b+1)}, {v(A0)}, {v(A0+1)}")
        a(f"v_cvt_pk_bf16_f32 {v(E+4*b+2)}, {v(A0+1)}, {v(A0+1)}")
        a(f"v_cvt_pk_bf16_f32 {v(E+4*b+3)}, {v(A0+2)}, {v(A0+2)}")
    a("s_mov_b64 exec, -1")
    for r in range(4):
        a(f"v_permlane32_swap_b32 {v(KA+12+r)}, {v(KA+8+r)}")
    a("s_mov_b32 vcc_lo, 0xaaaaaaaa")
    a("s_mov_b32 vcc_hi, 0xaaaaaaaa")
    for n in range(2):
        k0, k8, b = KA + 8 + 2 * n, KA + 9 + 2 * n, E + 8 + 4 * n
        a(f"v_cndmask_b32 v4, {v(k0)}, {v(k8)}, vcc")
        a(f"v_cvt_pk_bf16_f32 {v(b)}, {v(k0)}, {v(k0)}")
        a(f"v_cvt_pk_bf16_f32 {v(b+1)}, {v(k0)}, {v(k0)}")
        a(f"v_cvt_pk_bf16_f32 {v(b+2)}, v4, {v(k8)}")
        a(f"v_cvt_pk_bf16_f32 {v(b+3)}, {v(k8)}, {v(k8)}")
    for i in range(4):
        a(f"v_mov_b32 {v(E+16+i)}, 0")
    a(f"v_lshlrev_b32 v8, 4, {v(vL)}")
    a(f"v_add_u32 v8, {s(sKB)}, v8")
    a(f"v_cmp_eq_u32 vcc, 2, {v(vL)}")
    a(f"v_add_u32 v9, {CST-32}, v8")
    a("v_cndmask_b32 v9, v8, v9, vcc")
    lds_wait(F_RDY, 1, 2, T0 + 5, 3)
    stamp(28)
    a(f"ds_write_b128 v6, {v(E,4)} offset:32")
    a(f"ds_write_b128 v6, {v(E+4,4)} offset:{32+256}")
    a(f"ds_write_b128 v7, {v(E+8,4)} offset:{32+256+2048}")
    a(f"ds_write_b128 v7, {v(E+12,4)} offset:{32+256+3072}")
    a("s_mov_b64 exec, 7")
    a(f"ds_write_b128 v9, {v(E+16,4)}")
    a("s_mov_b64 exec, -1")
    goffs = (1, 65, 129, 193, 194)
    D0 = 64
    for n, go in enumerate(goffs):
        a(f"ds_read_b128 {v(D0+6*n,4)}, v8 offset:{16*go}")
        a(f"ds_read_b32 {v(D0+6*n+4)}, v8 offset:{16*go+16}")
    for n, go in enumerate(goffs):
        d = D0 + 6 * n
        a(f"s_waitcnt lgkmcnt({2*(4-n) + n})")
        for i in range(4):
            a(f"v_alignbit_b32 {v(d+i)}, {v(d+i+1)}, {v(d+i)}, 16")
        a(f"ds_write_b128 v8, {v(d,4)} offset:{CST+16*go}")
    stamp(2)
    lds_wait(F_RDY + 4 * opts.get("urdy", 1), 1, 2, T0, 4)

    a("L_ssm:")
    stamp(7)
    UR = 160
    sS = T0 + 10
    a(f"s_sub_u32 {s(sS)}, {s(sWV)}, 4")
    a("v_subrev_u32 v2, 256, v0")
    a("v_lshrrev_b32 v2, 1, v2")
    a("v_mul_u32_u24 v3, 1152, v2")
    a(f"s_lshl_b32 {s(T0)}, {s(sCH0)}, 1")
    a(f"s_and_b32 {s(T0+1)}, {s(sCHS)}, -2")
    a(f"s_lshl_b32 {s(T0+1)}, {s(T0+1)}, 1")
    a(f"s_sub_u32 {s(T0+1)}, {s(T0+1)}, {s(T0)}")
    a(f"v_and_b32 v4, 1, {v(vL)}")
    a(f"v_mul_lo_u32 v5, v4, {s(T0+1)}")
    a(f"v_add3_u32 v3, v3, v5, {s(T0)}")
    srd(SRA, pU, 2048 * 1152)
    a(f"s_lshl_b32 {s(T0+3)}, {s(sCID)}, 1")
    for r in range(16):
        a(f"s_add_u32 {s(T0+2)}, {s(T0+3)}, {r}")
        a(f"s_and_b32 {s(T0+2)}, {s(T0+2)}, 15")
        a(f"s_mul_i32 {s(T0+2)}, {s(T0+2)}, {128*1152}")
        a(f"buffer_load_dword {v(UR+r)}, v3, {s(SRA,4)}, {s(T0+2)} offen")
    a(f"s_lshr_b32 {s(T0+5)}, s2, 3")
    a(f"s_mul_i32 {s(T0+5)}, {s(T0+5)}, 20736")
    a(f"s_mul_i32 {s(T0+4)}, {s(sS)}, 5120")
    a(f"s_add_u32 {s(T0+4)}, {s(T0+4)}, {s(T0+5)}")
    a(f"v_min_u32 v3, 41, {v(vL)}")
    a(f"v_lshl_add_u32 v3, v3, 7, {s(T0+4)}")
    a(f"global_load_dword v151, v3, {s(pWO,2)}")
    a(f"v_bfe_u32 v3, {v(vL)}, 1, 3")
    a("v_lshlrev_b32 v3, 4, v3")
    a("v_lshl_add_u32 v3, v4, 2, v3")
    a(f"s_lshl_b32 {s(T0)}, {s(sQB)}, 7")
    a(f"s_and_b32 {s(T0+1)}, {s(sS)}, 2")
    a(f"s_lshl_b32 {s(T0+1)}, {s(T0+1)}, 2")
    a(f"s_add_u32 {s(T0)}, {s(T0)}, {s(T0+1)}")
    a(f"s_add_u32 {s(T0)}, {s(T0)}, {WS_FO}")
    a(f"v_add_u32 v15, {s(T0)}, v3")
    a(f"global_load_dword v152, v15, {s(pWS,2)} sc1")
    stamp(18)
    a(f"s_movk_i32 {s(T0)}, {2*U_SZ}")
    a(f"v_mul_lo_u32 v4, v4, {s(T0)}")
    a("v_lshlrev_b32 v2, 1, v2")
    a("v_sub_u32 v2, v4, v2")
    a(f"v_add_u32 v150, {UI+4094}, v2")
    a(f"s_mul_i32 {s(T0)}, {s(sS)}, {U_SZ}")
    a(f"s_add_u32 {s(T0)}, {s(T0)}, {UI+4096}")
    a(f"v_lshl_add_u32 v3, {v(vL)}, 3, {s(T0)}")
    CA, CBf, CC, CS = 16, 48, 80, 112
    for i in range(40):
        a(f"v_mov_b32 {v(CC+i)}, 0")
    a(f"ds_write_b64 v3, {v(CC,2)}")
    a(f"v_and_b32 v6, 15, {v(vL)}")
    a(f"v_lshrrev_b32 v7, 4, {v(vL)}")
    a("v_add_u32 v8, 1, v6")
    a("v_and_b32 v9, 1, v8")
    a(f"s_movk_i32 {s(T0)}, {CST-2}")
    a("v_lshlrev_b32 v8, 1, v8")
    a(f"v_mad_u32_u24 v8, v9, {s(T0)}, v8")
    a("v_lshl_add_u32 v8, v7, 4, v8")
    a("v_lshlrev_b32 v9, 5, v6")
    a(f"v_sub_u32 v9, {UI+480}, v9")
    a("v_lshl_add_u32 v9, v7, 4, v9")
    a(f"s_lshr_b32 {s(T0)}, {s(sS)}, 1")
    a(f"s_and_b32 {s(T0+1)}, {s(sS)}, 1")
    a(f"s_lshl_b32 {s(T0+1)}, {s(T0+1)}, 8")
    a(f"s_mul_i32 {s(T0+2)}, {s(T0)}, {S_SZ}")
    a(f"s_add_u32 {s(T0+2)}, {s(T0+2)}, {s(T0+1)}")
    AO, AS = 140, 144
    a(f"v_add_u32 {v(AO)}, {s(T0+2)}, v8")
    a(f"s_mul_i32 {s(T0+2)}, {s(T0)}, {U_SZ}")
    a(f"s_add_u32 {s(T0+2)}, {s(T0+2)}, {s(T0+1)}")
    a(f"v_add_u32 v11, {s(T0+2)}, v9")
    a(f"s_lshl_b32 {s(T0+1)}, {s(sS)}, 7")
    a(f"s_add_u32 {s(T0+2)}, {s(T0+1)}, {2*S_SZ}")
    a(f"v_add_u32 {v(AS)}, {s(T0+2)}, v8")
    a(f"s_and_b32 {s(T0+2)}, {s(sCHS)}, 1")
    a(f"s_add_u32 {s(T0+2)}, {s(T0+2)}, 2")
    a(f"s_mul_i32 {s(T0+2)}, {s(T0+2)}, {U_SZ}")
    a(f"s_add_u32 {s(T0+2)}, {s(T0+2)}, {s(T0+1)}")
    a(f"v_add_u32 v13, {s(T0+2)}, v9")
    for k in range(1, 4):
        a(f"v_add_u32 {v(AO+k)}, {1024*k}, {v(AO)}")
        a(f"v_add_u32 {v(AS+k)}, {1024*k}, {v(AS)}")
    for r in range(16):
        a(f"s_add_u32 {s(T0+2)}, {s(T0+3)}, {r}")
        a(f"s_and_b32 {s(T0+2)}, {s(T0+2)}, 15")
        a(f"s_lshl_b32 {s(T0+2)}, {s(T0+2)}, 8")
        a(f"v_subrev_u32 {v(180+r)}, {s(T0+2)}, v150")
    a("s_waitcnt vmcnt(0)")
    stamp(19)
    for r in range(16):
        a(f"ds_write_b16 {v(180+r)}, {v(UR+r)}")
        a(f"ds_write_b16_d16_hi {v(180+r)}, {v(UR+r)} offset:{U_SZ}")
    lds_add(F_U, 2)
    lds_wait(F_U, 4, 2, T0)
    a(f"s_cmp_lg_u32 {s(sWV)}, 7")
    a("s_cbranch_scc1 L_s1")
    lds_wait4(F_CONS, 1, 2)
    chunk_dma(5, 0)
    a("s_setprio 1")
    a("L_s1:")
    stamp(20)
    if opts.get("noconv"):
        a("s_branch L_csd")

    def conv_block(va, vb, rho, kmax, pairs):
        LOOK = 4
        for k in range(kmax + 1 + LOOK):
            if k <= kmax:
                o = 128 * (k & 1) + 16 * rho
                a(f"ds_read_b128 {v(CBf+4*k,4)}, v{vb} offset:{64*rho+512*(7-k)}")
                a(f"ds_read2_b32 {v(CA+4*k,2)}, {v(va+k//2)} offset0:{o} offset1:{o+1}")
                a(f"ds_read2_b32 {v(CA+4*k+2,2)}, {v(va+k//2)} offset0:{o+2} offset1:{o+3}")
            kk = k - LOOK
            if kk >= 0:
                todo = [p for p in pairs if max(p[1], p[2]) == kk]
                if todo:
                    a(f"s_waitcnt lgkmcnt({3*(min(k, kmax)-kk)})")
                for acc, aa, jj_ in todo:
                    a(f"v_mfma_f32_16x16x32_bf16 {v(acc,4)}, {v(CA+4*aa,4)}, {v(CBf+4*jj_,4)}, {v(acc,4)}")
                    if opts.get("cnop"):
                        a(f"s_nop {opts['cnop']}")

    for rho in range(4):
        conv_block(AO, 11, rho, 7, [(CC + 4 * (x + y), x, y) for x in range(8) for y in range(8 - x)])
    stamp(21)
    for jj in range(4):
        if jj < 3:
            a(f"s_cmp_lg_u32 {s(sJJ)}, {jj}")
            a(f"s_cbranch_scc1 L_cs{jj+1}")
        i1, i2 = jj, 7 - jj
        pairs = [(CS + 4, x, i2 - x) for x in range(i2 + 1)] + [(CS, x, i1 - x) for x in range(i1 + 1)]
        for rho in range(2):
            conv_block(AS, 13, rho, i2, pairs)
        if jj < 3:
            a("s_branch L_csd")
            a(f"L_cs{jj+1}:")
    a("L_csd:")
    stamp(22)
    a(f"v_lshlrev_b32 v2, 4, {v(vL)}")
    a(f"s_lshl_b32 {s(T0)}, {s(sS)}, 13")
    a(f"s_add_u32 {s(T0)}, {s(T0)}, {CB}")
    a(f"v_add_u32 v3, {s(T0)}, v2")
    a(f"s_lshl_b32 {s(T0)}, {s(sS)}, 11")
    a(f"s_add_u32 {s(T0+1)}, {s(T0)}, {CB+32768}")
    a(f"v_add_u32 v4, {s(T0+1)}, v2")
    a(f"s_add_u32 {s(T0+1)}, {s(T0)}, {CB}")
    a(f"v_add_u32 v5, {s(T0+1)}, v2")
    lds_wait4(F_CONS, 2, 8)
    for i in range(8):
        a(f"ds_write_b128 v3, {v(CC+4*i,4)} offset:{1024*i}")
    for i in range(2):
        a(f"ds_write_b128 v4, {v(CS+4*i,4)} offset:{1024*i}")
    lds_add(F_C2, 14)
    sYO, sYS = T0 + 14, T0 + 15
    a(f"s_lshr_b32 {s(T0)}, {s(sS)}, 1")
    a(f"s_and_b32 {s(T0+1)}, {s(sS)}, 1")
    a(f"s_lshl_b32 {s(T0+2)}, {s(T0)}, 10")
    a(f"s_lshl_b32 {s(T0+3)}, {s(T0+1)}, 3")
    a(f"s_add_u32 {s(T0+2)}, {s(T0+2)}, {s(T0+3)}")
    a(f"s_add_u32 {s(T0+2)}, {s(T0+2)}, {CB+32768}")
    a(f"v_add_u32 v4, {s(T0+2)}, v2")
    a("v_lshlrev_b32 v8, 4, v6")
    a("v_lshl_add_u32 v8, v7, 2, v8")
    a(f"v_mul_u32_u24 v236, 2304, v8")
    a(f"s_sub_u32 {s(T0+2)}, 7, {s(sJJ)}")
    a(f"s_cmp_eq_u32 {s(T0)}, 0")
    a(f"s_cselect_b32 {s(T0+4)}, {s(sJJ)}, {s(T0+2)}")
    srd(SRA, pOUT, 2048 * 2304)
    a(f"s_mul_i32 {s(sYO)}, {s(sS)}, {512*2304}")
    a(f"s_lshl_b32 {s(T0+2)}, {s(sCH0)}, 1")
    a(f"s_add_u32 {s(sYO)}, {s(sYO)}, {s(T0+2)}")
    a(f"s_add_u32 {s(sYO)}, {s(sYO)}, 1152")
    a(f"s_mul_i32 {s(sYS)}, {s(T0+4)}, {256*2304}")
    a(f"s_mul_i32 {s(T0+2)}, {s(T0+1)}, {2*2304}")
    a(f"s_add_u32 {s(sYS)}, {s(sYS)}, {s(T0+2)}")
    a(f"s_lshl_b32 {s(T0+2)}, {s(sCHS)}, 1")
    a(f"s_add_u32 {s(sYS)}, {s(sYS)}, {s(T0+2)}")
    a(f"s_add_u32 {s(sYS)}, {s(sYS)}, 1152")
    lds_wait(F_C2, 4, 14, T0)
    Y, YS, YP = 16, 56, 245
    for tl in range(2):
        for src in range(4):
            a(f"ds_read_b128 {v(Y+16*tl+4*src,4)}, v5 offset:{8192*src+1024*tl}")
    for src in range(4):
        a(f"ds_read_b64 {v(YS+2*src,2)}, v4 offset:{2048*src}")
    lds_add(F_C1, 14)
    a("s_waitcnt lgkmcnt(0)")
    for tl in range(2):
        for ch in range(2):
            y = Y + 16 * tl + 8 * ch
            a(f"v_pk_add_f32 {v(y,2)}, {v(y,2)}, {v(y+4,2)}")
            a(f"v_pk_add_f32 {v(y+2,2)}, {v(y+2,2)}, {v(y+6,2)}")
        for r in range(4):
            y = Y + 16 * tl
            a(f"v_cvt_pk_bf16_f32 {v(YP+4*tl+r)}, {v(y+r)}, {v(y+8+r)}")
    a(f"v_pk_add_f32 {v(YS,2)}, {v(YS,2)}, {v(YS+2,2)}")
    a(f"v_pk_add_f32 {v(YS+4,2)}, {v(YS+4,2)}, {v(YS+6,2)}")
    a(f"v_pk_add_f32 {v(YS,2)}, {v(YS,2)}, {v(YS+4,2)}")
    a(f"v_cvt_pk_bf16_f32 v237, {v(YS)}, {v(YS+1)}")
    stamp(23)
    lds_wait(F_C1, 4, 2, T0)
    a(f"s_cmp_lg_u32 {s(sWV)}, 7")
    a("s_cbranch_scc1 L_s3")
    a("s_setprio 3")
    lds_wait4(F_CONS, 3, 2)
    chunk_dma(6, 0)
    a("L_s3:")
    srd(SRB, pWO, 576 * 1152)
    wo_dma(sS)
    a(f"s_lshl_b32 {s(T0)}, {s(sS)}, 2")
    dflag(f"s_add_u32 m0, {s(T0)}, {F_WO}")
    a(f"s_cmp_lg_u32 {s(sWV)}, 7")
    a("s_cbranch_scc1 L_s4")
    lds_wait4(F_CONS, 4, 2)
    chunk_dma(7, 0)
    a("s_setprio 1")
    a("L_s4:")
    lds_wait(F_RDY + 28, 1, 2, T0, 4)
    stamp(31)
    for tl in range(2):
        for r in range(4):
            a(f"s_add_u32 {s(T0+2)}, {s(sYO)}, {(256*tl+r)*2304}")
            a(f"buffer_store_dword {v(YP+4*tl+r)}, v236, {s(SRA,4)}, {s(T0+2)} offen{YF}")
    a(f"buffer_store_short v237, v236, {s(SRA,4)}, {s(sYS)} offen{YF}")
    a(f"buffer_store_short_d16_hi v237, v236, {s(SRA,4)}, {s(sYS)} offen offset:2304{YF}")
    stamp(8)

    gettag(2)
    proj_setup(ACC, WO_M, WO_X)
    a(f"v_and_b32 v2, 15, {v(vL)}")
    a(f"v_lshrrev_b32 v3, 4, {v(vL)}")
    a(f"v_mul_u32_u24 v2, 160, v2")
    a("v_lshl_add_u32 v2, v3, 3, v2")
    a(f"s_mul_i32 {s(T0)}, {s(sS)}, 2560")
    a(f"s_add_u32 {s(T0)}, {s(T0)}, {OT}")
    a(f"v_add_u32 v238, {s(T0)}, v2")
    for i in range(3):
        a(f"v_add_u32 v4, {64*i}, {v(vL)}")
        a("v_mul_u32_u24 v5, 7282, v4")
        a("v_lshrrev_b32 v5, 16, v5")
        a("v_mul_u32_u24 v6, 9, v5")
        a("v_sub_u32 v6, v4, v6")
        a("v_lshlrev_b32 v6, 4, v6")
        a(f"v_mul_u32_u24 v7, 160, v5")
        a(f"v_add3_u32 v{8+i}, v7, v6, {s(T0)}")
        a(f"v_mul_u32_u24 v7, 2304, v5")
        a(f"v_add_u32 v{11+i}, v7, v6")
    a(f"s_lshl_b32 {s(T0)}, {s(sQB)}, 2")
    a(f"s_add_u32 {s(T0)}, {s(T0)}, {s(sS)}")
    a(f"s_mul_i32 {s(T0+8)}, {s(T0)}, {16*2304}")
    a(f"s_mul_i32 {s(T0+1)}, {s(sG)}, 144")
    a(f"s_add_u32 {s(T0+8)}, {s(T0+8)}, {s(T0+1)}")
    a(f"s_mul_i32 {s(T0)}, {s(T0)}, 18432")
    a(f"s_add_u32 {s(T0)}, {s(T0)}, {WS_O}")
    a(f"v_lshlrev_b32 v14, 4, {v(vL)}")
    a(f"v_add_u32 v14, {s(T0)}, v14")
    lds_wait4(F_WO, 1, 2, 4)
    stamp(24)
    NST = 32

    def wf(st_):
        if st_ == -1:
            lds_wait4(F_CONS, 8, 2, 16)
            lds_wait4(F_CONS, 9, 2, 1)
            stamp(25)
            poll(15, 2, "L_pollo", slp=1)
            stamp(26)
            for k in range(18):
                a(f"global_load_dwordx4 {v(XF+4*k,4)}, v14, {s(pWS,2)} offset:{1024*(k%4)} sc1")
                if k % 4 == 3:
                    a("v_add_u32 v14, 4096, v14")
        else:
            a(f"s_waitcnt vmcnt({17-st_})")
    proj_run(XF, ACC, ST, NST, NST - 1, wf)
    stamp(27)
    for ct in range(5):
        b = ACC + 4 * ct
        a(f"v_cvt_pk_bf16_f32 {v(b)}, {v(b)}, {v(b+1)}")
        a(f"v_cvt_pk_bf16_f32 {v(b+1)}, {v(b+2)}, {v(b+3)}")
        a(f"ds_write_b64 v238, {v(b,2)} offset:{32*ct}")
    for i in range(3):
        a(f"ds_read_b128 {v(16+4*i,4)}, v{8+i}")
    for i in range(3):
        a(f"s_waitcnt lgkmcnt({2-i})")
        if i == 2:
            a("s_mov_b64 exec, 0xffff")
        a(f"buffer_store_dwordx4 {v(16+4*i,4)}, v{11+i}, {s(SRA,4)}, {s(T0+8)} offen{OF}")
    a("s_mov_b64 exec, -1")
    a(f"s_cmp_lg_u32 s2, 0")
    a("s_cbranch_scc1 L_fin")
    a(f"s_cmp_lg_u32 {s(sWV)}, 7")
    a("s_cbranch_scc1 L_fin")
    a("v_mov_b32 v4, 0")
    a(f"v_mov_b32 v5, {s(sTAG)}")
    a("s_mov_b64 exec, 1")
    a(f"global_store_dword v4, v5, {s(pWS,2)} sc1")
    a("s_mov_b64 exec, -1")
    a("L_fin:")
    if probe is not None:
        a("s_waitcnt vmcnt(0)")
        stamp(10)
        if opts.get("wb"):
            a("s_sleep 127")
            a("s_sleep 127")
            a("s_sleep 127")
            a("buffer_wbl2 sc1")
            a("s_waitcnt vmcnt(0)")
        a("s_sub_u32 s98, s98, s96")
        a("s_lshl_b32 s98, s98, 2")
        a("s_add_u32 s98, s98, 6000")
        a("L_probe:")
        a("s_sleep 4")
        a("s_memrealtime s[94:95]")
        a("s_waitcnt lgkmcnt(0)")
        a("s_sub_u32 s94, s94, s96")
        a("s_cmp_lt_u32 s94, s98")
        a("s_cbranch_scc1 L_probe")
    if stamps:
        a("s_waitcnt vmcnt(0)")
        stamp(10)
        if fast is not None:
            a("s_waitcnt lgkmcnt(0)")
            for k, i in enumerate(fast):
                a(f"v_writelane_b32 v255, {s(84+2*k)}, {i}")
        a(f"s_lshl_b32 {s(T0)}, s2, 11")
        a(f"s_add_u32 {s(T0)}, {s(T0)}, {WS_DBG}")
        a(f"v_lshlrev_b32 v4, 2, v0")
        a(f"v_add_u32 v4, {s(T0)}, v4")
        a(f"global_store_dword v4, v255, {s(pWS,2)}")
    a("L_exit:")
    a("s_endpgm")
    a("L_pkg:")
    a(f"s_lshl_b32 {s(T0)}, {s(sXCD)}, 12")
    a(f"s_add_u32 {s(T0)}, {s(T0)}, {WS_FKV}")
    a(f"v_lshl_add_u32 v4, v12, 7, {s(T0)}")
    poll(4, 5, "L_pk0g")
    a(f"s_mov_b32 {s(T0+2)}, 0")
    a("s_branch L_pkd")
    flush_stubs()

    lines, nins = fix_hazards(a.L, verbose=opts.get("verbose", False))
    hdr = [ln.rstrip("\n") for ln in open(REF) if ln.startswith(";") and "@launch" not in ln]
    txt = "\n".join(hdr) + f"\n; @launch grid=(256,1,1) block=(512,1,1) lds={LDS_TOTAL}\n"
    txt += '.amdgcn_target "amdgcn-amd-amdhsa--gfx950"\n.text\n'
    txt += f".globl {kname}\n.p2align 8\n.type {kname},@function\n"
    txt += "\n".join(lines) + "\n"
    txt += f""".section .rodata,"a"
.p2align 6
.amdhsa_kernel {kname}
  .amdhsa_next_free_vgpr 256
  .amdhsa_next_free_sgpr 102
  .amdhsa_accum_offset 256
  .amdhsa_group_segment_fixed_size 0
  .amdhsa_kernarg_size 136
  .amdhsa_user_sgpr_count 2
  .amdhsa_user_sgpr_kernarg_segment_ptr 1
  .amdhsa_system_sgpr_workgroup_id_x 1
.end_amdhsa_kernel
"""
    size = text_size(txt.replace("CODE_END_OFF", "0x12345"))
    txt = txt.replace("CODE_END_OFF", str((size - 256) & ~3))
    print("code bytes", size)
    return txt, nins


if __name__ == "__main__":
    out = sys.argv[1] if len(sys.argv) > 1 else f"cdna_kernels/{NAME}.s"
    opts = {}
    for x in sys.argv[2:]:
        k, _, val = x.partition("=")
        if k == "fast":
            opts[k] = [int(y) for y in val.split(",")]
            opts["stamps"] = 1
        else:
            opts[k] = int(val) if val else 1
    txt, n = gen(opts)
    open(out, "w").write(txt)
    print("wrote", out, "bytes", len(txt), "nop states inserted", n)
```

```python
import sys, os, math, struct
sys.path.insert(0, os.path.dirname(os.path.abspath(__file__)))
from asmlib import *

NAME = "concat_heads__grouped_kv_mqa__ssm_conv_s4__prompt"
REF = f"cdna_kernels/{NAME}.s.ref"


def f32(x):
    return "0x%08x" % struct.unpack("<I", struct.pack("<f", x))[0]


LOG2E = 1.4426950408889634
QSCALE = LOG2E * (18 ** -0.5)

XS = 0
XW = 52224
WX = 125952
WK = 135424
QI = 135424
QST = 144
FL = 163584
S_SZ = 8320
CST = 4160
UI = 24960
U_SZ = 4608
CB = 43392
CH_SZ = 18944
SLOT0 = 49920
SLOTSEQ = [5, 4, 0, 1, 2, 3, 5, 4]
WO_M = 0
WO_X = 73728
OT = SLOT0 + 2 * CH_SZ
LDS_TOTAL = 163840
F_XC, F_KVD, F_QD, F_U, F_C1, F_C2, F_TAG, F_LOC, F_B1, F_XO = [FL + 4 * i for i in range(10)]
F_QW = FL + 40
F_CONS = FL + 48
F_WO = FL + 80
F_RDY = FL + 96
F_WQ = FL + 144

WS_FKV = 4096
WS_KV = 0x20000
WS_O = 0x50000
WS_FO = 0x300000
WS_FL = 0x310000
KVL = 0x300000
WS_DBG = 0x400000

sWV, sQB, sG, sCID, sTAG = 3, 4, 5, 6, 7
SRA, SRB = 8, 12
pX, pWQ, pWK, pWV, pWO, pU, pARE, pAIM, pBRE, pBIM, pCRE, pCIM, pLDT, pDSK, pOUT, pDBG, pWS = range(16, 50, 2)
sCH0, sCHS, sJJ, sXCD = 50, 51, 52, 53
T0 = 54
H0 = 64
sS, sYO, sYS, sOB, sU0, sWOG, sWOL = 68, 69, 70, 71, 72, 73, 74
sI, sSEQ, sNB, sLOC = 68, 69, 70, 71
sKB, sROT = 77, 78
sTL, sPW, sG144 = 79, 80, 81
sPC = 82
vL, vZ, vFB = 1, 254, 253


def gen(opts):
    a = Asm()
    stamps = opts.get("stamps", 0)
    probe = opts.get("probe", None)
    fast = opts.get("fast", None)
    FLG = ["", " nt", " sc1", " sc0 sc1", " sc0"]
    YF, OF = FLG[opts.get("yf", 0)], FLG[opts.get("of", 0)]

    def stamp(i, dyn=None):
        if probe is not None:
            if i == 0:
                a("s_memrealtime s[96:97]")
                a("s_waitcnt lgkmcnt(0)")
                a("s_mov_b32 s98, s96")
            elif i == probe:
                a("s_memrealtime s[98:99]")
                a("s_waitcnt lgkmcnt(0)")
        if fast is not None:
            if i in fast and dyn is None:
                k = fast.index(i)
                a(f"{'s_memtime' if i >= 50 else 's_memrealtime'} {s(84+2*k,2)}")
            return
        if stamps and i < 50:
            a("s_memrealtime s[100:101]")
            if dyn is not None:
                a(f"s_add_u32 s99, {s(dyn)}, {i}")
            a("s_waitcnt lgkmcnt(0)")
            if dyn is not None:
                a("s_mov_b32 m0, s99")
                a("v_writelane_b32 v255, s100, m0")
            else:
                a(f"v_writelane_b32 v255, s100, {i}")

    stubs = []

    def flush_stubs():
        for lab, slp in stubs:
            a(f"{lab}_s:")
            a(f"s_sleep {slp}")
            a(f"s_branch {lab}")
        stubs.clear()

    def lds_wait(addr, val, vt, slp=1, base=None):
        lab = a.label("Lspin")
        a(f"{lab}:")
        a(f"ds_read_b32 {v(vt)}, {v(vFB if base is None else base)} offset:{addr-FL}")
        a("s_waitcnt lgkmcnt(0)")
        a(f"v_cmp_gt_u32 vcc, {val}, {v(vt)}")
        if slp:
            a(f"s_cbranch_vccnz {lab}_s")
            stubs.append((lab, slp))
        else:
            a(f"s_cbranch_vccnz {lab}")

    def lds_add(addr, vt, base=None):
        a(f"v_mov_b32 {v(vt)}, 1")
        a("s_mov_b64 exec, 1")
        a(f"ds_add_u32 {v(vFB if base is None else base)}, {v(vt)} offset:{addr-FL}")
        a("s_mov_b64 exec, -1")

    def srd(r, p, nbytes):
        a(f"s_mov_b32 {s(r)}, {s(p)}")
        a(f"s_and_b32 {s(r+1)}, {s(p+1)}, 0xffff")
        a(f"s_mov_b32 {s(r+2)}, {nbytes}")
        a(f"s_mov_b32 {s(r+3)}, 0x20000")

    def poll(vaddr, vt, lab, n=1, tag=sTAG, limit=0x100000, slp=2):
        a(f"s_mov_b32 {s(T0)}, 0")
        a(f"{lab}:")
        for i in range(n):
            a(f"global_load_dword {v(vt+i)}, {v(vaddr+i)}, {s(pWS,2)} sc1")
        a(f"s_add_u32 {s(T0)}, {s(T0)}, 1")
        a("s_waitcnt vmcnt(0)")
        if n == 1:
            a(f"v_cmp_ne_u32 vcc, {s(tag)}, {v(vt)}")
        else:
            for i in range(n):
                a(f"v_xor_b32 {v(vt+i)}, {s(tag)}, {v(vt+i)}")
            for i in range(1, n):
                a(f"v_or_b32 {v(vt)}, {v(vt)}, {v(vt+i)}")
            a(f"v_cmp_ne_u32 vcc, 0, {v(vt)}")
        a(f"s_cmp_gt_u32 {s(T0)}, {limit}")
        a(f"s_cbranch_scc1 {lab}_d")
        a(f"s_cbranch_vccnz {lab}_s")
        stubs.append((lab, slp))
        a(f"{lab}_d:")

    def mkloc():
        a(f"s_getreg_b32 {s(sTL)}, hwreg(HW_REG_XCC_ID, 0, 4)")
        a(f"s_add_u32 {s(sTL)}, {s(sTL)}, 1")
        a(f"s_mul_i32 {s(sTL)}, {s(sTL)}, 0x01010101")
        a(f"s_xor_b32 {s(sTL)}, {s(sTL)}, {s(sTAG)}")

    def dflag(addr):
        a(f"s_mov_b32 m0, {addr}" if isinstance(addr, int) else addr)
        a("s_mov_b64 exec, 1")
        a(f"global_load_lds_dword {v(vZ)}, {s(sPC,2)}")
        a("s_mov_b64 exec, -1")

    def gettag(vt):
        a(f"ds_read_b32 {v(vt)}, {v(vFB)} offset:{F_TAG-FL}")
        a("s_waitcnt lgkmcnt(0)")
        a(f"v_readfirstlane_b32 {s(sTAG)}, {v(vt)}")

    def channels():
        a(f"s_lshl_b32 {s(sCID)}, {s(sXCD)}, 5")
        a(f"s_lshr_b32 {s(H0)}, s2, 3")
        a(f"s_add_u32 {s(sCID)}, {s(sCID)}, {s(H0)}")
        a(f"s_lshr_b32 {s(H0)}, {s(sCID)}, 2")
        a(f"s_and_b32 {s(sJJ)}, {s(sCID)}, 3")
        a(f"s_mul_i32 {s(H0+1)}, {s(H0)}, 9")
        a(f"s_and_b32 {s(H0+2)}, {s(H0)}, 1")
        a(f"s_lshl_b32 {s(sCH0)}, {s(sJJ)}, 1")
        a(f"s_add_u32 {s(sCH0)}, {s(sCH0)}, {s(H0+1)}")
        a(f"s_add_u32 {s(sCH0)}, {s(sCH0)}, {s(H0+2)}")
        a(f"s_cmp_eq_u32 {s(H0+2)}, 0")
        a(f"s_cselect_b32 {s(sCHS)}, 8, 0")
        a(f"s_add_u32 {s(sCHS)}, {s(sCHS)}, {s(H0+1)}")
        a(f"s_sub_u32 {s(sS)}, {s(sWV)}, 4")

    def chunk_dma(i, extra=None):
        a(f"s_add_u32 {s(T0+1)}, {s(sXCD)}, {i}")
        a(f"s_and_b32 {s(T0+1)}, {s(T0+1)}, 7")
        a(f"s_mul_i32 {s(T0+1)}, {s(T0+1)}, {CH_SZ}")
        a(f"s_add_u32 {s(T0+1)}, {s(T0+1)}, {WS_KV if extra is None else s(extra)}")
        a(f"s_add_u32 {s(T0+2)}, {s(pWS)}, {s(T0+1)}")
        a(f"s_addc_u32 {s(T0+3)}, {s(pWS+1)}, 0")
        base = SLOT0 + CH_SZ * SLOTSEQ[i]
        a(f"s_mov_b32 m0, {base}")
        lab = a.label("Lch")
        a(f"{lab}:")
        for j in range(3):
            a(f"global_load_lds_dwordx4 {v(vL16)}, {s(T0+2,2)} offset:{1024*j} sc1")
        a(f"s_add_u32 {s(T0+2)}, {s(T0+2)}, 3072")
        a(f"s_addc_u32 {s(T0+3)}, {s(T0+3)}, 0")
        a(f"s_add_u32 m0, m0, 3072")
        a(f"s_cmp_lt_u32 m0, {base + 18432}")
        a(f"s_cbranch_scc1 {lab}")
        a("s_mov_b32 exec_hi, 0")
        a(f"global_load_lds_dwordx4 {v(vL16)}, {s(T0+2,2)} sc1")
        dflag(F_RDY + 4 * i)
        if i == 7:
            dflag(F_RDY + 32)

    XA, XB, ACC, ST = 16, 88, 160, 180
    vW0, vW1, vWX = 212, 214, 216
    vK, vV, vKl, vVl, vFl, vCo, vCv, vFa, vQa, vQx, vQw, vQw2, vQf = range(217, 230)
    vOm, vOx, vOf = 230, 231, 232
    vPA = 234
    ZZ = 246
    SX, SY, OA, OB = 16, 48, 80, 96
    QA, QB, QX0, QX1 = 112, 116, 120, 122
    KF, V0F, V1F, KXF = 124, 132, 140, 148
    IDX = 233
    vL16, vU, vF4, vWOp, vB0, vBS, vEW, vES, vER, vESR, vYA, vPF, vOL, vTW = 252, 251, 250, 244, 243, 242, 241, 240, 239, 238, 237, 236, 235, 234
    AO, AS, US = 226, 230, 210
    vPR = 2
    YP = 196

    def h_setup():
        blocks = []
        save = a.L
        a.L = []

        def cut():
            blocks.append(a.L)
            a.L = []
        t = 200
        a(f"v_lshlrev_b32 {v(vL16)}, 4, {v(vL)}")
        a(f"v_and_b32 {v(t)}, 3, {v(vL)}")
        a(f"v_lshl_add_u32 {v(vF4)}, {v(t)}, 2, {v(vFB)}")
        a(f"v_subrev_u32 {v(t)}, 256, v0")
        a(f"v_lshrrev_b32 {v(t)}, 1, {v(t)}")
        a(f"v_mul_u32_u24 {v(t+1)}, 1152, {v(t)}")
        a(f"s_lshl_b32 {s(H0)}, {s(sCH0)}, 1")
        a(f"s_and_b32 {s(H0+1)}, {s(sCHS)}, -2")
        a(f"s_lshl_b32 {s(H0+1)}, {s(H0+1)}, 1")
        a(f"s_sub_u32 {s(H0+1)}, {s(H0+1)}, {s(H0)}")
        a(f"v_and_b32 {v(t+2)}, 1, {v(vL)}")
        a(f"v_mul_lo_u32 {v(t+3)}, {v(t+2)}, {s(H0+1)}")
        a(f"v_add3_u32 {v(vU)}, {v(t+1)}, {v(t+3)}, {s(H0)}")
        a(f"v_mul_u32_u24 {v(t+3)}, {2*U_SZ}, {v(t+2)}")
        a(f"v_lshlrev_b32 {v(t)}, 1, {v(t)}")
        a(f"v_sub_u32 {v(t)}, {v(t+3)}, {v(t)}")
        a(f"v_add_u32 {v(t)}, {UI+4094}, {v(t)}")
        a(f"s_lshl_b32 {s(sU0)}, {s(sCID)}, 1")
        cut()
        for r in range(16):
            a(f"s_add_u32 {s(H0)}, {s(sU0)}, {r}")
            a(f"s_and_b32 {s(H0)}, {s(H0)}, 15")
            a(f"s_lshl_b32 {s(H0)}, {s(H0)}, 8")
            a(f"v_subrev_u32 {v(US+r)}, {s(H0)}, {v(t)}")
            if r % 8 == 7:
                cut()
        a(f"v_bfe_u32 {v(t+3)}, {v(vL)}, 1, 3")
        a(f"v_lshlrev_b32 {v(t+3)}, 4, {v(t+3)}")
        a(f"v_lshl_add_u32 {v(t+3)}, {v(t+2)}, 2, {v(t+3)}")
        a(f"s_lshl_b32 {s(H0)}, {s(sQB)}, 7")
        a(f"s_and_b32 {s(H0+1)}, {s(sS)}, 2")
        a(f"s_lshl_b32 {s(H0+1)}, {s(H0+1)}, 2")
        a(f"s_add_u32 {s(H0)}, {s(H0)}, {s(H0+1)}")
        a(f"s_add_u32 {s(H0)}, {s(H0)}, {WS_FO}")
        a(f"v_add_u32 {v(vPF)}, {s(H0)}, {v(t+3)}")
        a(f"v_and_b32 {v(t+4)}, 15, {v(vL)}")
        a(f"v_lshrrev_b32 {v(t+5)}, 4, {v(vL)}")
        a(f"v_add_u32 {v(t+6)}, 1, {v(t+4)}")
        a(f"v_and_b32 {v(t+7)}, 1, {v(t+6)}")
        a(f"v_mul_u32_u24 {v(t+7)}, {CST-2}, {v(t+7)}")
        a(f"v_lshl_add_u32 {v(t+6)}, {v(t+6)}, 1, {v(t+7)}")
        a(f"v_lshl_add_u32 {v(t+6)}, {v(t+5)}, 4, {v(t+6)}")
        a(f"v_lshlrev_b32 {v(t+7)}, 5, {v(t+4)}")
        a(f"v_sub_u32 {v(t+7)}, {UI+480}, {v(t+7)}")
        a(f"v_lshl_add_u32 {v(t+7)}, {v(t+5)}, 4, {v(t+7)}")
        cut()
        a(f"s_lshr_b32 {s(H0)}, {s(sS)}, 1")
        a(f"s_and_b32 {s(H0+1)}, {s(sS)}, 1")
        a(f"s_lshl_b32 {s(H0+1)}, {s(H0+1)}, 8")
        a(f"s_mul_i32 {s(H0+2)}, {s(H0)}, {S_SZ}")
        a(f"s_add_u32 {s(H0+2)}, {s(H0+2)}, {s(H0+1)}")
        a(f"v_add_u32 {v(AO)}, {s(H0+2)}, {v(t+6)}")
        a(f"s_mul_i32 {s(H0+2)}, {s(H0)}, {U_SZ}")
        a(f"s_add_u32 {s(H0+2)}, {s(H0+2)}, {s(H0+1)}")
        a(f"v_add_u32 {v(vB0)}, {s(H0+2)}, {v(t+7)}")
        a(f"s_lshl_b32 {s(H0+1)}, {s(sS)}, 7")
        a(f"s_add_u32 {s(H0+2)}, {s(H0+1)}, {2*S_SZ}")
        a(f"v_add_u32 {v(AS)}, {s(H0+2)}, {v(t+6)}")
        a(f"s_and_b32 {s(H0+2)}, {s(sCHS)}, 1")
        a(f"s_add_u32 {s(H0+2)}, {s(H0+2)}, 2")
        a(f"s_mul_i32 {s(H0+2)}, {s(H0+2)}, {U_SZ}")
        a(f"s_add_u32 {s(H0+2)}, {s(H0+2)}, {s(H0+1)}")
        a(f"v_add_u32 {v(vBS)}, {s(H0+2)}, {v(t+7)}")
        for k in range(1, 4):
            a(f"v_add_u32 {v(AO+k)}, {1024*k}, {v(AO)}")
            a(f"v_add_u32 {v(AS+k)}, {1024*k}, {v(AS)}")
        cut()
        a(f"s_lshl_b32 {s(H0)}, {s(sS)}, 13")
        a(f"s_add_u32 {s(H0)}, {s(H0)}, {CB}")
        a(f"v_add_u32 {v(vEW)}, {s(H0)}, {v(vL16)}")
        a(f"s_lshl_b32 {s(H0)}, {s(sS)}, 11")
        a(f"s_add_u32 {s(H0)}, {s(H0)}, {CB}")
        a(f"v_add_u32 {v(vER)}, {s(H0)}, {v(vL16)}")
        a(f"v_add_u32 {v(vES)}, 32768, {v(vER)}")
        a(f"s_lshr_b32 {s(H0)}, {s(sS)}, 1")
        a(f"s_and_b32 {s(H0+1)}, {s(sS)}, 1")
        a(f"s_lshl_b32 {s(H0+2)}, {s(H0)}, 10")
        a(f"s_lshl_b32 {s(H0+3)}, {s(H0+1)}, 3")
        a(f"s_add_u32 {s(H0+2)}, {s(H0+2)}, {s(H0+3)}")
        a(f"s_add_u32 {s(H0+2)}, {s(H0+2)}, {CB+32768}")
        a(f"v_add_u32 {v(vESR)}, {s(H0+2)}, {v(vL16)}")
        a(f"v_lshlrev_b32 {v(t+6)}, 4, {v(t+4)}")
        a(f"v_lshl_add_u32 {v(t+6)}, {v(t+5)}, 2, {v(t+6)}")
        a(f"v_mul_u32_u24 {v(vYA)}, 2304, {v(t+6)}")
        a(f"s_sub_u32 {s(H0+2)}, 7, {s(sJJ)}")
        a(f"s_cmp_eq_u32 {s(H0)}, 0")
        a(f"s_cselect_b32 {s(H0+2)}, {s(sJJ)}, {s(H0+2)}")
        a(f"s_mul_i32 {s(sYS)}, {s(H0+2)}, {256*2304}")
        a(f"s_mul_i32 {s(H0+2)}, {s(H0+1)}, {2*2304}")
        a(f"s_add_u32 {s(sYS)}, {s(sYS)}, {s(H0+2)}")
        a(f"s_lshl_b32 {s(H0+2)}, {s(sCHS)}, 1")
        a(f"s_add_u32 {s(sYS)}, {s(sYS)}, {s(H0+2)}")
        a(f"s_add_u32 {s(sYS)}, {s(sYS)}, 1152")
        a(f"s_mul_i32 {s(sYO)}, {s(sS)}, {512*2304}")
        a(f"s_lshl_b32 {s(H0+2)}, {s(sCH0)}, 1")
        a(f"s_add_u32 {s(sYO)}, {s(sYO)}, {s(H0+2)}")
        a(f"s_add_u32 {s(sYO)}, {s(sYO)}, 1152")
        cut()
        a(f"v_lshrrev_b32 {v(t)}, 3, {v(vL)}")
        a(f"v_and_b32 {v(t+1)}, 7, {v(vL)}")
        a(f"v_and_b32 {v(t+2)}, 2, {v(t)}")
        a(f"v_xor_b32 {v(t+2)}, {v(t+1)}, {v(t+2)}")
        a(f"v_lshlrev_b32 {v(t+2)}, 4, {v(t+2)}")
        a(f"s_movk_i32 {s(H0)}, 1152")
        a(f"v_mad_u32_u24 {v(vWOp)}, {v(t)}, {s(H0)}, {v(t+2)}")
        a(f"v_xor_b32 {v(vWOp+1)}, 64, {v(vWOp)}")
        a(f"v_mul_u32_u24 {v(t+3)}, 9, {v(t)}")
        a(f"v_and_b32 {v(t+6)}, 1, {v(t)}")
        a(f"v_lshlrev_b32 {v(t+6)}, 3, {v(t+6)}")
        a(f"v_sub_u32 {v(t+3)}, {v(t+3)}, {v(t+6)}")
        a(f"v_mad_u32_u24 {v(vWOp+2)}, {v(t+3)}, {s(H0)}, {v(t+2)}")
        a(f"v_xor_b32 {v(vWOp+3)}, 64, {v(vWOp+2)}")
        a(f"v_mad_u32_u24 {v(t+3)}, {v(t+5)}, 18, {v(t+4)}")
        a(f"v_mul_u32_u24 {v(vWOp+4)}, 1152, {v(t+3)}")
        a(f"v_mul_u32_u24 {v(t+3)}, 9, {v(t+1)}")
        a(f"v_and_b32 {v(t+6)}, 1, {v(t+1)}")
        a(f"v_lshlrev_b32 {v(t+6)}, 3, {v(t+6)}")
        a(f"v_sub_u32 {v(t+3)}, {v(t+3)}, {v(t+6)}")
        a(f"v_mul_u32_u24 {v(vWOp+5)}, 1152, {v(t+3)}")
        a(f"s_mul_i32 {s(sWOG)}, {s(sS)}, {144*1152}")
        a(f"s_add_u32 {s(sWOG)}, {s(sWOG)}, {s(sG144)}")
        a(f"s_mul_i32 {s(sWOL)}, {s(sS)}, 2304")
        cut()
        a(f"s_lshl_b32 {s(H0)}, {s(sQB)}, 2")
        a(f"s_add_u32 {s(H0)}, {s(H0)}, {s(sS)}")
        a(f"s_mul_i32 {s(sOB)}, {s(H0)}, {16*2304}")
        a(f"s_add_u32 {s(sOB)}, {s(sOB)}, {s(sG144)}")
        a(f"s_mul_i32 {s(H0)}, {s(H0)}, 18432")
        a(f"s_add_u32 {s(H0)}, {s(H0)}, {WS_O+4096}")
        a(f"v_add_u32 {v(vOL)}, {s(H0)}, {v(vL16)}")
        a(f"v_mul_u32_u24 {v(t)}, 160, {v(t+4)}")
        a(f"v_lshl_add_u32 {v(t)}, {v(t+5)}, 3, {v(t)}")
        a(f"s_mul_i32 {s(H0)}, {s(sS)}, 2560")
        a(f"s_add_u32 {s(H0)}, {s(H0)}, {OT}")
        a(f"v_add_u32 {v(vTW)}, {s(H0)}, {v(t)}")
        for i in range(3):
            a(f"v_add_u32 {v(t)}, {64*i}, {v(vL)}")
            a(f"v_mul_u32_u24 {v(t+1)}, 7282, {v(t)}")
            a(f"v_lshrrev_b32 {v(t+1)}, 16, {v(t+1)}")
            a(f"v_add_u32 {v(t+2)}, {v(t)}, {v(t+1)}")
            a(f"v_lshl_add_u32 {v(190+i)}, {v(t+2)}, 4, {s(H0)}")
            a(f"v_mul_u32_u24 {v(t+1)}, 135, {v(t+1)}")
            a(f"v_add_lshl_u32 {v(193+i)}, {v(t)}, {v(t+1)}, 4")
        cut()
        a(f"v_bfe_u32 {v(t)}, {v(vL)}, 2, 2")
        a(f"v_and_b32 {v(t+1)}, 3, {v(vL)}")
        a(f"v_lshrrev_b32 {v(t+2)}, 1, {v(t)}")
        a(f"v_and_b32 {v(t+3)}, 1, {v(t+5)}")
        a(f"v_lshl_or_b32 {v(t+2)}, {v(t+3)}, 1, {v(t+2)}")
        a(f"v_lshl_add_u32 {v(t)}, {v(t+5)}, 3, {v(t)}")
        a(f"v_lshlrev_b32 {v(t+3)}, 7, {v(t)}")
        a(f"v_lshl_add_u32 {v(t+3)}, {v(t+1)}, 3, {v(t+3)}")
        a(f"v_and_b32 {v(t+1)}, 1, {v(t+1)}")
        a(f"v_lshlrev_b32 {v(t+1)}, 3, {v(t+1)}")
        a(f"v_lshl_add_u32 {v(t)}, {v(t)}, 4, {v(t+1)}")
        a(f"v_add_u32 v189, {WO_X}, {v(t)}")
        for ct in range(4):
            a(f"v_xor_b32 {v(t)}, {ct}, {v(t+2)}")
            a(f"v_lshl_add_u32 {v(181+ct)}, {v(t)}, 5, {v(t+3)}")
            a(f"v_add_u32 {v(185+ct)}, {9*4096}, {v(181+ct)}")
        cut()
        a.L = save
        return blocks

    kname = NAME + "_kernel"
    a(f"{kname}:")
    if stamps:
        a("v_mov_b32 v255, 0")
    if fast is not None:
        for k in range(1, len(fast)):
            a(f"s_mov_b32 {s(84+2*k)}, 0")
    stamp(0)
    a("s_cmp_ge_u32 s2, 256")
    a("s_cbranch_scc1 L_exit")
    a("s_load_dwordx16 s[16:31], s[0:1], 0")
    a("s_load_dwordx16 s[32:47], s[0:1], 64")
    a("s_load_dwordx2 s[48:49], s[0:1], 128")
    a(f"s_getpc_b64 {s(sPC,2)}")
    a(f"v_lshrrev_b32 v2, 6, v0")
    a(f"v_and_b32 {v(vL)}, 63, v0")
    a(f"v_readfirstlane_b32 {s(sWV)}, v2")
    a(f"v_mov_b32 {v(vZ)}, 0")
    a(f"v_mov_b32 {v(vFB)}, {FL}")
    a(f"s_and_b32 {s(sXCD)}, s2, 7")
    a(f"s_bfe_u32 {s(T0+2)}, s2, 0x20003")
    a(f"s_lshl_b32 {s(sQB)}, {s(sXCD)}, 2")
    a(f"s_add_u32 {s(sQB)}, {s(sQB)}, {s(T0+2)}")
    a(f"s_lshr_b32 {s(sG)}, s2, 5")
    a(f"s_lshr_b32 {s(sPW)}, s2, 6")
    a(f"s_mul_i32 {s(sG144)}, {s(sG)}, 144")
    a(f"s_and_b32 {s(T0+3)}, {s(sG)}, 1")
    a(f"s_lshl_b32 {s(sROT)}, {s(T0+2)}, 1")
    a(f"s_add_u32 {s(sROT)}, {s(sROT)}, {s(T0+3)}")
    a(f"s_sub_u32 {s(T0)}, {s(sWV)}, 4")
    a(f"s_cmp_lt_u32 {s(T0)}, 3")
    a("s_cbranch_scc1 L_h0")
    a(f"v_lshrrev_b32 v2, 3, {v(vL)}")
    a(f"v_xor_b32 v2, v2, {v(vL)}")
    a(f"s_mul_i32 {s(T0)}, {s(sQB)}, 73728")
    a(f"v_lshl_add_u32 v15, v2, 4, {s(T0)}")
    a(f"s_mul_i32 {s(T0+1)}, {s(sPW)}, 18432")
    a(f"s_cmp_eq_u32 {s(sWV)}, 7")
    a("s_cbranch_scc1 L_loader")
    a(f"s_cmp_lg_u32 {s(sWV)}, {s(sPW)}")
    a("s_cbranch_scc1 L_np0")
    a(f"s_mul_i32 {s(T0+3)}, {s(T0+3)}, 9216")
    a(f"s_add_u32 m0, {s(T0+1)}, {s(T0+3)}")
    a("v_add_u32 v15, m0, v15")
    a("s_waitcnt lgkmcnt(0)")
    for j in range(9):
        a(f"global_load_lds_dwordx4 v15, {s(pX,2)} offset:{1024*(j%3)}")
        if j in (2, 5):
            a("s_add_u32 m0, m0, 3072")
            a("v_add_u32 v15, 3072, v15")
    a("s_branch L_a1")
    a("L_np0:")
    a(f"s_xor_b32 {s(T0)}, {s(sWV)}, {s(sPW)}")
    a(f"s_cmp_lg_u32 {s(T0)}, 1")
    a("s_cbranch_scc1 L_a1")
    a(f"s_bfe_u32 {s(T0+3)}, s2, 0x40003")
    a(f"s_lshl_b32 {s(T0+3)}, {s(T0+3)}, 11")
    a(f"v_and_b32 v2, 15, {v(vL)}")
    a(f"v_lshl_add_u32 v2, v2, 7, {s(T0+3)}")
    a(f"v_min_u32 v2, CODE_END_OFF, v2")
    a(f"global_load_dword v252, v2, {s(sPC,2)}")
    a(f"v_lshl_add_u32 v2, {v(vL)}, 2, {v(vFB)}")
    a(f"ds_write_b32 v2, {v(vZ)}")
    a(f"s_lshr_b32 {s(T0+3)}, s2, 3")
    a(f"s_mul_i32 {s(T0+3)}, {s(T0+3)}, 640")
    a(f"v_min_u32 v2, 4, {v(vL)}")
    a(f"v_lshl_add_u32 v2, v2, 7, {s(T0+3)}")
    a(f"v_min_u32 v2, {CH_SZ-128}, v2")
    a(f"s_mul_i32 {s(T0+3)}, {s(sXCD)}, {CH_SZ}")
    a(f"s_add_u32 {s(T0+3)}, {s(T0+3)}, {WS_KV+KVL}")
    a(f"v_add_u32 v2, {s(T0+3)}, v2")
    a("s_waitcnt lgkmcnt(0)")
    a(f"global_load_dword v251, v2, {s(pWS,2)} sc1")
    a("s_branch L_a1")
    a("L_h0:")
    channels()
    a(f"s_add_u32 {s(T0+1)}, {s(sCH0)}, {s(T0)}")
    a(f"s_cmp_eq_u32 {s(T0)}, 2")
    a(f"s_cselect_b32 {s(T0+1)}, {s(sCHS)}, {s(T0+1)}")
    a(f"s_lshl_b32 {s(T0+2)}, {s(T0+1)}, 8")
    a(f"v_lshl_add_u32 v3, {v(vL)}, 2, {s(T0+2)}")
    a(f"s_lshl_b32 {s(T0+2)}, {s(T0+1)}, 1")
    a(f"v_mov_b32 v11, {s(T0+2)}")
    a("s_waitcnt lgkmcnt(0)")
    PR = 4
    a(f"global_load_ushort v10, v11, {s(pLDT,2)}")
    a(f"global_load_ushort v11, v11, {s(pDSK,2)}")
    for i, p in enumerate((pARE, pAIM, pBRE, pBIM, pCRE, pCIM)):
        a(f"global_load_dword v{PR+i}, v3, {s(p,2)}")
    a("s_barrier")
    a("s_branch L_kgen")

    a("L_loader:")
    a("s_setprio 3")
    for i in range(3):
        a(f"v_add_u32 v2, {64*i}, {v(vL)}")
        a("v_mul_u32_u24 v4, 21846, v2")
        a("v_lshrrev_b32 v4, 16, v4")
        a("v_mul_u32_u24 v5, 3, v4")
        a("v_sub_u32 v5, v2, v5")
        a("v_lshlrev_b32 v5, 4, v5")
        a("v_min_u32 v5, 20, v5")
        a(f"v_mad_u32_u24 v{6+i}, v4, 36, v5")
    a(f"s_lshl_b32 {s(T0+2)}, {s(sXCD)}, 7")
    a(f"s_add_u32 {s(T0+2)}, {s(T0+2)}, {WS_FL}")
    a(f"v_and_b32 v12, 31, {v(vL)}")
    a(f"v_lshl_add_u32 v13, v12, 2, {s(T0+2)}")
    a(f"s_mul_i32 {s(T0+5)}, {s(sROT)}, 2304")
    a(f"s_cmp_eq_u32 {s(T0+3)}, 1")
    a("s_waitcnt lgkmcnt(0)")
    a(f"s_cselect_b32 {s(SRA)}, {s(pWV)}, {s(pWK)}")
    a(f"s_cselect_b32 {s(SRA+1)}, {s(pWV+1)}, {s(pWK+1)}")
    a(f"s_and_b32 {s(SRA+1)}, {s(SRA+1)}, 0xffff")
    a(f"s_mov_b32 {s(SRA+2)}, {576*36}")
    a(f"s_mov_b32 {s(SRA+3)}, 0x20000")
    a(f"s_mov_b32 m0, {WK}")
    a(f"global_load_dword v16, v13, {s(pWS,2)} sc1")
    a("s_barrier")
    a("L_wkl:")
    for j in range(3):
        a(f"buffer_load_dwordx4 v{6+j}, {s(SRA,4)}, {s(T0+5)} offen lds")
        a("s_add_u32 m0, m0, 1024")
        if j < 2:
            a("s_nop 0")
    a(f"s_add_u32 {s(T0+5)}, {s(T0+5)}, 2304")
    a(f"s_cmp_eq_u32 {s(T0+5)}, {9*2304}")
    a(f"s_cselect_b32 {s(T0+5)}, 0, {s(T0+5)}")
    a(f"s_cmp_lt_u32 m0, {WK+27648}")
    a("s_cbranch_scc1 L_wkl")
    a(f"s_xor_b32 {s(T0+3)}, {s(T0+3)}, 1")
    a(f"s_mul_i32 {s(T0+3)}, {s(T0+3)}, 9216")
    a(f"s_add_u32 m0, {s(T0+1)}, {s(T0+3)}")
    a("v_add_u32 v14, m0, v15")
    for j in range(9):
        a(f"global_load_lds_dwordx4 v14, {s(pX,2)} offset:{1024*(j%3)}")
        if j in (2, 5):
            a("s_add_u32 m0, m0, 3072")
            a("v_add_u32 v14, 3072, v14")
    dflag(F_B1)
    stamp(12)
    srd(SRB, pWQ, 576 * 1152)
    a(f"v_lshrrev_b32 v2, 3, {v(vL)}")
    a(f"v_and_b32 v3, 7, {v(vL)}")
    a("v_and_b32 v4, 2, v2")
    a("v_xor_b32 v4, v3, v4")
    a("v_lshlrev_b32 v4, 4, v4")
    a(f"s_movk_i32 {s(T0)}, 1152")
    a(f"v_mad_u32_u24 v24, v2, {s(T0)}, v4")
    a("v_xor_b32 v25, 64, v24")
    a("v_add_u32 v25, 9216, v25")
    a("v_add_u32 v26, 18432, v24")
    a("v_add_u32 v27, 18432, v25")
    a(f"v_mul_u32_u24 v28, 1152, {v(vL)}")
    a("v_add_u32 v28, 128, v28")
    a(f"s_mul_i32 {s(T0+4)}, {s(sROT)}, 73728")
    a(f"s_add_u32 {s(T0+4)}, {s(T0+4)}, {s(sG144)}")
    a(f"s_add_u32 {s(T0+6)}, {s(sG144)}, {9*73728}")
    hb = h_setup()

    def wq_group(i):
        a(f"s_add_u32 {s(T0+5)}, {s(T0+4)}, {32*1152}")
        for h in range(2):
            for k in range(4):
                a(f"s_mov_b32 m0, {XW + 4096*(17-2*i-h) + 1024*k}")
                a("s_nop 0")
                a(f"buffer_load_dwordx4 v{24+k}, {s(SRB,4)}, {s(T0+4+h)} offen lds")
        a(f"s_mov_b32 m0, {WX + 1024*i}")
        a("s_nop 0")
        a(f"buffer_load_dwordx4 v28, {s(SRB,4)}, {s(T0+4)} offen lds")
        dflag(F_WQ + 4 * i)
        a(f"s_add_u32 {s(T0+4)}, {s(T0+4)}, 73728")
        a(f"s_cmp_eq_u32 {s(T0+4)}, {s(T0+6)}")
        a(f"s_cselect_b32 {s(T0+4)}, {s(sG144)}, {s(T0+4)}")

    NPRE = opts.get("npre", 0)
    for i in range(NPRE):
        wq_group(i)
    a(f"s_mov_b32 {s(T0+7)}, 3")
    a("L_xo:")
    a(f"s_add_u32 {s(T0+1)}, {s(T0+1)}, 18432")
    a(f"s_cmp_eq_u32 {s(T0+1)}, 73728")
    a(f"s_cselect_b32 {s(T0+1)}, 0, {s(T0+1)}")
    a(f"s_mov_b32 m0, {s(T0+1)}")
    a(f"v_add_u32 v14, {s(T0+1)}, v15")
    for j in range(18):
        a(f"global_load_lds_dwordx4 v14, {s(pX,2)} offset:{1024*(j%4)}")
        if j % 4 == 3:
            a("s_add_u32 m0, m0, 4096")
            a("v_add_u32 v14, 4096, v14")
    a(f"s_sub_u32 {s(T0+7)}, {s(T0+7)}, 1")
    a(f"s_cmp_lg_u32 {s(T0+7)}, 0")
    a("s_cbranch_scc1 L_xo")
    dflag(F_XO)
    stamp(13)
    for i in range(NPRE, 2):
        wq_group(i)
    channels()
    for i in range(2, 9):
        if i == 6:
            lds_wait(F_XC, 4, 2, 0)
            gettag(2)
            mkloc()
        wq_group(i)
        for blk in ([hb[0], hb[1]], [hb[2], hb[3]], [hb[4]], [hb[5]], [hb[6]], [hb[7]], [])[i - 2]:
            a.L += blk
    stamp(29)
    poll(13, 16, "L_pk0", tag=sTL, limit=opts.get("ltry", 24), slp=1)
    a(f"s_mov_b32 {s(T0+4)}, {WS_KV+KVL}")
    a("s_cbranch_vccnz L_pkg")
    dflag(F_LOC)
    a("L_pkd:")
    stamp(5)
    chunk_dma(0, T0 + 4)
    a(f"v_lshrrev_b32 v16, 5, {v(vL)}")
    a(f"v_add3_u32 v16, v16, {s(sXCD)}, 1")
    for i in range(4):
        a(f"v_add_u32 v17, {2*i}, v16")
        a("v_and_b32 v17, 7, v17")
        a("v_lshl_add_u32 v17, v17, 5, v12")
        a("v_lshlrev_b32 v17, 7, v17")
        a(f"v_add_u32 v{20+i}, {WS_FKV}, v17")
    a.L += hb[8]
    poll(20, 30, "L_pk1")
    stamp(15)
    lds_wait(F_QD, 4, 2)
    stamp(16)
    chunk_dma(1)
    chunk_dma(2)
    poll(21, 30, "L_pk2", n=3)
    for i in range(3, 6):
        chunk_dma(i)
    stamp(17)
    a("s_branch L_ssm")
    a("L_pkg:")
    a(f"s_lshl_b32 {s(T0)}, {s(sXCD)}, 12")
    a(f"s_add_u32 {s(T0)}, {s(T0)}, {WS_FKV}")
    a(f"v_lshl_add_u32 v13, v12, 7, {s(T0)}")
    poll(13, 16, "L_pk0g")
    a(f"s_mov_b32 {s(T0+4)}, {WS_KV}")
    a("s_branch L_pkd")
    flush_stubs()

    a("L_a1:")
    a("s_waitcnt lgkmcnt(0)")
    a("s_barrier")
    stamp(12)
    a("s_setprio 2")
    a(f"s_cmp_lg_u32 {s(sPW)}, {s(sWV)}")
    a("s_cbranch_scc1 L_a2")
    a(f"s_load_dword {s(sTAG)}, {s(pWS,2)}, 0")
    a("L_a2:")
    XAD = ST
    a(f"v_and_b32 v2, 15, {v(vL)}")
    a(f"v_lshrrev_b32 v3, 4, {v(vL)}")
    a(f"s_mul_i32 {s(T0+1)}, {s(sWV)}, 18432")
    a(f"s_movk_i32 {s(T0)}, 1152")
    a(f"v_mov_b32 v4, {s(T0+1)}")
    a(f"v_mad_u32_u24 v4, v2, {s(T0)}, v4")
    a(f"s_mov_b32 {s(T0+2)}, {s(sROT)}")
    for j in range(9):
        a(f"v_add_u32 v5, {s(T0+2)}, v2")
        a("v_and_b32 v5, 7, v5")
        a("v_xor_b32 v5, v5, v3")
        a(f"s_lshl_b32 {s(T0+3)}, {s(T0+2)}, 7")
        a(f"v_lshl_add_u32 v5, v5, 4, v4")
        a(f"v_add_u32 {v(XAD+2*j)}, {s(T0+3)}, v5")
        a(f"v_xor_b32 {v(XAD+2*j+1)}, 64, {v(XAD+2*j)}")
        if j < 8:
            a(f"s_add_u32 {s(T0+2)}, {s(T0+2)}, 1")
            a(f"s_cmp_eq_u32 {s(T0+2)}, 9")
            a(f"s_cselect_b32 {s(T0+2)}, 0, {s(T0+2)}")
    a(f"v_bfe_u32 v6, {v(vL)}, 2, 2")
    a(f"v_and_b32 v7, 3, {v(vL)}")
    a("v_lshrrev_b32 v8, 1, v6")
    a("v_and_b32 v9, 1, v3")
    a("v_lshl_or_b32 v8, v9, 1, v8")
    a("v_lshl_add_u32 v6, v3, 3, v6")
    a("v_lshlrev_b32 v9, 7, v6")
    a("v_lshl_add_u32 v9, v7, 3, v9")
    a(f"v_add_u32 v9, {XW}, v9")
    a(f"s_and_b32 {s(T0+4)}, {s(sWV)}, 1")
    a(f"s_lshl_b32 {s(T0+2)}, {s(T0+4)}, 1")
    a(f"v_xor_b32 v8, {s(T0+2)}, v8")
    a(f"v_lshl_add_u32 {v(vW0)}, v8, 5, v9")
    a(f"v_xor_b32 {v(vW0+1)}, 32, {v(vW0)}")
    a(f"v_add_u32 {v(vW1)}, {9*4096}, {v(vW0)}")
    a(f"v_add_u32 {v(vW1+1)}, {9*4096}, {v(vW0+1)}")
    a("v_and_b32 v10, 1, v7")
    a("v_lshlrev_b32 v10, 3, v10")
    a("v_lshl_add_u32 v10, v6, 4, v10")
    a(f"v_add_u32 {v(vWX)}, {WX}, v10")
    a(f"v_mul_u32_u24 v4, {QST}, v2")
    a("v_lshl_add_u32 v4, v3, 3, v4")
    a(f"s_mul_i32 {s(T0)}, {s(sWV)}, {16*QST}")
    a(f"s_add_u32 {s(T0)}, {s(T0)}, {QI}")
    a(f"v_add_u32 {v(vQw2)}, {s(T0)}, v4")
    a(f"s_lshl_b32 {s(T0+2)}, {s(T0+4)}, 6")
    a(f"s_and_b32 {s(T0+3)}, {s(sWV)}, 2")
    a(f"s_mul_i32 {s(T0)}, {s(T0+3)}, {16*QST}")
    a(f"s_add_u32 {s(T0)}, {s(T0)}, {QI}")
    a(f"s_add_u32 {s(T0+2)}, {s(T0+2)}, {s(T0)}")
    a(f"v_add_u32 {v(vQw)}, {s(T0+2)}, v4")
    a(f"v_and_b32 v11, 31, {v(vL)}")
    a(f"v_lshrrev_b32 v12, 5, {v(vL)}")
    a(f"v_mul_u32_u24 v4, {QST}, v11")
    a(f"s_mul_i32 {s(T0+2)}, {s(T0+4)}, 72")
    a(f"s_add_u32 {s(T0)}, {s(T0)}, {s(T0+2)}")
    a(f"v_add_u32 v4, {s(T0)}, v4")
    a(f"v_mad_u32_u24 {v(vQx)}, v12, 36, v4")
    a(f"v_lshl_add_u32 {v(vQa)}, v12, 4, v4")
    a(f"s_lshl_b32 {s(T0+2)}, {s(T0+3)}, 1")
    a(f"v_add_u32 {v(vQf)}, {s(T0+2)}, {v(vFB)}")
    a(f"v_lshlrev_b32 {v(vKl)}, 4, {v(vL)}")
    a("v_and_b32 v4, 19, v11")
    a("v_bfe_u32 v5, v11, 2, 1")
    a("v_lshl_or_b32 v4, v5, 3, v4")
    a("v_bfe_u32 v5, v11, 3, 1")
    a("v_lshl_or_b32 v4, v5, 2, v4")
    a("v_mad_u32_u24 v4, v12, 18, v4")
    a("v_and_b32 v5, 27, v11")
    a("v_cmp_eq_u32 vcc, 18, v5")
    a("v_mov_b32 v13, 36")
    a(f"v_mov_b32 {v(IDX)}, 0xdddd")
    a("v_cndmask_b32 v5, 37, v13, vcc")
    a("v_cmp_gt_u32 vcc, 18, v11")
    a(f"v_mov_b32 {v(ZZ)}, 0")
    a(f"v_mov_b32 {v(ZZ+1)}, 0")
    a("v_cndmask_b32 v4, v5, v4, vcc")
    a(f"v_lshlrev_b32 {v(vVl)}, 4, v4")
    a(f"v_add_u32 {v(vVl)}, 1024, {v(vVl)}")
    b0 = SLOT0 + CH_SZ * SLOTSEQ[0]
    a(f"v_add_u32 {v(vK)}, {b0}, {v(vKl)}")
    a(f"v_add_u32 {v(vV)}, {b0}, {v(vVl)}")
    a(f"v_mov_b32 {v(vFa)}, {F_RDY + 4}")
    a(f"s_lshl_b32 {s(T0)}, {s(sWV)}, 2")
    a(f"v_add_u32 {v(vCo)}, {s(T0)}, {v(vFB)}")
    seq = 0
    for i, k in enumerate(SLOTSEQ[1:] + [SLOTSEQ[-1]]):
        seq |= k << (4 * i)
    a(f"s_mov_b32 {s(sSEQ)}, {hex(seq)}")
    a(f"s_mov_b32 {s(sI)}, 0")
    a("v_and_b32 v4, 1, v3")
    a(f"s_movk_i32 {s(T0)}, {72*256}")
    a("v_lshlrev_b32 v5, 4, v2")
    a(f"v_mad_u32_u24 v4, v4, {s(T0)}, v5")
    a(f"s_lshl_b32 {s(T0)}, {s(sQB)}, 2")
    a(f"s_add_u32 {s(T0)}, {s(T0)}, {s(T0+3)}")
    a(f"s_mul_i32 {s(T0)}, {s(T0)}, {72*256}")
    a(f"s_mul_i32 {s(T0+2)}, {s(sG)}, {9*256}")
    a(f"s_add_u32 {s(T0)}, {s(T0)}, {s(T0+2)}")
    a(f"s_add_u32 {s(T0)}, {s(T0)}, {WS_O}")
    a(f"s_lshl_b32 {s(T0+2)}, {s(T0+4)}, 3")
    a(f"s_add_u32 {s(T0+2)}, {s(T0+2)}, {s(T0)}")
    a(f"v_add_u32 {v(vOx)}, {s(T0+2)}, v4")
    a(f"s_lshl_b32 {s(T0+2)}, {s(T0+4)}, 10")
    a(f"s_add_u32 {s(T0+2)}, {s(T0+2)}, {s(T0)}")
    a("v_lshl_add_u32 v4, v12, 8, v4")
    a(f"v_add_u32 {v(vOm)}, {s(T0+2)}, v4")
    a(f"s_lshl_b32 {s(T0+5)}, {s(sQB)}, 3")
    a(f"s_add_u32 {s(T0+5)}, {s(T0+5)}, {s(sG)}")
    a(f"s_lshl_b32 {s(T0)}, {s(T0+5)}, 2")
    a(f"s_add_u32 {s(T0)}, {s(T0)}, {s(sWV)}")
    a(f"s_lshl_b32 {s(T0)}, {s(T0)}, 2")
    a(f"s_add_u32 {s(T0)}, {s(T0)}, {WS_FO}")
    a(f"v_mov_b32 {v(vOf)}, {s(T0)}")
    a(f"s_lshl_b32 {s(T0)}, {s(T0+5)}, 7")
    a(f"s_add_u32 {s(T0)}, {s(T0)}, {WS_FKV}")
    a(f"v_mov_b32 {v(vPA+4)}, {s(T0)}")
    a(f"s_mul_i32 {s(T0+8)}, {s(T0+4)}, {-2*18432}")
    a(f"s_add_u32 {s(T0+8)}, {s(T0+8)}, 18432")
    a(f"s_cmp_lg_u32 {s(sPW)}, {s(sWV)}")
    a("s_cbranch_scc1 L_np")

    def xread(dst):
        for st_ in range(18):
            a(f"ds_read_b128 {v(dst+4*st_,4)}, {v(XAD+st_)}")

    def xmove():
        for st_ in range(18):
            a(f"v_add_u32 {v(XAD+st_)}, {s(T0+8)}, {v(XAD+st_)}")

    pK, pKX, pV, pC, pFG, pTG, pFL, pTL, pW0, pW1 = range(vPA, vPA + 10)
    a("s_setprio 3")
    a("v_mul_u32_u24 v5, 48, v6")
    a(f"v_add_u32 v5, {WK}, v5")
    a(f"v_lshl_add_u32 {v(pW0)}, v7, 3, v5")
    a(f"v_add_u32 {v(pW1)}, 40, v5")
    a(f"s_mul_i32 {s(T0+1)}, {s(sXCD)}, {CH_SZ}")
    a(f"s_add_u32 {s(T0+1)}, {s(T0+1)}, {WS_KV}")
    a(f"s_and_b32 {s(T0+2)}, {s(sQB)}, 3")
    a(f"s_lshl_b32 {s(T0+3)}, {s(T0+2)}, 1")
    a(f"s_lshr_b32 {s(T0)}, {s(sWV)}, 1")
    a(f"s_add_u32 {s(T0+3)}, {s(T0+3)}, {s(T0)}")
    a(f"s_mul_i32 {s(T0+3)}, {s(T0+3)}, 2240")
    a(f"s_add_u32 {s(T0+3)}, {s(T0+3)}, {s(T0+1)}")
    a("v_and_b32 v13, 1, v3")
    a("v_lshlrev_b32 v13, 3, v13")
    a("v_lshl_add_u32 v13, v2, 4, v13")
    a("v_lshl_add_u32 v4, v12, 9, v13")
    a(f"s_lshl_b32 {s(T0)}, {s(T0+4)}, 8")
    a(f"s_add_u32 {s(T0)}, {s(T0)}, {s(T0+3)}")
    a(f"v_add_u32 {v(pK)}, {s(T0)}, v4")
    a(f"s_lshl_b32 {s(T0+2)}, {s(T0+2)}, 2")
    a(f"s_lshl_b32 {s(T0)}, {s(sWV)}, 8")
    a(f"s_add_u32 {s(T0+2)}, {s(T0+2)}, {s(T0)}")
    a(f"s_add_u32 {s(T0+2)}, {s(T0+2)}, {s(T0+1)}")
    a(f"s_add_u32 {s(T0+2)}, {s(T0+2)}, 17920")
    a(f"v_lshl_add_u32 {v(pKX)}, v2, 4, {s(T0+2)}")
    a(f"s_movk_i32 {s(T0)}, 288")
    a(f"v_mad_u32_u24 v4, v12, {s(T0)}, v13")
    a(f"s_mul_i32 {s(T0)}, {s(T0+4)}, 608")
    a(f"s_add_u32 {s(T0+3)}, {s(T0+3)}, {s(T0)}")
    a(f"s_add_u32 {s(T0+3)}, {s(T0+3)}, 1024")
    a(f"v_add_u32 {v(pV)}, {s(T0+3)}, v4")
    a("v_cmp_eq_u32 vcc, 4, v2")
    a("v_mov_b32 v4, 0x3f803f80")
    a(f"v_cndmask_b32 {v(pC)}, 0, v4, vcc")
    a("s_waitcnt lgkmcnt(0)")
    a(f"s_mul_i32 {s(sTAG)}, {s(sTAG)}, 0x9E3779B1")
    a(f"s_add_u32 {s(sTAG)}, {s(sTAG)}, 0x632BE5AB")
    a(f"v_mov_b32 {v(pTG)}, {s(sTAG)}")
    a(f"ds_write_b32 {v(vFB)}, {v(pTG)} offset:{F_TAG-FL}")
    mkloc()
    a(f"s_lshl_b32 {s(T0)}, {s(T0+5)}, 2")
    a(f"s_add_u32 {s(T0)}, {s(T0)}, {WS_FL}")
    a(f"v_mov_b32 {v(pFL)}, {s(T0)}")
    a(f"v_mov_b32 {v(pTL)}, {s(sTL)}")
    a(f"s_add_u32 {s(T0+6)}, {s(pWS)}, {KVL}")
    a(f"s_addc_u32 {s(T0+7)}, {s(pWS+1)}, 0")
    a("s_waitcnt vmcnt(0)")
    stamp(13)
    lds_wait(F_B1, 1, 8, 0)
    stamp(14)
    xread(XA)
    a("v_cmp_le_u32 vcc, 4, v2")
    a(f"s_bitcmp1_b32 {s(sG)}, 0")
    a("s_cbranch_scc1 L_pv")

    def kvproj(isV):
        NR, PRE, KS = 8, 7, XB

        def rd(f):
            st_, tl = divmod(f, 2)
            b = KS + 4 * (f % NR)
            o = 48 * 32 * st_
            a(f"ds_read_b64_tr_b16 {v(b,2)}, {v(pW0+tl)} offset:{o}")
            a(f"ds_read_b64_tr_b16 {v(b+2,2)}, {v(pW0+tl)} offset:{o+192}")
        for f in range(PRE):
            rd(f)
        for f in range(36):
            st_, tl = divmod(f, 2)
            if f % 2 == 0:
                a(f"s_waitcnt lgkmcnt({2*(min(36, f+PRE) - min(36, f+2))})")
            w_, x_ = v(KS + 4 * (f % NR), 4), v(XA + 4 * st_, 4)
            A_, B_ = (x_, w_) if isV else (w_, x_)
            a(f"v_mfma_f32_16x16x32_bf16 {v(ACC+4*tl,4)}, {A_}, {B_}, {'0' if st_ == 0 else v(ACC+4*tl,4)}")
            if f + PRE < 36:
                rd(f + PRE)
        dflag(F_KVD)

    kvproj(False)
    a(f"s_mov_b32 {s(T0)}, {f32(QSCALE)}")
    a(f"s_mov_b32 {s(T0+1)}, {f32(QSCALE)}")
    xmove()
    a(f"v_pk_mul_f32 {v(ACC,2)}, {v(ACC,2)}, {s(T0,2)}")
    a(f"v_pk_mul_f32 {v(ACC+2,2)}, {v(ACC+2,2)}, {s(T0,2)}")
    a(f"v_pk_mul_f32 {v(ACC+6,2)}, {v(ACC+6,2)}, {s(T0,2)}")
    a(f"v_cvt_pk_bf16_f32 v8, {v(ACC)}, {v(ACC+1)}")
    a(f"v_cvt_pk_bf16_f32 v9, {v(ACC+2)}, {v(ACC+3)}")
    a(f"v_cvt_pk_bf16_f32 v10, {v(ACC+6)}, {v(ACC+7)}")
    a(f"global_store_dwordx2 {v(pK)}, v[8:9], {s(T0+6,2)}")
    a("s_mov_b64 exec, 0xffff")
    a(f"global_store_dword {v(pKX)}, v10, {s(T0+6,2)}")
    a(f"global_store_dword {v(pKX)}, v10, {s(pWS,2)} sc1")
    a("s_mov_b64 exec, -1")
    a(f"global_store_dwordx2 {v(pK)}, v[8:9], {s(pWS,2)} sc1")
    a("s_branch L_pub")
    a("L_pv:")
    kvproj(True)
    xmove()
    a(f"v_cvt_pk_bf16_f32 v8, {v(ACC)}, {v(ACC+1)}")
    a(f"v_cvt_pk_bf16_f32 v9, {v(ACC+2)}, {v(ACC+3)}")
    a(f"v_cvt_pk_bf16_f32 v10, {v(ACC+4)}, {v(ACC+5)}")
    a(f"v_cvt_pk_bf16_f32 v11, {v(ACC+6)}, {v(ACC+7)}")
    a(f"global_store_dwordx2 {v(pV)}, v[8:9], {s(T0+6,2)}")
    a(f"v_cndmask_b32 v10, v10, {v(pC)}, vcc")
    a(f"v_cndmask_b32 v11, v11, {v(pC)}, vcc")
    a(f"s_mov_b32 exec_lo, 0x000c000c")
    a(f"s_mov_b32 exec_hi, 0x003c003c")
    a(f"global_store_dwordx2 {v(pV)}, v[10:11], {s(T0+6,2)} offset:224")
    a(f"global_store_dwordx2 {v(pV)}, v[10:11], {s(pWS,2)} offset:224 sc1")
    a("s_mov_b64 exec, -1")
    a(f"global_store_dwordx2 {v(pV)}, v[8:9], {s(pWS,2)} sc1")
    a("L_pub:")
    a("s_waitcnt vmcnt(2)")
    a("s_mov_b64 exec, 1")
    a(f"global_store_dword {v(pFL)}, {v(pTL)}, {s(pWS,2)}")
    a("s_mov_b64 exec, -1")
    stamp(15)
    lds_wait(F_XO, 1, 8, 1)
    a("s_branch L_xb")
    a("L_np:")
    lds_wait(F_XO, 1, 8, 2)
    stamp(1)
    xread(XA)
    xmove()
    lds_wait(F_KVD, 1, 8, 1)
    a("L_xb:")
    xread(XB)
    lds_add(F_XC, 2)
    a("s_setprio 2")
    gettag(4)
    stamp(16)

    chk = [{0: 2, 4: 4, 8: 6, 12: 7, 14: 8, 16: 9}, {0: 2, 4: 5, 10: 8, 16: 9}, {0: 3, 6: 6, 12: 9}][opts.get("chk", 0)]
    NQ, PRE = 8, 6

    def qrd(f):
        st_, k = divmod(f, 3)
        if k == 0 and st_ in chk:
            lds_wait(F_WQ + 4 * (chk[st_] - 1), 1, 2, 1)
            if st_ == 16:
                stamp(30)
            if st_ == opts.get("gf", 0):
                a(f"s_cmp_lg_u32 {s(sPW)}, {s(sWV)}")
                a("s_cbranch_scc1 L_nogf")
                a("s_waitcnt vmcnt(0)")
                a("s_mov_b64 exec, 1")
                a(f"global_store_dword {v(pFG)}, {v(pTG)}, {s(pWS,2)} sc1")
                a("s_mov_b64 exec, -1")
                a("L_nogf:")
        b = ST + 4 * (f % NQ)
        if k < 2:
            sl = 17 - st_
            ar = (vW0 if sl < 9 else vW1) + k
            o = 4096 * (sl % 9)
            a(f"ds_read_b64_tr_b16 {v(b,2)}, {v(ar)} offset:{o}")
            a(f"ds_read_b64_tr_b16 {v(b+2,2)}, {v(ar)} offset:{o+512}")
        else:
            a(f"ds_read_b64_tr_b16 {v(b,2)}, {v(vWX)} offset:{512*st_}")
            a(f"ds_read_b64_tr_b16 {v(b+2,2)}, {v(vWX)} offset:{512*st_+64}")
    for f in range(PRE):
        qrd(f)
    for st_ in range(18):
        a(f"s_waitcnt lgkmcnt({2*(min(54, 3*st_+PRE) - (3*st_+3))})")
        for n, (k, X, acc) in enumerate(((0, XA, 0), (0, XB, 2), (1, XA, 1), (1, XB, 3), (2, XA, 4))):
            b = ST + 4 * ((3 * st_ + k) % NQ)
            c_ = '0' if st_ == 0 else v(ACC + 4 * acc, 4)
            a(f"v_mfma_f32_16x16x32_bf16 {v(ACC+4*acc,4)}, {v(b,4)}, {v(X+4*st_,4)}, {c_}")
            if n in (0, 2, 3):
                f = 3 * st_ + PRE + (0, 0, 1, 2)[n]
                if f < 54:
                    qrd(f)
    stamp(18)
    a(f"s_mul_i32 {s(T0)}, {s(T0+4)}, {16*QST}")
    a(f"s_sub_u32 {s(T0+1)}, {16*QST}, {s(T0)}")
    a(f"v_add_u32 v2, {s(T0)}, {v(vQw)}")
    a(f"v_add_u32 v3, {s(T0+1)}, {v(vQw)}")
    a(f"v_mfma_f32_32x32x4_2b_bf16 {v(OA,32)}, {v(ZZ,2)}, {v(ZZ,2)}, 0")
    for acc in (0, 2, 1, 3, 4):
        b = ACC + 4 * acc
        a(f"v_cvt_pk_bf16_f32 {v(b)}, {v(b)}, {v(b+1)}")
        a(f"v_cvt_pk_bf16_f32 {v(b+1)}, {v(b+2)}, {v(b+3)}")
        if acc == 4:
            a("s_mov_b32 exec_hi, 0")
            a(f"ds_write_b64 {v(vQw2)}, {v(b,2)} offset:128")
        else:
            a(f"ds_write_b64 v{2 + acc // 2}, {v(b,2)} offset:{32*(acc&1)}")
    a("s_mov_b64 exec, 1")
    a("v_mov_b32 v4, 1")
    a(f"ds_add_u32 {v(vQf)}, v4 offset:{F_QW-FL}")
    a("s_mov_b64 exec, -1")
    for i in range(8):
        a(f"v_mov_b32 {v(SY+24+i)}, 0")
    for i in range(4):
        a(f"v_mov_b32 {v(V1F+4+i)}, 0")
    a(f"v_mov_b32 {v(QX0+1)}, 0")
    a(f"v_mov_b32 {v(QX1)}, 0")
    lds_wait(F_QW, 2, 8, 0, base=vQf)
    a(f"ds_read_b32 {v(QX0)}, {v(vQx)} offset:32")
    a(f"ds_read2_b32 {v(QA,2)}, {v(vQa)} offset0:0 offset1:1")
    a(f"ds_read2_b32 {v(QA+2,2)}, {v(vQa)} offset0:2 offset1:3")
    a(f"ds_read2_b32 {v(QB,2)}, {v(vQa)} offset0:9 offset1:10")
    a(f"ds_read2_b32 {v(QB+2,2)}, {v(vQa)} offset0:11 offset1:12")
    a(f"ds_read_b32 {v(QX1+1)}, {v(vQx)} offset:32")
    a("s_mov_b64 exec, 1")
    a(f"ds_add_u32 {v(vFB)}, v4 offset:{F_QD-FL}")
    a("s_mov_b64 exec, -1")
    stamp(4)
    lds_wait(F_RDY, 1, 8, 0)
    stamp(6)
    stamp(50)

    def m2b(D, t):
        q = QX0 if ((t >> 1) & 1) == 0 else QX1
        return f"v_mfma_f32_32x32x4_2b_bf16 {v(D,32)}, {v(KXF+2*(t>>2),2)}, {v(q,2)}, 0 cbsz:1 abid:{t&1}"

    def mS(D, t, Q):
        return f"v_mfma_f32_32x32x16_bf16 {v(D,16)}, {v(KF+4*(t&1),4)}, {v(Q,4)}, {v(D,16)}"

    def smf(O, VF, t, P):
        return f"v_smfmac_f32_32x32x32_bf16 {v(O,16)}, {v(VF+4*(t&1),4)}, {v(P,8)}, {v(IDX)}"

    a(f"ds_read_b128 {v(KXF,4)}, {v(vK)} offset:17920")
    a(f"ds_read_b128 {v(KF,4)}, {v(vK)}")
    a(f"ds_read_b128 {v(KF+4,4)}, {v(vK)} offset:2240")
    a(f"ds_read_b128 {v(V0F,4)}, {v(vV)}")
    a(f"ds_read_b128 {v(V1F,4)}, {v(vV)} offset:608")
    a(f"ds_read_b32 v8, {v(vFB)} offset:{F_LOC-FL}")
    a("s_waitcnt lgkmcnt(5)")
    a(m2b(SX, 0))
    a("s_waitcnt lgkmcnt(0)")
    a(f"v_readfirstlane_b32 {s(sLOC)}, v8")
    a("s_setprio 0")
    a(mS(SX, 0, QA))
    a(mS(SX + 16, 0, QB))
    a("s_nop 10")
    a(".p2align 3")
    a("L_att:")
    if opts.get("cst"):
        stamp(40, sI)
    for t in range(8):
        cur, nxt = (SX, SY) if t % 2 == 0 else (SY, SX)
        ex = [f"v_exp_f32 {v(cur+i)}, {v(cur+i)}" for i in range(32)]
        tn = (t + 1) & 7
        q = []
        q += ex[0:2]
        q.append(smf(OB, V1F, t - 1, nxt + 24))
        q.append("s_waitcnt lgkmcnt(0)")
        if t == 5:
            q.append(f"v_cmp_eq_u32 vcc, 0, {v(vFl)}")
        q += ex[2:5]
        q.append(m2b(nxt, tn))
        q += ex[5:13]
        q.append(smf(OA, V0F, t, cur))
        q.append(f"ds_read_b128 {v(KF+4*(t&1),4)}, {v(vK)} offset:{2240*((t+2)&7)}")
        q += ex[13:18]
        q.append(smf(OA, V1F, t, cur + 8))
        q.append(f"ds_read_b128 {v(V0F+4*(tn&1),4)}, {v(vV)} offset:{2240*tn}")
        q += ex[18:22]
        q.append(mS(nxt, tn, QA))
        q.append(f"ds_read_b128 {v(V1F+4*(tn&1),4)}, {v(vV)} offset:{2240*tn+608}")
        q += ex[22:26]
        q.append(smf(OB, V0F, t, cur + 16))
        if t == 2:
            q.append(f"s_and_b32 {s(sNB)}, {s(sSEQ)}, 15")
        if t == 3:
            q.append(f"s_add_u32 {s(sNB)}, {s(sNB)}, {SLOT0}")
        if t == 4:
            q.append(f"ds_read_b32 {v(vFl)}, {v(vFa)}")
        if t == 5:
            q.append("s_cbranch_vccnz L_rw")
            q.append("L_rwd:")
        if t == 6:
            q.append(f"ds_read_b128 {v(KXF,4)}, {v(vK)} offset:17920")
        if t == 7:
            q.append(f"ds_write_b32 {v(vCo)}, {v(vFa)} offset:{F_CONS-FL}")
        q += ex[26:29]
        q.append(mS(nxt + 16, tn, QB))
        if t == 1:
            q.append(f"s_add_u32 {s(sI)}, {s(sI)}, 1")
        if t == 2:
            q.append(f"s_mul_i32 {s(sNB)}, {s(sNB)}, {CH_SZ}")
        if t == 3:
            q.append(f"s_lshr_b32 {s(sSEQ)}, {s(sSEQ)}, 4")
        if t == 5:
            q.append(f"v_add_u32 {v(vK)}, {s(sNB)}, {v(vKl)}")
        if t == 6:
            q.append(f"v_add_u32 {v(vV)}, {s(sNB)}, {v(vVl)}")
            q.append(f"v_add_u32 {v(vFa)}, 4, {v(vFa)}")
        if t == 7:
            q.append(f"s_cmp_lt_u32 {s(sI)}, 8")
        q += ex[29:32]
        for x in q:
            a(x)
    a("s_cbranch_scc1 L_att")

    def cons(n):
        return F_RDY + 4 + 4 * n
    a(smf(OB, V1F, 7, SY + 24))
    stamp(9)
    stamp(51)
    a("s_setprio 3")
    LO_B, HI_B = (127 - 60) << 23, (127 + 60) << 23
    a(f"v_mov_b32 v9, {s(sTAG)}")
    a(f"v_mov_b32 {v(vCv)}, {cons(9)}")
    a(f"v_subrev_u32 v2, {LO_B}, {v(OA+10)}")
    a(f"v_subrev_u32 v3, {LO_B}, {v(OB+10)}")
    a("v_max_u32 v2, v2, v3")
    a(f"v_cmp_lt_u32 vcc, {HI_B-LO_B}, v2")
    a("s_cbranch_vccnz L_slow" if not opts.get("forceslow") else "s_branch L_slow")
    a("L_norm:")
    a(f"v_rcp_f32 v4, {v(OA+10)}")
    a(f"v_rcp_f32 v6, {v(OB+10)}")
    for T, O in enumerate((OA, OB)):
        for i in range(0, 10, 2):
            a(f"v_pk_mul_f32 {v(O+i,2)}, {v(O+i,2)}, {v(4+2*T,2)} op_sel_hi:[1,0]")
        for i in range(4):
            a(f"v_cvt_pk_bf16_f32 {v(152+4*T+i)}, {v(O+2*i)}, {v(O+2*i+1)}")
        a(f"v_cvt_pk_bf16_f32 {v(160+T)}, {v(O+8)}, {v(O+9)}")
    a(f"s_cmp_eq_u32 {s(sLOC)}, 0")
    a("s_cbranch_scc1 L_pubg")
    for fl in ("", " sc1"):
        for T in range(2):
            a(f"global_store_dwordx4 {v(vOm)}, {v(152+4*T,4)}, {s(pWS,2)} offset:{512*T}{fl}")
        a("s_mov_b32 exec_hi, 0")
        a(f"global_store_dwordx2 {v(vOx)}, v[160:161], {s(pWS,2)} offset:2048{fl}")
        a("s_mov_b64 exec, 1")
        a("s_waitcnt vmcnt(0)")
        if not fl:
            stamp(11)
        a(f"global_store_dword {v(vOf)}, v9, {s(pWS,2)}{fl}")
        a(f"ds_write_b32 {v(vCo)}, {v(vCv)} offset:{F_CONS-FL}")
        a("s_mov_b64 exec, -1")
        a("s_branch L_fin")
        if not fl:
            a("L_pubg:")
    a("L_rw:")
    a("s_sleep 1")
    a(f"ds_read_b32 {v(vFl)}, {v(vFa)}")
    a("s_waitcnt lgkmcnt(0)")
    a(f"v_cmp_eq_u32 vcc, 0, {v(vFl)}")
    a("s_cbranch_vccnz L_rw")
    a("s_branch L_rwd")
    flush_stubs()

    a("L_kgen:")
    stamp(12)
    a("s_setprio 1")
    a(f"s_mul_i32 {s(sKB)}, {s(sS)}, {S_SZ}")
    SEL, KA, U0 = 16, 24, 40
    Z1, Z8, Z256, TT = 46, 48, 50, 52
    HV, LO, ONE, PK, DT = 54, 110, 114, 116, 180
    a(f"v_and_b32 v2, 1, {v(vL)}")
    a("v_lshlrev_b32 v2, 4, v2")
    a("v_mov_b32 v3, 0x3f80")
    a("v_lshlrev_b32 v2, v2, v3")
    a(f"v_bfe_u32 v3, {v(vL)}, 1, 3")
    a(f"v_lshrrev_b32 v13, 1, {v(vL)}")
    a(f"v_xor_b32 v13, v13, {v(vL)}")
    a("v_and_b32 v13, 16, v13")
    a("v_or_b32 v3, v3, v13")
    for d in range(8):
        a(f"v_cmp_eq_u32 vcc, {d}, v3")
        a(f"v_mov_b32 {v(KA+2*d)}, 0")
        a(f"v_mov_b32 {v(KA+2*d+1)}, 0")
        a(f"v_cndmask_b32 {v(SEL+d)}, 0, v2, vcc")
    a(f"v_mov_b32 {v(ONE)}, 1.0")
    a(f"v_mov_b32 {v(ONE+1)}, 0")
    a("s_waitcnt vmcnt(0)")
    stamp(1)
    a("v_lshlrev_b32 v10, 16, v10")
    a(f"v_mul_f32 v10, {f32(LOG2E)}, v10")
    a("v_exp_f32 v10, v10")
    a("v_lshlrev_b32 v11, 16, v11")
    a("v_cvt_pk_bf16_f32 v10, v10, v10")
    a("v_lshlrev_b32 v10, 16, v10")

    def cmul(r, x, y):
        a(f"v_pk_mul_f32 {v(r,2)}, {v(x,2)}, {v(y,2)} op_sel:[0,0] op_sel_hi:[0,1]")
        a(f"v_pk_fma_f32 {v(r,2)}, {v(x,2)}, {v(y,2)}, {v(r,2)} op_sel:[1,1,0] op_sel_hi:[1,0,1] neg_lo:[0,1,0]")

    vals = [(0, e) for e in range(9)] + [(1, e) for e in (0, 2, 4, 6, 8)] + [(2, e) for e in (0, 4, 8)] + \
           [(3, e) for e in (0, 4, 8)] + [(sg, e) for sg in (4, 5, 6, 7) for e in (0, 8)]
    reg = {k: HV + 2 * n for n, k in enumerate(vals)}
    rowval = [(0, 0), (0, 1), (0, 2), (0, 3), (1, 0), (1, 0), (1, 2), (1, 4),
              (2, 0), (2, 4), (2, 8), (2, 8), (3, 0), (3, 4), (3, 8), (3, 8),
              (0, 4), (0, 5), (0, 6), (0, 7), (1, 4), (1, 4), (1, 6), (1, 8),
              (4, 0), (4, 8), (6, 0), (6, 8), (5, 0), (5, 8), (7, 0), (7, 8)]
    a(f"s_mov_b32 {s(T0+4)}, 0")
    a("L_kround:")
    for i in range(6):
        a(f"v_lshlrev_b32 {v(U0+i)}, 16, v{PR+i}")
    for i in range(6):
        a(f"v_lshrrev_b32 v{PR+i}, 16, v{PR+i}")
    for i in range(4):
        a(f"v_mul_f32 {v(U0+i)}, v10, {v(U0+i)}")
    a(f"v_mul_f32 {v(U0)}, {f32(LOG2E)}, {v(U0)}")
    a(f"v_mul_f32 {v(U0+1)}, 0.15915494, {v(U0+1)}")
    for z, pw in ((Z8, 8.0), (Z1, 1.0), (Z256, 256.0)):
        a(f"v_mul_f32 {v(TT)}, {f32(pw)}, {v(U0)}")
        a(f"v_mul_f32 {v(TT+1)}, {f32(pw)}, {v(U0+1)}")
        a(f"v_exp_f32 {v(TT)}, {v(TT)}")
        a(f"v_fract_f32 {v(TT+1)}, {v(TT+1)}")
        a(f"v_cos_f32 {v(z)}, {v(TT+1)}")
        a(f"v_sin_f32 {v(z+1)}, {v(TT+1)}")
        a(f"v_mul_f32 {v(z)}, {v(TT)}, {v(z)}")
        a(f"v_mul_f32 {v(z+1)}, {v(TT)}, {v(z+1)}")

    def tmf(blk, q):
        d = DT + 16 * (blk % 4)
        a(f"v_mfma_f32_32x32x16_bf16 {v(d,16)}, {v(PK+8*blk+4*q,4)}, {v(SEL+4*q,4)}, {'0' if q == 0 else v(d,16)}")

    def tcv(blk):
        d = DT + 16 * (blk % 4)
        for i in range(8):
            a(f"v_cvt_pk_bf16_f32 {v(PK+8*blk+i)}, {v(d+2*i)}, {v(d+2*i+1)}")

    def lopack(j, ra, rb):
        a(f"v_cvt_pk_bf16_f32 {v(PK+32+j//2)}, {v(ra)}, {v(rb)}")
        a(f"v_cvt_pk_bf16_f32 {v(PK+48+j//2)}, {v(ra+1)}, {v(rb+1)}")
    hi_ops = []
    for (sg, e) in vals:
        if sg == 0:
            if e == 0:
                hi_ops.append(lambda: cmul(reg[(0, 0)], U0 + 4, U0 + 2))
            else:
                hi_ops.append(lambda e=e: cmul(reg[(0, e)], reg[(0, e - 1)], Z1))
        else:
            hi_ops.append(lambda sg=sg, e=e: cmul(reg[(sg, e)], reg[(sg - 1, e)], Z256))
    lo_ops = [lambda: lopack(0, ONE, Z8)]
    for j in range(2, 32):
        src = Z8 if j == 2 else LO + 2 * ((j - 1) & 1)
        if j & 1:
            lo_ops.append(lambda j=j, src=src: (cmul(LO + 2, src, Z8), lopack(j - 1, LO, LO + 2)))
        else:
            lo_ops.append(lambda j=j, src=src: cmul(LO, src, Z8))
    for i in range(31):
        lo_ops[i]()
        if i < len(hi_ops):
            hi_ops[i]()
        j = i + 1
        if j >= 8 and j % 8 in (0, 2):
            o = j // 8 - 1
            tmf((4 if j % 8 == 0 else 6) + o // 2, o % 2)
    hp = []
    for j in range(0, 32, 2):
        ra, rb = reg[rowval[j]], reg[rowval[j + 1]]
        hp.append(f"v_cvt_pk_bf16_f32 {v(PK+j//2)}, {v(ra)}, {v(rb)}")
        hp.append(f"v_cvt_pk_bf16_f32 {v(PK+16+j//2)}, -{v(ra+1)}, -{v(rb+1)}")
    for x in hp[0:4]:
        a(x)
    tmf(5, 1)
    for x in hp[4:10]:
        a(x)
    tmf(7, 1)
    for x in hp[10:16]:
        a(x)
    tcv(4)
    tmf(0, 0)
    tcv(6)
    tmf(2, 0)
    for x in hp[16:24]:
        a(x)
    tmf(0, 1)
    for x in hp[24:32]:
        a(x)
    tmf(2, 1)
    tcv(5)
    tmf(1, 0)
    tcv(7)
    tmf(3, 0)
    tcv(0)
    tmf(1, 1)
    tcv(2)
    tmf(3, 1)

    def gm(ah, bh, pl, fr):
        acc = KA + 8 * ah + 4 * bh
        a(f"v_mfma_f32_16x16x32_bf16 {v(acc,4)}, {v(PK+16*pl+8*ah+4*fr,4)}, {v(PK+32+16*pl+8*bh+4*fr,4)}, {v(acc,4)}")
    for pl in range(2):
        for fr in range(2):
            for bh in range(2):
                gm(0, bh, pl, fr)
    tcv(1)
    tcv(3)
    for pl in range(2):
        for fr in range(2):
            for bh in range(2):
                gm(1, bh, pl, fr)
    a(f"s_add_u32 {s(T0+4)}, {s(T0+4)}, 1")
    a(f"s_cmp_lt_u32 {s(T0+4)}, 2")
    a("s_cbranch_scc1 L_kround")
    stamp(13)
    E = 40
    a(f"v_and_b32 v2, 15, {v(vL)}")
    a(f"v_lshrrev_b32 v3, 4, {v(vL)}")
    a(f"v_lshl_add_u32 v2, v2, 4, {s(sKB)}")
    a("v_lshl_add_u32 v6, v3, 9, v2")
    a("v_and_b32 v4, 1, v3")
    a("v_lshl_add_u32 v7, v4, 9, v2")
    a("v_lshrrev_b32 v4, 1, v3")
    a("v_lshlrev_b32 v4, 8, v4")
    a("v_sub_u32 v7, v7, v4")
    a("v_add_u32 v7, 256, v7")
    a("s_mov_b64 exec, 1")
    a(f"v_add_f32 {v(KA)}, {v(KA)}, v11")
    a("s_mov_b32 exec_lo, -1")
    for b in range(2):
        A0, A1 = KA + 4 * b, KA + 8 + 4 * b
        a(f"v_cvt_pk_bf16_f32 {v(E+4*b)}, {v(A0)}, {v(A0+1)}")
        a(f"v_cvt_pk_bf16_f32 {v(E+4*b+1)}, {v(A0+2)}, {v(A0+3)}")
        a(f"v_cvt_pk_bf16_f32 {v(E+4*b+2)}, {v(A1)}, {v(A1+1)}")
        a(f"v_cvt_pk_bf16_f32 {v(E+4*b+3)}, {v(A1+2)}, {v(A1+3)}")
    a("s_not_b64 exec, exec")
    for b in range(2):
        A0 = KA + 4 * b
        a(f"v_cvt_pk_bf16_f32 {v(E+4*b)}, {v(A0)}, {v(A0)}")
        a(f"v_cvt_pk_bf16_f32 {v(E+4*b+1)}, {v(A0)}, {v(A0+1)}")
        a(f"v_cvt_pk_bf16_f32 {v(E+4*b+2)}, {v(A0+1)}, {v(A0+1)}")
        a(f"v_cvt_pk_bf16_f32 {v(E+4*b+3)}, {v(A0+2)}, {v(A0+2)}")
    a("s_mov_b64 exec, -1")
    for r in range(4):
        a(f"v_permlane32_swap_b32 {v(KA+12+r)}, {v(KA+8+r)}")
    a("s_mov_b32 vcc_lo, 0xaaaaaaaa")
    a("s_mov_b32 vcc_hi, 0xaaaaaaaa")
    for n in range(2):
        k0, k8, b = KA + 8 + 2 * n, KA + 9 + 2 * n, E + 8 + 4 * n
        a(f"v_cndmask_b32 v4, {v(k0)}, {v(k8)}, vcc")
        a(f"v_cvt_pk_bf16_f32 {v(b)}, {v(k0)}, {v(k0)}")
        a(f"v_cvt_pk_bf16_f32 {v(b+1)}, {v(k0)}, {v(k0)}")
        a(f"v_cvt_pk_bf16_f32 {v(b+2)}, v4, {v(k8)}")
        a(f"v_cvt_pk_bf16_f32 {v(b+3)}, {v(k8)}, {v(k8)}")
    for i in range(4):
        a(f"v_mov_b32 {v(E+16+i)}, 0")
    a(f"v_lshl_add_u32 v8, {v(vL)}, 4, {s(sKB)}")
    a(f"v_cmp_eq_u32 vcc, 2, {v(vL)}")
    a(f"v_add_u32 v9, {CST-32}, v8")
    a("v_cndmask_b32 v9, v8, v9, vcc")
    for blk in hb:
        a.L += blk
    stamp(14)
    lds_wait(F_RDY, 1, 2, 2)
    stamp(28)
    a(f"ds_write_b128 v6, {v(E,4)} offset:32")
    a(f"ds_write_b128 v6, {v(E+4,4)} offset:{32+256}")
    a(f"ds_write_b128 v7, {v(E+8,4)} offset:{32+2048}")
    a(f"ds_write_b128 v7, {v(E+12,4)} offset:{32+3072}")
    a("s_mov_b64 exec, 7")
    a(f"ds_write_b128 v9, {v(E+16,4)}")
    a("s_mov_b64 exec, -1")
    goffs = (1, 65, 129, 193, 194)
    D0 = 64
    for n, go in enumerate(goffs):
        a(f"ds_read_b128 {v(D0+6*n,4)}, v8 offset:{16*go}")
        a(f"ds_read_b32 {v(D0+6*n+4)}, v8 offset:{16*go+16}")
    for n, go in enumerate(goffs):
        d = D0 + 6 * n
        a(f"s_waitcnt lgkmcnt({2*(4-n) + n})")
        for i in range(4):
            a(f"v_alignbit_b32 {v(d+i)}, {v(d+i+1)}, {v(d+i)}, 16")
        a(f"ds_write_b128 v8, {v(d,4)} offset:{CST+16*go}")
    gettag(2)
    stamp(2)
    lds_wait(F_RDY + 4 * opts.get("urdy", 4), 1, 2, 4)

    a("L_ssm:")
    stamp(7)
    if opts.get("noH"):
        a(f"s_cmp_lg_u32 {s(sWV)}, 7")
        a("s_cbranch_scc1 L_fin")
        lds_wait(F_CONS, cons(2), 2, 32, base=vF4)
        chunk_dma(6)
        chunk_dma(7)
        a("s_branch L_epoch")
    UR = 128
    srd(SRA, pU, 2048 * 1152)
    for r in range(16):
        a(f"s_add_u32 {s(T0+2)}, {s(sU0)}, {r}")
        a(f"s_and_b32 {s(T0+2)}, {s(T0+2)}, 15")
        a(f"s_mul_i32 {s(T0+2)}, {s(T0+2)}, {128*1152}")
        a(f"buffer_load_dword {v(UR+r)}, {v(vU)}, {s(SRA,4)}, {s(T0+2)} offen")
    a(f"s_lshr_b32 {s(T0+5)}, s2, 3")
    a(f"s_mul_i32 {s(T0+5)}, {s(T0+5)}, 20736")
    a(f"s_mul_i32 {s(T0+4)}, {s(sS)}, 5120")
    a(f"s_add_u32 {s(T0+4)}, {s(T0+4)}, {s(T0+5)}")
    a(f"v_min_u32 v3, 41, {v(vL)}")
    a(f"v_lshl_add_u32 v3, v3, 7, {s(T0+4)}")
    a(f"global_load_dword v4, v3, {s(pWO,2)}")
    a(f"global_load_dword v5, {v(vPF)}, {s(pWS,2)} sc1")
    a(f"s_lshl_b32 {s(T0+4)}, {s(sQB)}, 2")
    a(f"s_add_u32 {s(T0+4)}, {s(T0+4)}, {s(sS)}")
    a(f"s_mul_i32 {s(T0+4)}, {s(T0+4)}, 18432")
    a(f"s_lshl_b32 {s(T0+5)}, {s(sG144)}, 4")
    a(f"s_add_u32 {s(T0+4)}, {s(T0+4)}, {s(T0+5)}")
    a(f"s_add_u32 {s(T0+4)}, {s(T0+4)}, {WS_O}")
    a(f"v_min_u32 v3, 17, {v(vL)}")
    a(f"v_lshl_add_u32 v3, v3, 7, {s(T0+4)}")
    a(f"global_load_dword v6, v3, {s(pWS,2)} sc1")
    stamp(18)
    a(f"s_mul_i32 {s(T0)}, {s(sS)}, {U_SZ}")
    a(f"s_add_u32 {s(T0)}, {s(T0)}, {UI+4096}")
    a(f"v_lshl_add_u32 v3, {v(vL)}, 2, {s(T0)}")
    a(f"ds_write2st64_b32 v3, {v(vZ)}, {v(vZ)} offset0:0 offset1:1")
    srd(SRA, pOUT, 2048 * 2304)
    srd(SRB, pWO, 576 * 1152)
    a("s_waitcnt vmcnt(0)")
    stamp(19)
    for r in range(16):
        a(f"ds_write_b16 {v(US+r)}, {v(UR+r)}")
        a(f"ds_write_b16_d16_hi {v(US+r)}, {v(UR+r)} offset:{U_SZ}")
    lds_add(F_U, 2)
    lds_wait(F_U, 4, 2, 2)
    a(f"s_cmp_lg_u32 {s(sWV)}, 7")
    a("s_cbranch_scc1 L_s1")
    lds_wait(F_CONS, cons(2), 2, 4, base=vF4)
    chunk_dma(6)
    chunk_dma(7)
    a("s_setprio 1")
    a("L_s1:")
    stamp(20)
    CA, CBf, CC, CS = 16, 48, 80, 112
    if opts.get("noconv"):
        a("s_branch L_csd")

    def conv_block(va, vb, rho, kmax, pairs):
        LOOK = 4
        seen = set()
        for k in range(kmax + 1 + LOOK):
            if k <= kmax:
                o = 128 * (k & 1) + 16 * rho
                a(f"ds_read_b128 {v(CBf+4*k,4)}, {v(vb)} offset:{64*rho+512*(7-k)}")
                a(f"ds_read2_b32 {v(CA+4*k,2)}, {v(va+k//2)} offset0:{o} offset1:{o+1}")
                a(f"ds_read2_b32 {v(CA+4*k+2,2)}, {v(va+k//2)} offset0:{o+2} offset1:{o+3}")
            kk = k - LOOK
            if kk >= 0:
                todo = [p for p in pairs if max(p[1], p[2]) == kk]
                if todo:
                    a(f"s_waitcnt lgkmcnt({3*(min(k, kmax)-kk)})")
                for acc, aa, jj_ in todo:
                    c_ = '0' if (rho == 0 and acc not in seen) else v(acc, 4)
                    seen.add(acc)
                    a(f"v_mfma_f32_16x16x32_bf16 {v(acc,4)}, {v(CA+4*aa,4)}, {v(CBf+4*jj_,4)}, {c_}")
                    if opts.get("cnop"):
                        a(f"s_nop {opts['cnop']}")

    for rho in range(4):
        conv_block(AO, vB0, rho, 7, [(CC + 4 * (x + y), x, y) for x in range(8) for y in range(8 - x)])
    stamp(21)
    for jj in range(4):
        if jj < 3:
            a(f"s_cmp_lg_u32 {s(sJJ)}, {jj}")
            a(f"s_cbranch_scc1 L_cs{jj+1}")
        i1, i2 = jj, 7 - jj
        pairs = [(CS + 4, x, i2 - x) for x in range(i2 + 1)] + [(CS, x, i1 - x) for x in range(i1 + 1)]
        for rho in range(2):
            conv_block(AS, vBS, rho, i2, pairs)
        if jj < 3:
            a("s_branch L_csd")
            a(f"L_cs{jj+1}:")
    a("L_csd:")
    stamp(22)
    lds_wait(F_CONS, cons(4), 2, 8, base=vF4)
    for i in range(8):
        a(f"ds_write_b128 {v(vEW)}, {v(CC+4*i,4)} offset:{1024*i}")
    for i in range(2):
        a(f"ds_write_b128 {v(vES)}, {v(CS+4*i,4)} offset:{1024*i}")
    lds_add(F_C2, 2)
    lds_wait(F_C2, 4, 3, 2)
    Y, YS = 16, 56
    for tl in range(2):
        for src in range(4):
            a(f"ds_read_b128 {v(Y+16*tl+4*src,4)}, {v(vER)} offset:{8192*src+1024*tl}")
    for src in range(4):
        a(f"ds_read_b64 {v(YS+2*src,2)}, {v(vESR)} offset:{2048*src}")
    a("s_mov_b64 exec, 1")
    a(f"ds_add_u32 {v(vFB)}, v2 offset:{F_C1-FL}")
    a("s_mov_b64 exec, -1")
    a("s_waitcnt lgkmcnt(0)")
    for tl in range(2):
        for ch in range(2):
            y = Y + 16 * tl + 8 * ch
            a(f"v_pk_add_f32 {v(y,2)}, {v(y,2)}, {v(y+4,2)}")
            a(f"v_pk_add_f32 {v(y+2,2)}, {v(y+2,2)}, {v(y+6,2)}")
        for r in range(4):
            y = Y + 16 * tl
            a(f"v_cvt_pk_bf16_f32 {v(YP+4*tl+r)}, {v(y+r)}, {v(y+8+r)}")
    a(f"v_pk_add_f32 {v(YS,2)}, {v(YS,2)}, {v(YS+2,2)}")
    a(f"v_pk_add_f32 {v(YS+4,2)}, {v(YS+4,2)}, {v(YS+6,2)}")
    a(f"v_pk_add_f32 {v(YS,2)}, {v(YS,2)}, {v(YS+4,2)}")
    a(f"v_cvt_pk_bf16_f32 {v(YP+8)}, {v(YS)}, {v(YS+1)}")
    stamp(23)
    lds_wait(F_C1, 4, 3, 2)
    a(f"s_lshl_b32 {s(T0+3)}, {s(sWOL)}, 3")
    for jj in range(18):
        gp, idx = divmod(jj, 9)
        rowbase = 72 * gp + (18 * (idx >> 1) + 8 * (idx & 1) if idx < 8 else 16)
        vr = vWOp + (jj & 1) + (2 if idx == 8 else 0)
        a(f"s_add_u32 m0, {s(T0+3)}, {WO_M + 1024*jj}")
        a(f"s_add_u32 {s(T0+5)}, {s(sWOG)}, {rowbase*1152}")
        a(f"buffer_load_dwordx4 {v(vr)}, {s(SRB,4)}, {s(T0+5)} offen lds")
        if idx == 4:
            a(f"s_add_u32 m0, {s(sWOL)}, {WO_X + 1152*gp}")
            a(f"s_add_u32 {s(T0+5)}, {s(sWOG)}, {72*gp*1152 + 128}")
            a(f"buffer_load_dwordx4 {v(vWOp+4)}, {s(SRB,4)}, {s(T0+5)} offen lds")
        if idx == 8:
            a(f"s_add_u32 m0, {s(sWOL)}, {WO_X + 1152*gp + 1024}")
            a(f"s_add_u32 {s(T0+5)}, {s(T0+5)}, 128")
            a("s_mov_b64 exec, 0xff")
            a(f"buffer_load_dwordx4 {v(vWOp+5)}, {s(SRB,4)}, {s(T0+5)} offen lds")
            a("s_mov_b64 exec, -1")
    a(f"s_lshl_b32 {s(T0)}, {s(sS)}, 2")
    dflag(f"s_add_u32 m0, {s(T0)}, {F_WO}")
    lds_wait(F_WO, 1, 2, 8, base=vF4)
    stamp(31)
    for tl in range(0 if opts.get("noy") else 2):
        for r in range(4):
            a(f"s_add_u32 {s(T0+2)}, {s(sYO)}, {(256*tl+r)*2304}")
            a(f"buffer_store_dword {v(YP+4*tl+r)}, {v(vYA)}, {s(SRA,4)}, {s(T0+2)} offen{YF}")
    a(f"buffer_store_short {v(YP+8)}, {v(vYA)}, {s(SRA,4)}, {s(sYS)} offen{YF}")
    a(f"buffer_store_short_d16_hi {v(YP+8)}, {v(vYA)}, {s(SRA,4)}, {s(sYS)} offen offset:2304{YF}")
    stamp(8)

    OFR, OAC = 4, 206
    WST, NW = 36, 36

    def ord_(f):
        st_, ct = divmod(f, 5)
        b = WST + 4 * (f % NW)
        if ct < 4:
            ar = (181 if st_ < 9 else 185) + ct
            o = 4096 * (st_ % 9)
            return [f"ds_read_b64_tr_b16 {v(b,2)}, {v(ar)} offset:{o}", f"ds_read_b64_tr_b16 {v(b+2,2)}, {v(ar)} offset:{o+512}"]
        return [f"ds_read_b64_tr_b16 {v(b,2)}, v189 offset:{512*st_}", f"ds_read_b64_tr_b16 {v(b+2,2)}, v189 offset:{512*st_+64}"]

    def old(k):
        if k in (8, 16):
            a(f"v_add_u32 {v(vOL)}, 8192, {v(vOL)}")
        a(f"global_load_dwordx4 {v(OFR+4*(k%8),4)}, {v(vOL)}, {s(pWS,2)} offset:{1024*(k%8)-4096}{FLG[opts.get('lf', 2)]}")
    lds_wait(F_CONS, cons(8), 2, 8, base=vF4)
    stamp(24)
    reads = []
    for f in range(90):
        reads += ord_(f)
    for x in reads[:2 * NW]:
        a(x)
    lds_wait(F_CONS, cons(9), 2, 1, base=vF4)
    stamp(25)
    poll(vPF, 2, "L_pollo", slp=1)
    stamp(26)
    for k in range(8):
        old(k)
    nr = 2 * NW
    for f in range(90):
        st_, ct = divmod(f, 5)
        if ct == 0:
            a(f"s_waitcnt vmcnt({min(18, st_+8) - st_ - 1 - (1 if 0 < st_ <= 10 else 0)})")
        if f % 3 == 0 and 2 * min(90, f + 3) > 2 * NW:
            a(f"s_waitcnt lgkmcnt({min(15, nr - 2*min(90, f+3))})")
        b = WST + 4 * (f % NW)
        c_ = '0' if st_ == 0 else v(OAC + 4 * ct, 4)
        a(f"v_mfma_f32_16x16x32_bf16 {v(OAC+4*ct,4)}, {v(b,4)}, {v(OFR+4*(st_%8),4)}, {c_}")
        if ct == 0 and 0 < st_ <= 10:
            old(st_ + 7)
        else:
            want = min(180, 2 * NW + (f + 1) * 3 // 2, 2 * (f + NW))
            while nr < want:
                a(reads[nr])
                nr += 1
    assert nr == 180
    stamp(27)
    for ct in range(5):
        b = OAC + 4 * ct
        a(f"v_cvt_pk_bf16_f32 {v(b)}, {v(b)}, {v(b+1)}")
        a(f"v_cvt_pk_bf16_f32 {v(b+1)}, {v(b+2)}, {v(b+3)}")
        a(f"ds_write_b64 {v(vTW)}, {v(b,2)} offset:{32*ct}")
    for i in range(3):
        a(f"ds_read_b128 {v(40+4*i,4)}, {v(190+i)}")
    for i in range(3):
        a(f"s_waitcnt lgkmcnt({2-i})")
        if i == 2:
            a("s_mov_b64 exec, 0xffff")
        a(f"buffer_store_dwordx4 {v(40+4*i,4)}, {v(193+i)}, {s(SRA,4)}, {s(sOB)} offen{OF}")
    a("s_mov_b64 exec, -1")
    a("L_epoch:")
    a(f"s_cmp_lg_u32 s2, 0")
    a("s_cbranch_scc1 L_fin")
    a(f"s_cmp_lg_u32 {s(sWV)}, 7")
    a("s_cbranch_scc1 L_fin")
    a(f"v_mov_b32 v5, {s(sTAG)}")
    a("s_mov_b64 exec, 1")
    a(f"global_store_dword {v(vZ)}, v5, {s(pWS,2)} sc1")
    a("s_mov_b64 exec, -1")
    a("L_fin:")
    if probe is not None:
        a("s_waitcnt vmcnt(0)")
        stamp(10)
        a("s_sub_u32 s98, s98, s96")
        a("s_lshl_b32 s98, s98, 2")
        a("s_add_u32 s98, s98, 6000")
        a("L_probe:")
        a("s_sleep 4")
        a("s_memrealtime s[94:95]")
        a("s_waitcnt lgkmcnt(0)")
        a("s_sub_u32 s94, s94, s96")
        a("s_cmp_lt_u32 s94, s98")
        a("s_cbranch_scc1 L_probe")
    if stamps:
        a("s_waitcnt vmcnt(0)")
        stamp(10)
        if fast is not None:
            a("s_waitcnt lgkmcnt(0)")
            for k, i in enumerate(fast):
                a(f"v_writelane_b32 v255, {s(84+2*k)}, {i}")
        a(f"s_lshl_b32 {s(T0)}, s2, 11")
        a(f"s_add_u32 {s(T0)}, {s(T0)}, {WS_DBG}")
        a(f"v_lshl_add_u32 v4, v0, 2, {s(T0)}")
        a(f"global_store_dword v4, v255, {s(pWS,2)}")
    a("L_exit:")
    a("s_endpgm")
    flush_stubs()

    MB, MX = 164, 196
    sP, sC, sT, sA = T0 + 1, T0 + 2, T0 + 3, T0 + 4
    a("L_slow:")
    a("s_waitcnt lgkmcnt(0)")
    a("s_nop 15")
    for i in range(32):
        a(f"v_mov_b32 {v(MB+i)}, 0")
        a(f"v_mov_b32 {v(OA+i)}, 0")
    a(f"v_mov_b32 {v(MX)}, 0xff800000")
    a(f"v_mov_b32 {v(MX+1)}, 0xff800000")
    a(f"v_and_b32 v2, 31, {v(vL)}")
    a("v_lshlrev_b32 v2, 4, v2")
    a(f"v_mov_b32 {v(KXF+1)}, 0")
    a(f"s_mov_b32 {s(sP)}, 0")
    a("L_sp:")
    a(f"s_mov_b32 {s(sC)}, {WS_KV}")
    a("L_sc:")
    a(f"s_mov_b32 {s(sT)}, 0")
    a("L_st:")
    a(f"s_mul_i32 {s(sA)}, {s(sT)}, 2240")
    a(f"s_add_u32 {s(sA)}, {s(sA)}, {s(sC)}")
    a(f"v_add_u32 v3, {s(sA)}, {v(vKl)}")
    a(f"v_add_u32 v4, {s(sA)}, {v(vVl)}")
    a(f"s_and_b32 {s(sA)}, {s(sT)}, 1")
    a(f"s_lshl_b32 {s(sA)}, {s(sA)}, 9")
    a(f"s_lshr_b32 {s(T0)}, {s(sT)}, 1")
    a(f"s_lshl_b32 {s(T0)}, {s(T0)}, 2")
    a(f"s_add_u32 {s(sA)}, {s(sA)}, {s(T0)}")
    a(f"s_add_u32 {s(sA)}, {s(sA)}, {s(sC)}")
    a(f"s_add_u32 {s(sA)}, {s(sA)}, 17920")
    a(f"v_add_u32 v5, {s(sA)}, v2")
    a(f"global_load_dwordx4 {v(KF,4)}, v3, {s(pWS,2)} sc1")
    a(f"global_load_dword {v(KXF)}, v5, {s(pWS,2)} sc1")
    a(f"global_load_dwordx4 {v(V0F,4)}, v4, {s(pWS,2)} sc1")
    a(f"global_load_dwordx4 {v(V1F,4)}, v4, {s(pWS,2)} offset:608 sc1")
    a("s_waitcnt vmcnt(0)")
    a(f"v_mfma_f32_32x32x4_2b_bf16 {v(SX,32)}, {v(KXF,2)}, {v(QX0,2)}, {v(MB,32)}")
    a(mS(SX, 0, QA))
    a(mS(SX + 16, 0, QB))
    a("s_nop 15")
    a(f"s_cmp_eq_u32 {s(sP)}, 0")
    a("s_cbranch_scc0 L_s2")
    for T in range(2):
        for i in range(0, 16, 2):
            a(f"v_max3_f32 {v(MX+T)}, {v(SX+16*T+i)}, {v(SX+16*T+i+1)}, {v(MX+T)}")
    a("s_branch L_s3")
    a("L_s2:")
    for i in range(32):
        a(f"v_exp_f32 {v(SX+i)}, {v(SX+i)}")
    a(smf(OA, V0F, 0, SX))
    a(smf(OA, V1F, 0, SX + 8))
    a(smf(OB, V0F, 0, SX + 16))
    a(smf(OB, V1F, 0, SX + 24))
    a("L_s3:")
    a(f"s_add_u32 {s(sT)}, {s(sT)}, 1")
    a(f"s_cmp_lt_u32 {s(sT)}, 8")
    a("s_cbranch_scc1 L_st")
    a(f"s_add_u32 {s(sC)}, {s(sC)}, {CH_SZ}")
    a(f"s_cmp_lt_u32 {s(sC)}, {WS_KV + 8*CH_SZ}")
    a("s_cbranch_scc1 L_sc")
    a("s_nop 15")
    a(f"s_cmp_lg_u32 {s(sP)}, 0")
    a("s_cbranch_scc1 L_norm")
    for T in range(2):
        a(f"v_mov_b32 v6, {v(MX+T)}")
        a(f"v_permlane32_swap_b32 v6, {v(MX+T)}")
        a(f"v_max_f32 v6, v6, {v(MX+T)}")
        for i in range(16):
            a(f"v_sub_f32 {v(MB+16*T+i)}, 0, v6")
    a(f"s_mov_b32 {s(sP)}, 1")
    a("s_branch L_sp")

    lines, nins = fix_hazards(a.L, verbose=opts.get("verbose", False))
    hdr = [ln.rstrip("\n") for ln in open(REF) if ln.startswith(";") and "@launch" not in ln]
    txt = "\n".join(hdr) + f"\n; @launch grid=(256,1,1) block=(512,1,1) lds={LDS_TOTAL}\n"
    txt += '.amdgcn_target "amdgcn-amd-amdhsa--gfx950"\n.text\n'
    txt += f".globl {kname}\n.p2align 8\n.type {kname},@function\n"
    txt += "\n".join(lines) + "\n"
    txt += f""".section .rodata,"a"
.p2align 6
.amdhsa_kernel {kname}
  .amdhsa_next_free_vgpr 256
  .amdhsa_next_free_sgpr 102
  .amdhsa_accum_offset 256
  .amdhsa_group_segment_fixed_size 0
  .amdhsa_kernarg_size 136
  .amdhsa_user_sgpr_count 2
  .amdhsa_user_sgpr_kernarg_segment_ptr 1
  .amdhsa_system_sgpr_workgroup_id_x 1
.end_amdhsa_kernel
"""
    size = text_size(txt.replace("CODE_END_OFF", "0x12345"))
    txt = txt.replace("CODE_END_OFF", str((size - 256) & ~3))
    print("code bytes", size)
    return txt, nins


if __name__ == "__main__":
    out = sys.argv[1] if len(sys.argv) > 1 else f"cdna_kernels/{NAME}.s"
    opts = {}
    for x in sys.argv[2:]:
        k, _, val = x.partition("=")
        if k == "fast":
            opts[k] = [int(y) for y in val.split(",")]
            opts["stamps"] = 1
        else:
            opts[k] = int(val) if val else 1
    txt, n = gen(opts)
    open(out, "w").write(txt)
    print("wrote", out, "bytes", len(txt), "nop states inserted", n)
```

```python
import sys, os, math, struct
sys.path.insert(0, os.path.dirname(os.path.abspath(__file__)))
from asmlib import *

NAME = "concat_heads__grouped_kv_mqa__ssm_conv_s4__prompt"
REF = f"cdna_kernels/{NAME}.s.ref"


def f32(x):
    return "0x%08x" % struct.unpack("<I", struct.pack("<f", x))[0]


LOG2E = 1.4426950408889634
QSCALE = LOG2E * (18 ** -0.5)

XS = 0
XW = 52224
WX = 125952
WK = 135424
QI = 135424
QST = 144
FL = 163584
S_SZ = 8320
CST = 4160
UI = 24960
TB = 38784
U_SZ = 4608
CB = 38784
CH_SZ = 18944
SLOT0 = 49920
SLOTSEQ = [5, 4, 0, 1, 2, 3, 5, 4]
WO_M = 0
WO_X = 73728
TB2 = SLOT0 + 2 * CH_SZ
OT = SLOT0 + 3 * CH_SZ
LDS_TOTAL = 163840
F_XC, F_KVD, F_QD, F_U, F_C1, F_C2, F_TAG, F_LOC, F_B1, F_XO = [FL + 4 * i for i in range(10)]
F_QW = FL + 40
F_B0, F_UR, F_YR = FL + 64, FL + 68, FL + 72
F_CONS = FL + 48
F_WO = FL + 80
F_RDY = FL + 96
F_WQ = FL + 144

WS_FKV = 4096
WS_KV = 0x20000
WS_O = 0x50000
WS_FO = 0x300000
WS_FL = 0x310000
KVL = 0x300000
WS_DBG = 0x400000
WS_FU = 0x312000
WS_FY = 0x314000
WS_UT = 0x500000
WS_YT = 0x800000

sWV, sQB, sG, sCID, sTAG = 3, 4, 5, 6, 7
SRA, SRB = 8, 12
pX, pWQ, pWK, pWV, pWO, pU, pARE, pAIM, pBRE, pBIM, pCRE, pCIM, pLDT, pDSK, pOUT, pDBG, pWS = range(16, 50, 2)
sCH0, sCHS, sJJ, sXCD = 50, 51, 52, 53
T0 = 54
H0 = 64
sS, sJ, sHL, sOB, sYB, sWOG, sWOL = 68, 69, 70, 71, 72, 73, 74
SRW = 28
sI, sSEQ, sNB, sLOC = 68, 69, 70, 71
sKB, sROT = 77, 78
sTL, sPW, sG144 = 79, 80, 81
sPC = 82
vL, vZ, vFB = 1, 254, 253


def gen(opts):
    a = Asm()
    stamps = opts.get("stamps", 0)
    probe = opts.get("probe", None)
    fast = opts.get("fast", None)
    FLG = ["", " nt", " sc1", " sc0 sc1", " sc0"]
    YF, OF = FLG[opts.get("yf", 0)], FLG[opts.get("of", 0)]

    def stamp(i, dyn=None):
        if probe is not None:
            if i == 0:
                a("s_memrealtime s[96:97]")
                a("s_waitcnt lgkmcnt(0)")
                a("s_mov_b32 s98, s96")
            elif i == probe:
                a("s_memrealtime s[98:99]")
                a("s_waitcnt lgkmcnt(0)")
        if fast is not None:
            if i in fast and dyn is None:
                k = fast.index(i)
                a(f"{'s_memtime' if i >= 50 else 's_memrealtime'} {s(84+2*k,2)}")
            return
        if stamps and i < 50:
            a("s_memrealtime s[100:101]")
            if dyn is not None:
                a(f"s_add_u32 s99, {s(dyn)}, {i}")
            a("s_waitcnt lgkmcnt(0)")
            if dyn is not None:
                a("s_mov_b32 m0, s99")
                a("v_writelane_b32 v255, s100, m0")
            else:
                a(f"v_writelane_b32 v255, s100, {i}")

    stubs = []

    def flush_stubs():
        for lab, slp in stubs:
            a(f"{lab}_s:")
            a(f"s_sleep {slp}")
            a(f"s_branch {lab}")
        stubs.clear()

    def lds_wait(addr, val, vt, slp=1, base=None):
        lab = a.label("Lspin")
        a(f"{lab}:")
        a(f"ds_read_b32 {v(vt)}, {v(vFB if base is None else base)} offset:{addr-FL}")
        a("s_waitcnt lgkmcnt(0)")
        a(f"v_cmp_gt_u32 vcc, {val}, {v(vt)}")
        if slp:
            a(f"s_cbranch_vccnz {lab}_s")
            stubs.append((lab, slp))
        else:
            a(f"s_cbranch_vccnz {lab}")

    def lds_add(addr, vt, base=None):
        a(f"v_mov_b32 {v(vt)}, 1")
        a("s_mov_b64 exec, 1")
        a(f"ds_add_u32 {v(vFB if base is None else base)}, {v(vt)} offset:{addr-FL}")
        a("s_mov_b64 exec, -1")

    def srd(r, p, nbytes):
        a(f"s_mov_b32 {s(r)}, {s(p)}")
        a(f"s_and_b32 {s(r+1)}, {s(p+1)}, 0xffff")
        a(f"s_mov_b32 {s(r+2)}, {nbytes}")
        a(f"s_mov_b32 {s(r+3)}, 0x20000")

    def poll(vaddr, vt, lab, n=1, tag=sTAG, limit=0x100000, slp=2):
        a(f"s_mov_b32 {s(T0)}, 0")
        a(f"{lab}:")
        for i in range(n):
            a(f"global_load_dword {v(vt+i)}, {v(vaddr+i)}, {s(pWS,2)} sc1")
        a(f"s_add_u32 {s(T0)}, {s(T0)}, 1")
        a("s_waitcnt vmcnt(0)")
        if n == 1:
            a(f"v_cmp_ne_u32 vcc, {s(tag)}, {v(vt)}")
        else:
            for i in range(n):
                a(f"v_xor_b32 {v(vt+i)}, {s(tag)}, {v(vt+i)}")
            for i in range(1, n):
                a(f"v_or_b32 {v(vt)}, {v(vt)}, {v(vt+i)}")
            a(f"v_cmp_ne_u32 vcc, 0, {v(vt)}")
        a(f"s_cmp_gt_u32 {s(T0)}, {limit}")
        a(f"s_cbranch_scc1 {lab}_d")
        a(f"s_cbranch_vccnz {lab}_s")
        stubs.append((lab, slp))
        a(f"{lab}_d:")

    def mkloc():
        a(f"s_getreg_b32 {s(sTL)}, hwreg(HW_REG_XCC_ID, 0, 4)")
        a(f"s_add_u32 {s(sTL)}, {s(sTL)}, 1")
        a(f"s_mul_i32 {s(sTL)}, {s(sTL)}, 0x01010101")
        a(f"s_xor_b32 {s(sTL)}, {s(sTL)}, {s(sTAG)}")

    def dflag(addr):
        a(f"s_mov_b32 m0, {addr}" if isinstance(addr, int) else addr)
        a("s_mov_b64 exec, 1")
        a(f"global_load_lds_dword {v(vZ)}, {s(sPC,2)}")
        a("s_mov_b64 exec, -1")

    def gettag(vt):
        a(f"ds_read_b32 {v(vt)}, {v(vFB)} offset:{F_TAG-FL}")
        a("s_waitcnt lgkmcnt(0)")
        a(f"v_readfirstlane_b32 {s(sTAG)}, {v(vt)}")

    def channels():
        a(f"s_lshr_b32 {s(sJ)}, s2, 3")
        a(f"s_lshl_b32 {s(H0)}, {s(sXCD)}, 3")
        a(f"s_add_u32 {s(H0)}, {s(H0)}, {s(sG)}")
        a(f"s_and_b32 {s(sJJ)}, {s(sJ)}, 3")
        a(f"s_mul_i32 {s(H0)}, {s(H0)}, 9")
        a(f"s_lshl_b32 {s(sCH0)}, {s(sJJ)}, 1")
        a(f"s_add_u32 {s(sCH0)}, {s(sCH0)}, {s(H0)}")
        a(f"s_add_u32 {s(sCHS)}, {s(H0)}, 8")
        a(f"s_sub_u32 {s(sS)}, {s(sWV)}, 4")

    def chunk_dma(i, extra=None):
        a(f"s_add_u32 {s(T0+1)}, {s(sXCD)}, {i}")
        a(f"s_and_b32 {s(T0+1)}, {s(T0+1)}, 7")
        a(f"s_mul_i32 {s(T0+1)}, {s(T0+1)}, {CH_SZ}")
        a(f"s_add_u32 {s(T0+1)}, {s(T0+1)}, {WS_KV if extra is None else s(extra)}")
        a(f"s_add_u32 {s(T0+2)}, {s(pWS)}, {s(T0+1)}")
        a(f"s_addc_u32 {s(T0+3)}, {s(pWS+1)}, 0")
        base = SLOT0 + CH_SZ * SLOTSEQ[i]
        a(f"s_mov_b32 m0, {base}")
        lab = a.label("Lch")
        a(f"{lab}:")
        for j in range(3):
            a(f"global_load_lds_dwordx4 {v(vL16)}, {s(T0+2,2)} offset:{1024*j} sc1")
        a(f"s_add_u32 {s(T0+2)}, {s(T0+2)}, 3072")
        a(f"s_addc_u32 {s(T0+3)}, {s(T0+3)}, 0")
        a(f"s_add_u32 m0, m0, 3072")
        a(f"s_cmp_lt_u32 m0, {base + 18432}")
        a(f"s_cbranch_scc1 {lab}")
        a("s_mov_b32 exec_hi, 0")
        a(f"global_load_lds_dwordx4 {v(vL16)}, {s(T0+2,2)} sc1")
        dflag(F_RDY + 4 * i)
        if i == 7:
            dflag(F_RDY + 32)

    XA, XB, ACC, ST = 16, 88, 160, 180
    vW0, vW1, vWX = 212, 214, 216
    vK, vV, vKl, vVl, vFl, vCo, vCv, vFa, vQa, vQx, vQw, vQw2, vQf = range(217, 230)
    vOm, vOx, vOf = 230, 231, 232
    vPA = 234
    ZZ = 246
    SX, SY, OA, OB = 16, 48, 80, 96
    QA, QB, QX0, QX1 = 112, 116, 120, 122
    KF, V0F, V1F, KXF = 124, 132, 140, 148
    IDX = 233
    vL16, vYS, vF4, vWOp, vB0, vBS, vEW, vES, vER, vESR, vYA, vPF, vOL, vTW = 252, 251, 250, 244, 243, 242, 241, 240, 239, 238, 237, 236, 235, 234
    AO, AS = 226, 230
    vPR = 2
    YP = 196

    def cons(n):
        return F_RDY + 4 + 4 * n

    def h_setup():
        blocks = []
        save = a.L
        a.L = []

        def cut():
            blocks.append(a.L)
            a.L = []
        t = 200
        a(f"v_lshlrev_b32 {v(vL16)}, 4, {v(vL)}")
        a(f"v_and_b32 {v(t)}, 3, {v(vL)}")
        a(f"v_lshl_add_u32 {v(vF4)}, {v(t)}, 2, {v(vFB)}")
        a(f"v_and_b32 {v(t+2)}, 1, {v(vL)}")
        a(f"v_bfe_u32 {v(t+3)}, {v(vL)}, 1, 3")
        a(f"v_lshlrev_b32 {v(t+3)}, 4, {v(t+3)}")
        a(f"v_lshl_add_u32 {v(t+3)}, {v(t+2)}, 2, {v(t+3)}")
        a(f"s_lshl_b32 {s(H0)}, {s(sQB)}, 7")
        a(f"s_and_b32 {s(H0+1)}, {s(sS)}, 2")
        a(f"s_lshl_b32 {s(H0+1)}, {s(H0+1)}, 2")
        a(f"s_add_u32 {s(H0)}, {s(H0)}, {s(H0+1)}")
        a(f"s_add_u32 {s(H0)}, {s(H0)}, {WS_FO}")
        a(f"v_add_u32 {v(vPF)}, {s(H0)}, {v(t+3)}")
        a(f"v_and_b32 {v(t+4)}, 15, {v(vL)}")
        a(f"v_lshrrev_b32 {v(t+5)}, 4, {v(vL)}")
        a(f"v_add_u32 {v(t+6)}, 1, {v(t+4)}")
        a(f"v_and_b32 {v(t+7)}, 1, {v(t+6)}")
        a(f"v_mul_u32_u24 {v(t+7)}, {CST-2}, {v(t+7)}")
        a(f"v_lshl_add_u32 {v(t+6)}, {v(t+6)}, 1, {v(t+7)}")
        a(f"v_lshl_add_u32 {v(t+6)}, {v(t+5)}, 4, {v(t+6)}")
        a(f"v_lshlrev_b32 {v(t+7)}, 5, {v(t+4)}")
        a(f"v_sub_u32 {v(t+7)}, {UI+480}, {v(t+7)}")
        a(f"v_lshl_add_u32 {v(t+7)}, {v(t+5)}, 4, {v(t+7)}")
        cut()
        a(f"s_lshr_b32 {s(H0)}, {s(sS)}, 1")
        a(f"s_and_b32 {s(H0+1)}, {s(sS)}, 1")
        a(f"s_lshl_b32 {s(H0+1)}, {s(H0+1)}, 8")
        a(f"s_mul_i32 {s(H0+2)}, {s(H0)}, {S_SZ}")
        a(f"s_add_u32 {s(H0+2)}, {s(H0+2)}, {s(H0+1)}")
        a(f"v_add_u32 {v(AO)}, {s(H0+2)}, {v(t+6)}")
        a(f"s_mul_i32 {s(H0+2)}, {s(H0)}, {U_SZ}")
        a(f"s_add_u32 {s(H0+2)}, {s(H0+2)}, {s(H0+1)}")
        a(f"v_add_u32 {v(vB0)}, {s(H0+2)}, {v(t+7)}")
        a(f"s_lshl_b32 {s(H0+1)}, {s(sS)}, 7")
        a(f"s_add_u32 {s(H0+2)}, {s(H0+1)}, {2*S_SZ}")
        a(f"v_add_u32 {v(AS)}, {s(H0+2)}, {v(t+6)}")
        a(f"s_add_u32 {s(H0+2)}, {s(H0+1)}, {2*U_SZ}")
        a(f"v_add_u32 {v(vBS)}, {s(H0+2)}, {v(t+7)}")
        for k in range(1, 4):
            a(f"v_add_u32 {v(AO+k)}, {1024*k}, {v(AO)}")
            a(f"v_add_u32 {v(AS+k)}, {1024*k}, {v(AS)}")
        cut()
        a(f"s_lshl_b32 {s(H0)}, {s(sS)}, 12")
        a(f"s_add_u32 {s(H0+1)}, {s(H0)}, {CB}")
        a(f"v_add_u32 {v(vEW)}, {s(H0+1)}, {v(vL16)}")
        a(f"s_xor_b32 {s(H0+1)}, {s(H0)}, 4096")
        a(f"s_add_u32 {s(H0+1)}, {s(H0+1)}, {CB}")
        a(f"v_add_u32 {v(vER)}, {s(H0+1)}, {v(vL16)}")
        a(f"s_lshl_b32 {s(H0)}, {s(sS)}, 11")
        a(f"s_add_u32 {s(H0)}, {s(H0)}, {CB+16384}")
        a(f"v_add_u32 {v(vES)}, {s(H0)}, {v(vL16)}")
        a(f"s_lshr_b32 {s(H0)}, {s(sS)}, 1")
        a(f"s_and_b32 {s(H0+1)}, {s(sS)}, 1")
        a(f"s_lshl_b32 {s(H0+2)}, {s(H0)}, 10")
        a(f"s_lshl_b32 {s(H0+3)}, {s(H0+1)}, 3")
        a(f"s_add_u32 {s(H0+2)}, {s(H0+2)}, {s(H0+3)}")
        a(f"s_add_u32 {s(H0+2)}, {s(H0+2)}, {CB+16384}")
        a(f"v_add_u32 {v(vESR)}, {s(H0+2)}, {v(vL16)}")
        a(f"v_lshlrev_b32 {v(t+6)}, 5, {v(t+4)}")
        a(f"v_lshl_add_u32 {v(t+6)}, {v(t+5)}, 3, {v(t+6)}")
        a(f"s_lshl_b32 {s(sYB)}, {s(sCH0)}, 12")
        a(f"s_lshl_b32 {s(H0+2)}, {s(sS)}, 11")
        a(f"s_add_u32 {s(sYB)}, {s(sYB)}, {s(H0+2)}")
        a(f"s_add_u32 {s(sYB)}, {s(sYB)}, {WS_YT}")
        a(f"v_add_u32 {v(vYA)}, {s(sYB)}, {v(t+6)}")
        a(f"s_sub_u32 {s(H0+2)}, 7, {s(sJJ)}")
        a(f"s_cmp_eq_u32 {s(H0)}, 0")
        a(f"s_cselect_b32 {s(H0+2)}, {s(sJJ)}, {s(H0+2)}")
        a(f"s_lshl_b32 {s(H0+2)}, {s(H0+2)}, 9")
        a(f"s_lshl_b32 {s(H0+3)}, {s(H0+1)}, 2")
        a(f"s_add_u32 {s(H0+2)}, {s(H0+2)}, {s(H0+3)}")
        a(f"s_lshl_b32 {s(H0+3)}, {s(sCHS)}, 12")
        a(f"s_add_u32 {s(H0+2)}, {s(H0+2)}, {s(H0+3)}")
        a(f"s_add_u32 {s(H0+2)}, {s(H0+2)}, {WS_YT}")
        a(f"v_add_u32 {v(vYS)}, {s(H0+2)}, {v(t+6)}")
        cut()
        a(f"v_lshrrev_b32 {v(t)}, 3, {v(vL)}")
        a(f"v_and_b32 {v(t+1)}, 7, {v(vL)}")
        a(f"v_and_b32 {v(t+2)}, 2, {v(t)}")
        a(f"v_xor_b32 {v(t+2)}, {v(t+1)}, {v(t+2)}")
        a(f"v_lshlrev_b32 {v(t+2)}, 4, {v(t+2)}")
        a(f"s_movk_i32 {s(H0)}, 1152")
        a(f"v_mad_u32_u24 {v(vWOp)}, {v(t)}, {s(H0)}, {v(t+2)}")
        a(f"v_xor_b32 {v(vWOp+1)}, 64, {v(vWOp)}")
        a(f"v_mul_u32_u24 {v(t+3)}, 9, {v(t)}")
        a(f"v_and_b32 {v(t+6)}, 1, {v(t)}")
        a(f"v_lshlrev_b32 {v(t+6)}, 3, {v(t+6)}")
        a(f"v_sub_u32 {v(t+3)}, {v(t+3)}, {v(t+6)}")
        a(f"v_mad_u32_u24 {v(vWOp+2)}, {v(t+3)}, {s(H0)}, {v(t+2)}")
        a(f"v_xor_b32 {v(vWOp+3)}, 64, {v(vWOp+2)}")
        a(f"v_mad_u32_u24 {v(t+3)}, {v(t+5)}, 18, {v(t+4)}")
        a(f"v_mul_u32_u24 {v(vWOp+4)}, 1152, {v(t+3)}")
        a(f"v_mul_u32_u24 {v(t+3)}, 9, {v(t+1)}")
        a(f"v_and_b32 {v(t+6)}, 1, {v(t+1)}")
        a(f"v_lshlrev_b32 {v(t+6)}, 3, {v(t+6)}")
        a(f"v_sub_u32 {v(t+3)}, {v(t+3)}, {v(t+6)}")
        a(f"v_mul_u32_u24 {v(vWOp+5)}, 1152, {v(t+3)}")
        a(f"s_mul_i32 {s(sWOG)}, {s(sS)}, {144*1152}")
        a(f"s_add_u32 {s(sWOG)}, {s(sWOG)}, {s(sG144)}")
        a(f"s_mul_i32 {s(sWOL)}, {s(sS)}, 2304")
        cut()
        a(f"s_lshl_b32 {s(H0)}, {s(sQB)}, 2")
        a(f"s_add_u32 {s(H0)}, {s(H0)}, {s(sS)}")
        a(f"s_mul_i32 {s(sOB)}, {s(H0)}, {16*2304}")
        a(f"s_add_u32 {s(sOB)}, {s(sOB)}, {s(sG144)}")
        a(f"s_mul_i32 {s(H0)}, {s(H0)}, 18432")
        a(f"s_add_u32 {s(H0)}, {s(H0)}, {WS_O+4096}")
        a(f"v_add_u32 {v(vOL)}, {s(H0)}, {v(vL16)}")
        a(f"v_mul_u32_u24 {v(t)}, 160, {v(t+4)}")
        a(f"v_lshl_add_u32 {v(t)}, {v(t+5)}, 3, {v(t)}")
        a(f"s_mul_i32 {s(H0)}, {s(sS)}, 2560")
        a(f"s_add_u32 {s(H0)}, {s(H0)}, {OT}")
        a(f"v_add_u32 {v(vTW)}, {s(H0)}, {v(t)}")
        for i in range(3):
            a(f"v_add_u32 {v(t)}, {64*i}, {v(vL)}")
            a(f"v_mul_u32_u24 {v(t+1)}, 7282, {v(t)}")
            a(f"v_lshrrev_b32 {v(t+1)}, 16, {v(t+1)}")
            a(f"v_add_u32 {v(t+2)}, {v(t)}, {v(t+1)}")
            a(f"v_lshl_add_u32 {v(190+i)}, {v(t+2)}, 4, {s(H0)}")
            a(f"v_mul_u32_u24 {v(t+1)}, 135, {v(t+1)}")
            a(f"v_add_lshl_u32 {v(193+i)}, {v(t)}, {v(t+1)}, 4")
        cut()
        a(f"v_bfe_u32 {v(t)}, {v(vL)}, 2, 2")
        a(f"v_and_b32 {v(t+1)}, 3, {v(vL)}")
        a(f"v_lshrrev_b32 {v(t+2)}, 1, {v(t)}")
        a(f"v_and_b32 {v(t+3)}, 1, {v(t+5)}")
        a(f"v_lshl_or_b32 {v(t+2)}, {v(t+3)}, 1, {v(t+2)}")
        a(f"v_lshl_add_u32 {v(t)}, {v(t+5)}, 3, {v(t)}")
        a(f"v_lshlrev_b32 {v(t+3)}, 7, {v(t)}")
        a(f"v_lshl_add_u32 {v(t+3)}, {v(t+1)}, 3, {v(t+3)}")
        a(f"v_and_b32 {v(t+1)}, 1, {v(t+1)}")
        a(f"v_lshlrev_b32 {v(t+1)}, 3, {v(t+1)}")
        a(f"v_lshl_add_u32 {v(t)}, {v(t)}, 4, {v(t+1)}")
        a(f"v_add_u32 v189, {WO_X}, {v(t)}")
        for ct in range(4):
            a(f"v_xor_b32 {v(t)}, {ct}, {v(t+2)}")
            a(f"v_lshl_add_u32 {v(181+ct)}, {v(t)}, 5, {v(t+3)}")
            a(f"v_add_u32 {v(185+ct)}, {9*4096}, {v(181+ct)}")
        cut()
        a.L = save
        return blocks

    kname = NAME + "_kernel"
    a(f"{kname}:")
    if stamps:
        a("v_mov_b32 v255, 0")
    if fast is not None:
        for k in range(1, len(fast)):
            a(f"s_mov_b32 {s(84+2*k)}, 0")
    stamp(0)
    a("s_cmp_ge_u32 s2, 256")
    a("s_cbranch_scc1 L_exit")
    a("s_load_dwordx16 s[16:31], s[0:1], 0")
    a("s_load_dwordx16 s[32:47], s[0:1], 64")
    a("s_load_dwordx2 s[48:49], s[0:1], 128")
    a(f"s_getpc_b64 {s(sPC,2)}")
    a(f"v_lshrrev_b32 v2, 6, v0")
    a(f"v_and_b32 {v(vL)}, 63, v0")
    a(f"v_readfirstlane_b32 {s(sWV)}, v2")
    a(f"v_mov_b32 {v(vZ)}, 0")
    a(f"v_mov_b32 {v(vFB)}, {FL}")
    a(f"s_and_b32 {s(sXCD)}, s2, 7")
    a(f"s_bfe_u32 {s(T0+2)}, s2, 0x20003")
    a(f"s_lshl_b32 {s(sQB)}, {s(sXCD)}, 2")
    a(f"s_add_u32 {s(sQB)}, {s(sQB)}, {s(T0+2)}")
    a(f"s_lshr_b32 {s(sG)}, s2, 5")
    a(f"s_lshr_b32 {s(sPW)}, s2, 6")
    a(f"s_mul_i32 {s(sG144)}, {s(sG)}, 144")
    a(f"s_and_b32 {s(T0+3)}, {s(sG)}, 1")
    a(f"s_lshl_b32 {s(sROT)}, {s(T0+2)}, 1")
    a(f"s_add_u32 {s(sROT)}, {s(sROT)}, {s(T0+3)}")
    a(f"s_sub_u32 {s(T0)}, {s(sWV)}, 4")
    a(f"s_cmp_lt_u32 {s(T0)}, 3")
    a("s_cbranch_scc1 L_h0")
    a(f"v_lshrrev_b32 v2, 3, {v(vL)}")
    a(f"v_xor_b32 v2, v2, {v(vL)}")
    a(f"s_mul_i32 {s(T0)}, {s(sQB)}, 73728")
    a(f"v_lshl_add_u32 v15, v2, 4, {s(T0)}")
    a(f"s_mul_i32 {s(T0+1)}, {s(sPW)}, 18432")
    a(f"s_cmp_eq_u32 {s(sWV)}, 7")
    a("s_cbranch_scc1 L_loader")
    a(f"s_cmp_lg_u32 {s(sWV)}, {s(sPW)}")
    a("s_cbranch_scc1 L_np0")
    a(f"s_mul_i32 {s(T0+3)}, {s(T0+3)}, 9216")
    a(f"s_add_u32 m0, {s(T0+1)}, {s(T0+3)}")
    a("v_add_u32 v15, m0, v15")
    a("s_waitcnt lgkmcnt(0)")
    for j in range(9):
        a(f"global_load_lds_dwordx4 v15, {s(pX,2)} offset:{1024*(j%3)}")
        if j in (2, 5):
            a("s_add_u32 m0, m0, 3072")
            a("v_add_u32 v15, 3072, v15")
    a("s_branch L_a1")
    a("L_np0:")
    a(f"s_xor_b32 {s(T0)}, {s(sWV)}, {s(sPW)}")
    if opts.get("mall", 1):
        a(f"s_cmp_lg_u32 {s(T0)}, 2")
        a("s_cbranch_scc1 L_np1")
        a(f"s_mul_i32 {s(T0+3)}, s2, 2592")
        a(f"v_min_u32 v2, 20, {v(vL)}")
        a(f"v_lshl_add_u32 v2, v2, 7, {s(T0+3)}")
        a(f"v_min_u32 v2, {576*1152-4}, v2")
        a("s_waitcnt lgkmcnt(0)")
        a(f"global_load_dword v251, v2, {s(pWQ,2)}")
        a("L_np1:")
    a(f"s_cmp_lg_u32 {s(T0)}, 1")
    a("s_cbranch_scc1 L_a1")
    a(f"s_bfe_u32 {s(T0+3)}, s2, 0x40003")
    a(f"s_lshl_b32 {s(T0+3)}, {s(T0+3)}, 11")
    a(f"v_and_b32 v2, 15, {v(vL)}")
    a(f"v_lshl_add_u32 v2, v2, 7, {s(T0+3)}")
    a(f"v_min_u32 v2, CODE_END_OFF, v2")
    a(f"global_load_dword v252, v2, {s(sPC,2)}")
    a(f"v_lshl_add_u32 v2, {v(vL)}, 2, {v(vFB)}")
    a(f"ds_write_b32 v2, {v(vZ)}")
    a(f"s_lshr_b32 {s(T0+3)}, s2, 3")
    a(f"s_mul_i32 {s(T0+3)}, {s(T0+3)}, 640")
    a(f"v_min_u32 v2, 4, {v(vL)}")
    a(f"v_lshl_add_u32 v2, v2, 7, {s(T0+3)}")
    a(f"v_min_u32 v2, {CH_SZ-128}, v2")
    a(f"s_mul_i32 {s(T0+3)}, {s(sXCD)}, {CH_SZ}")
    a(f"s_add_u32 {s(T0+3)}, {s(T0+3)}, {WS_KV+KVL}")
    a(f"v_add_u32 v2, {s(T0+3)}, v2")
    a("s_waitcnt lgkmcnt(0)")
    a(f"global_load_dword v251, v2, {s(pWS,2)} sc1")
    a("s_branch L_a1")
    a("L_h0:")
    channels()
    a(f"s_add_u32 {s(T0+1)}, {s(sCH0)}, {s(T0)}")
    a(f"s_cmp_eq_u32 {s(T0)}, 2")
    a(f"s_cselect_b32 {s(T0+1)}, {s(sCHS)}, {s(T0+1)}")
    a(f"s_lshl_b32 {s(T0+2)}, {s(T0+1)}, 8")
    a(f"v_lshl_add_u32 v3, {v(vL)}, 2, {s(T0+2)}")
    a(f"s_lshl_b32 {s(T0+2)}, {s(T0+1)}, 1")
    a(f"v_mov_b32 v11, {s(T0+2)}")
    a("s_waitcnt lgkmcnt(0)")
    PR = 4
    a(f"global_load_ushort v10, v11, {s(pLDT,2)}")
    a(f"global_load_ushort v11, v11, {s(pDSK,2)}")
    for i, p in enumerate((pARE, pAIM, pBRE, pBIM, pCRE, pCIM)):
        a(f"global_load_dword v{PR+i}, v3, {s(p,2)}")
    a("s_barrier")
    a("s_branch L_kgen")

    a("L_loader:")
    a("s_setprio 3")
    for i in range(3):
        a(f"v_add_u32 v2, {64*i}, {v(vL)}")
        a("v_mul_u32_u24 v4, 21846, v2")
        a("v_lshrrev_b32 v4, 16, v4")
        a("v_mul_u32_u24 v5, 3, v4")
        a("v_sub_u32 v5, v2, v5")
        a("v_lshlrev_b32 v5, 4, v5")
        a("v_min_u32 v5, 20, v5")
        a(f"v_mad_u32_u24 v{6+i}, v4, 36, v5")
    a(f"s_lshl_b32 {s(T0+2)}, {s(sXCD)}, 7")
    a(f"s_add_u32 {s(T0+2)}, {s(T0+2)}, {WS_FL}")
    a(f"v_and_b32 v12, 31, {v(vL)}")
    a(f"v_lshl_add_u32 v13, v12, 2, {s(T0+2)}")
    a(f"s_mul_i32 {s(T0+5)}, {s(sROT)}, 2304")
    a(f"s_cmp_eq_u32 {s(T0+3)}, 1")
    a("s_waitcnt lgkmcnt(0)")
    a(f"s_cselect_b32 {s(SRA)}, {s(pWV)}, {s(pWK)}")
    a(f"s_cselect_b32 {s(SRA+1)}, {s(pWV+1)}, {s(pWK+1)}")
    a(f"s_and_b32 {s(SRA+1)}, {s(SRA+1)}, 0xffff")
    a(f"s_mov_b32 {s(SRA+2)}, {576*36}")
    a(f"s_mov_b32 {s(SRA+3)}, 0x20000")
    hb = h_setup()

    def wq_setup():
        srd(SRB, pWQ, 576 * 1152)
        a(f"s_movk_i32 {s(T0)}, 1152")
        for j in range(9):
            a(f"v_add_u32 v2, {64*j}, {v(vL)}")
            a("v_mul_u32_u24 v3, 7282, v2")
            a("v_lshrrev_b32 v3, 16, v3")
            a("v_mul_u32_u24 v4, 9, v3")
            a("v_sub_u32 v2, v2, v4")
            a("v_bfe_u32 v4, v3, 1, 2")
            a("v_and_or_b32 v4, v3, 56, v4")
            a("v_and_b32 v3, 1, v3")
            a("v_lshl_or_b32 v4, v3, 2, v4")
            a("v_lshlrev_b32 v2, 4, v2")
            a(f"v_mad_u32_u24 v{24+j}, v4, {s(T0)}, v2")
        a(f"s_mul_i32 {s(T0+8)}, {s(sROT)}, 73728")
        a(f"s_add_u32 {s(T0+8)}, {s(T0+8)}, {s(sG144)}")
        a(f"s_add_u32 {s(T0+6)}, {s(sG144)}, {9*73728}")

    def wq_group(i):
        for k in range(9):
            a(f"s_mov_b32 m0, {XW + 9216*(8-i) + 1024*k}")
            a("s_nop 0")
            a(f"buffer_load_dwordx4 v{24+k}, {s(SRB,4)}, {s(T0+8)} offen lds")
        dflag(F_WQ + 4 * i)
        a(f"s_add_u32 {s(T0+8)}, {s(T0+8)}, 73728")
        a(f"s_cmp_eq_u32 {s(T0+8)}, {s(T0+6)}")
        a(f"s_cselect_b32 {s(T0+8)}, {s(sG144)}, {s(T0+8)}")

    a(f"global_load_dword v16, v13, {s(pWS,2)} sc1")
    a("s_barrier")
    G0 = 0
    a(f"s_mov_b32 m0, {WK}")
    a("s_nop 0")
    a("L_wkl:")
    for j in range(3):
        a(f"buffer_load_dwordx4 v{6+j}, {s(SRA,4)}, {s(T0+5)} offen lds")
        a("s_add_u32 m0, m0, 1024")
        if j < 2:
            a("s_nop 0")
    a(f"s_add_u32 {s(T0+5)}, {s(T0+5)}, 2304")
    a(f"s_cmp_eq_u32 {s(T0+5)}, {9*2304}")
    a(f"s_cselect_b32 {s(T0+5)}, 0, {s(T0+5)}")
    a(f"s_cmp_lt_u32 m0, {WK+27648}")
    a("s_cbranch_scc1 L_wkl")
    a(f"s_xor_b32 {s(T0+3)}, {s(T0+3)}, 1")
    a(f"s_mul_i32 {s(T0+3)}, {s(T0+3)}, 9216")
    a(f"s_add_u32 m0, {s(T0+1)}, {s(T0+3)}")
    a("v_add_u32 v14, m0, v15")
    for j in range(9):
        a(f"global_load_lds_dwordx4 v14, {s(pX,2)} offset:{1024*(j%3)}")
        if j in (2, 5):
            a("s_add_u32 m0, m0, 3072")
            a("v_add_u32 v14, 3072, v14")
    dflag(F_B1)
    stamp(12)
    wq_setup()
    NPRE = max(G0, opts.get("npre", 0))
    for i in range(G0, NPRE):
        wq_group(i)
    a(f"s_mov_b32 {s(T0+7)}, 3")
    a("L_xo:")
    a(f"s_add_u32 {s(T0+1)}, {s(T0+1)}, 18432")
    a(f"s_cmp_eq_u32 {s(T0+1)}, 73728")
    a(f"s_cselect_b32 {s(T0+1)}, 0, {s(T0+1)}")
    a(f"s_mov_b32 m0, {s(T0+1)}")
    a(f"v_add_u32 v14, {s(T0+1)}, v15")
    for j in range(18):
        a(f"global_load_lds_dwordx4 v14, {s(pX,2)} offset:{1024*(j%4)}")
        if j % 4 == 3:
            a("s_add_u32 m0, m0, 4096")
            a("v_add_u32 v14, 4096, v14")
    a(f"s_sub_u32 {s(T0+7)}, {s(T0+7)}, 1")
    a(f"s_cmp_lg_u32 {s(T0+7)}, 0")
    a("s_cbranch_scc1 L_xo")
    dflag(F_XO)
    stamp(13)
    for i in range(NPRE, 2):
        wq_group(i)
    stamp(33)
    channels()

    for i in range(2, 9):
        if i == 6:
            lds_wait(F_XC, 4, 2, 0)
            gettag(2)
            mkloc()
        wq_group(i)
        stamp(32 + i)
        if i - 2 < len(hb):
            a.L += hb[i - 2]
    stamp(29)
    poll(13, 16, "L_pk0", tag=sTL, limit=opts.get("ltry", 24), slp=1)
    a(f"s_mov_b32 {s(T0+4)}, {WS_KV+KVL}")
    a("s_cbranch_vccnz L_pkg")
    dflag(F_LOC)
    a("L_pkd:")
    stamp(5)
    chunk_dma(0, T0 + 4)
    a(f"v_lshrrev_b32 v16, 5, {v(vL)}")
    a(f"v_add3_u32 v16, v16, {s(sXCD)}, 1")
    for i in range(4):
        a(f"v_add_u32 v17, {2*i}, v16")
        a("v_and_b32 v17, 7, v17")
        a("v_lshl_add_u32 v17, v17, 5, v12")
        a("v_lshlrev_b32 v17, 7, v17")
        a(f"v_add_u32 v{20+i}, {WS_FKV}, v17")
    poll(20, 40, "L_pk1")
    stamp(15)
    lds_wait(F_QD, 4, 2)
    stamp(16)
    chunk_dma(1)
    chunk_dma(2)
    poll(21, 40, "L_pk2", n=3)
    for i in range(3, 6):
        chunk_dma(i)
    lds_wait(F_CONS, cons(1), 2, 8, base=vF4)
    chunk_dma(6)
    stamp(17)
    a("s_branch L_ssm")
    a("L_pkg:")
    a(f"s_lshl_b32 {s(T0)}, {s(sXCD)}, 12")
    a(f"s_add_u32 {s(T0)}, {s(T0)}, {WS_FKV}")
    a(f"v_lshl_add_u32 v13, v12, 7, {s(T0)}")
    poll(13, 16, "L_pk0g")
    a(f"s_mov_b32 {s(T0+4)}, {WS_KV}")
    a("s_branch L_pkd")
    flush_stubs()

    a("L_a1:")
    a("s_waitcnt lgkmcnt(0)")
    a("s_barrier")
    stamp(12)
    a("s_setprio 2")
    a(f"s_cmp_lg_u32 {s(sPW)}, {s(sWV)}")
    a("s_cbranch_scc1 L_a2")
    a(f"s_load_dword {s(sTAG)}, {s(pWS,2)}, 0")
    dflag(F_B0)
    a("L_a2:")
    XAD = ST
    a(f"v_and_b32 v2, 15, {v(vL)}")
    a(f"v_lshrrev_b32 v3, 4, {v(vL)}")
    a(f"s_mul_i32 {s(T0+1)}, {s(sWV)}, 18432")
    a(f"s_movk_i32 {s(T0)}, 1152")
    a(f"v_mov_b32 v4, {s(T0+1)}")
    a(f"v_mad_u32_u24 v4, v2, {s(T0)}, v4")
    a(f"s_mov_b32 {s(T0+2)}, {s(sROT)}")
    for j in range(9):
        a(f"v_add_u32 v5, {s(T0+2)}, v2")
        a("v_and_b32 v5, 7, v5")
        a("v_xor_b32 v5, v5, v3")
        a(f"s_lshl_b32 {s(T0+3)}, {s(T0+2)}, 7")
        a(f"v_lshl_add_u32 v5, v5, 4, v4")
        a(f"v_add_u32 {v(XAD+2*j)}, {s(T0+3)}, v5")
        a(f"v_xor_b32 {v(XAD+2*j+1)}, 64, {v(XAD+2*j)}")
        if j < 8:
            a(f"s_add_u32 {s(T0+2)}, {s(T0+2)}, 1")
            a(f"s_cmp_eq_u32 {s(T0+2)}, 9")
            a(f"s_cselect_b32 {s(T0+2)}, 0, {s(T0+2)}")
    a(f"v_bfe_u32 v6, {v(vL)}, 2, 2")
    a(f"v_and_b32 v7, 3, {v(vL)}")
    a("v_lshl_add_u32 v8, v3, 2, v6")
    a("v_lshl_add_u32 v6, v3, 3, v6")
    a("v_mul_u32_u24 v9, 288, v8")
    a("v_lshl_add_u32 v9, v7, 3, v9")
    a(f"s_and_b32 {s(T0+4)}, {s(sWV)}, 1")
    a(f"s_lshl_b32 {s(T0+2)}, {s(T0+4)}, 6")
    a(f"s_add_u32 {s(T0+2)}, {s(T0+2)}, {XW}")
    a(f"v_add_u32 {v(vW0)}, {s(T0+2)}, v9")
    a(f"v_add_u32 {v(vW0+1)}, {XW+128}, v9")
    a(f"v_add_u32 {v(vW1)}, {5*9216}, {v(vW0)}")
    a(f"v_add_u32 {v(vW1+1)}, {5*9216}, {v(vW0+1)}")
    a(f"v_mul_u32_u24 v4, {QST}, v2")
    a("v_lshl_add_u32 v4, v3, 3, v4")
    a(f"s_mul_i32 {s(T0)}, {s(sWV)}, {16*QST}")
    a(f"s_add_u32 {s(T0)}, {s(T0)}, {QI}")
    a(f"v_add_u32 {v(vQw2)}, {s(T0)}, v4")
    a(f"s_lshl_b32 {s(T0+2)}, {s(T0+4)}, 6")
    a(f"s_and_b32 {s(T0+3)}, {s(sWV)}, 2")
    a(f"s_mul_i32 {s(T0)}, {s(T0+3)}, {16*QST}")
    a(f"s_add_u32 {s(T0)}, {s(T0)}, {QI}")
    a(f"s_add_u32 {s(T0+2)}, {s(T0+2)}, {s(T0)}")
    a(f"v_add_u32 {v(vQw)}, {s(T0+2)}, v4")
    a(f"v_and_b32 v11, 31, {v(vL)}")
    a(f"v_lshrrev_b32 v12, 5, {v(vL)}")
    a(f"v_mul_u32_u24 v4, {QST}, v11")
    a(f"s_mul_i32 {s(T0+2)}, {s(T0+4)}, 72")
    a(f"s_add_u32 {s(T0)}, {s(T0)}, {s(T0+2)}")
    a(f"v_add_u32 v4, {s(T0)}, v4")
    a(f"v_mad_u32_u24 {v(vQx)}, v12, 36, v4")
    a(f"v_lshl_add_u32 {v(vQa)}, v12, 4, v4")
    a(f"s_lshl_b32 {s(T0+2)}, {s(T0+3)}, 1")
    a(f"v_add_u32 {v(vQf)}, {s(T0+2)}, {v(vFB)}")
    a(f"v_lshlrev_b32 {v(vKl)}, 4, {v(vL)}")
    a("v_and_b32 v4, 19, v11")
    a("v_bfe_u32 v5, v11, 2, 1")
    a("v_lshl_or_b32 v4, v5, 3, v4")
    a("v_bfe_u32 v5, v11, 3, 1")
    a("v_lshl_or_b32 v4, v5, 2, v4")
    a("v_mad_u32_u24 v4, v12, 18, v4")
    a("v_and_b32 v5, 27, v11")
    a("v_cmp_eq_u32 vcc, 18, v5")
    a("v_mov_b32 v13, 36")
    a(f"v_mov_b32 {v(IDX)}, 0xdddd")
    a("v_cndmask_b32 v5, 37, v13, vcc")
    a("v_cmp_gt_u32 vcc, 18, v11")
    a(f"v_mov_b32 {v(ZZ)}, 0")
    a(f"v_mov_b32 {v(ZZ+1)}, 0")
    a("v_cndmask_b32 v4, v5, v4, vcc")
    a(f"v_lshlrev_b32 {v(vVl)}, 4, v4")
    a(f"v_add_u32 {v(vVl)}, 1024, {v(vVl)}")
    b0 = SLOT0 + CH_SZ * SLOTSEQ[0]
    a(f"v_add_u32 {v(vK)}, {b0}, {v(vKl)}")
    a(f"v_add_u32 {v(vV)}, {b0}, {v(vVl)}")
    a(f"v_mov_b32 {v(vFa)}, {F_RDY + 4}")
    a(f"s_lshl_b32 {s(T0)}, {s(sWV)}, 2")
    a(f"v_add_u32 {v(vCo)}, {s(T0)}, {v(vFB)}")
    seq = 0
    for i, k in enumerate(SLOTSEQ[1:] + [SLOTSEQ[-1]]):
        seq |= k << (4 * i)
    a(f"s_mov_b32 {s(sSEQ)}, {hex(seq)}")
    a(f"s_mov_b32 {s(sI)}, 0")
    a("v_and_b32 v4, 1, v3")
    a(f"s_movk_i32 {s(T0)}, {72*256}")
    a("v_lshlrev_b32 v5, 4, v2")
    a(f"v_mad_u32_u24 v4, v4, {s(T0)}, v5")
    a(f"s_lshl_b32 {s(T0)}, {s(sQB)}, 2")
    a(f"s_add_u32 {s(T0)}, {s(T0)}, {s(T0+3)}")
    a(f"s_mul_i32 {s(T0)}, {s(T0)}, {72*256}")
    a(f"s_mul_i32 {s(T0+2)}, {s(sG)}, {9*256}")
    a(f"s_add_u32 {s(T0)}, {s(T0)}, {s(T0+2)}")
    a(f"s_add_u32 {s(T0)}, {s(T0)}, {WS_O}")
    a(f"s_lshl_b32 {s(T0+2)}, {s(T0+4)}, 3")
    a(f"s_add_u32 {s(T0+2)}, {s(T0+2)}, {s(T0)}")
    a(f"v_add_u32 {v(vOx)}, {s(T0+2)}, v4")
    a(f"s_lshl_b32 {s(T0+2)}, {s(T0+4)}, 10")
    a(f"s_add_u32 {s(T0+2)}, {s(T0+2)}, {s(T0)}")
    a("v_lshl_add_u32 v4, v12, 8, v4")
    a(f"v_add_u32 {v(vOm)}, {s(T0+2)}, v4")
    a(f"s_lshl_b32 {s(T0+5)}, {s(sQB)}, 3")
    a(f"s_add_u32 {s(T0+5)}, {s(T0+5)}, {s(sG)}")
    a(f"s_lshl_b32 {s(T0)}, {s(T0+5)}, 2")
    a(f"s_add_u32 {s(T0)}, {s(T0)}, {s(sWV)}")
    a(f"s_lshl_b32 {s(T0)}, {s(T0)}, 2")
    a(f"s_add_u32 {s(T0)}, {s(T0)}, {WS_FO}")
    a(f"v_mov_b32 {v(vOf)}, {s(T0)}")
    a(f"s_lshl_b32 {s(T0)}, {s(T0+5)}, 7")
    a(f"s_add_u32 {s(T0)}, {s(T0)}, {WS_FKV}")
    a(f"v_mov_b32 {v(vPA+4)}, {s(T0)}")
    a(f"s_mul_i32 {s(T0+8)}, {s(T0+4)}, {-2*18432}")
    a(f"s_add_u32 {s(T0+8)}, {s(T0+8)}, 18432")
    a(f"s_cmp_lg_u32 {s(sPW)}, {s(sWV)}")
    a("s_cbranch_scc1 L_np")

    def xread(dst):
        for st_ in range(18):
            a(f"ds_read_b128 {v(dst+4*st_,4)}, {v(XAD+st_)}")

    def xmove():
        for st_ in range(18):
            a(f"v_add_u32 {v(XAD+st_)}, {s(T0+8)}, {v(XAD+st_)}")

    pK, pKX, pV, pC, pFG, pTG, pFL, pTL, pW0, pW1 = range(vPA, vPA + 10)
    a("s_setprio 3")
    a("v_mul_u32_u24 v5, 48, v6")
    a(f"v_add_u32 v5, {WK}, v5")
    a(f"v_lshl_add_u32 {v(pW0)}, v7, 3, v5")
    a(f"v_add_u32 {v(pW1)}, 40, v5")
    a(f"s_mul_i32 {s(T0+1)}, {s(sXCD)}, {CH_SZ}")
    a(f"s_add_u32 {s(T0+1)}, {s(T0+1)}, {WS_KV}")
    a(f"s_and_b32 {s(T0+2)}, {s(sQB)}, 3")
    a(f"s_lshl_b32 {s(T0+3)}, {s(T0+2)}, 1")
    a(f"s_lshr_b32 {s(T0)}, {s(sWV)}, 1")
    a(f"s_add_u32 {s(T0+3)}, {s(T0+3)}, {s(T0)}")
    a(f"s_mul_i32 {s(T0+3)}, {s(T0+3)}, 2240")
    a(f"s_add_u32 {s(T0+3)}, {s(T0+3)}, {s(T0+1)}")
    a("v_and_b32 v13, 1, v3")
    a("v_lshlrev_b32 v13, 3, v13")
    a("v_lshl_add_u32 v13, v2, 4, v13")
    a("v_lshl_add_u32 v4, v12, 9, v13")
    a(f"s_lshl_b32 {s(T0)}, {s(T0+4)}, 8")
    a(f"s_add_u32 {s(T0)}, {s(T0)}, {s(T0+3)}")
    a(f"v_add_u32 {v(pK)}, {s(T0)}, v4")
    a(f"s_lshl_b32 {s(T0+2)}, {s(T0+2)}, 2")
    a(f"s_lshl_b32 {s(T0)}, {s(sWV)}, 8")
    a(f"s_add_u32 {s(T0+2)}, {s(T0+2)}, {s(T0)}")
    a(f"s_add_u32 {s(T0+2)}, {s(T0+2)}, {s(T0+1)}")
    a(f"s_add_u32 {s(T0+2)}, {s(T0+2)}, 17920")
    a(f"v_lshl_add_u32 {v(pKX)}, v2, 4, {s(T0+2)}")
    a(f"s_movk_i32 {s(T0)}, 288")
    a(f"v_mad_u32_u24 v4, v12, {s(T0)}, v13")
    a(f"s_mul_i32 {s(T0)}, {s(T0+4)}, 608")
    a(f"s_add_u32 {s(T0+3)}, {s(T0+3)}, {s(T0)}")
    a(f"s_add_u32 {s(T0+3)}, {s(T0+3)}, 1024")
    a(f"v_add_u32 {v(pV)}, {s(T0+3)}, v4")
    a("v_cmp_eq_u32 vcc, 4, v2")
    a("v_mov_b32 v4, 0x3f803f80")
    a(f"v_cndmask_b32 {v(pC)}, 0, v4, vcc")
    a("s_waitcnt lgkmcnt(0)")
    a(f"s_mul_i32 {s(sTAG)}, {s(sTAG)}, 0x9E3779B1")
    a(f"s_add_u32 {s(sTAG)}, {s(sTAG)}, 0x632BE5AB")
    a(f"v_mov_b32 {v(pTG)}, {s(sTAG)}")
    a(f"ds_write_b32 {v(vFB)}, {v(pTG)} offset:{F_TAG-FL}")
    mkloc()
    a(f"s_lshl_b32 {s(T0)}, {s(T0+5)}, 2")
    a(f"s_add_u32 {s(T0)}, {s(T0)}, {WS_FL}")
    a(f"v_mov_b32 {v(pFL)}, {s(T0)}")
    a(f"v_mov_b32 {v(pTL)}, {s(sTL)}")
    a(f"s_add_u32 {s(T0+6)}, {s(pWS)}, {KVL}")
    a(f"s_addc_u32 {s(T0+7)}, {s(pWS+1)}, 0")
    a("s_waitcnt vmcnt(0)")
    stamp(13)
    lds_wait(F_B1, 1, 8, 0)
    stamp(14)
    xread(XA)
    a("v_cmp_le_u32 vcc, 4, v2")
    a(f"s_bitcmp1_b32 {s(sG)}, 0")
    a("s_cbranch_scc1 L_pv")

    def kvproj(isV):
        NR, PRE, KS = 8, 7, XB

        def rd(f):
            st_, tl = divmod(f, 2)
            b = KS + 4 * (f % NR)
            o = 48 * 32 * st_
            a(f"ds_read_b64_tr_b16 {v(b,2)}, {v(pW0+tl)} offset:{o}")
            a(f"ds_read_b64_tr_b16 {v(b+2,2)}, {v(pW0+tl)} offset:{o+192}")
        for f in range(PRE):
            rd(f)
        for f in range(36):
            st_, tl = divmod(f, 2)
            if f % 2 == 0:
                a(f"s_waitcnt lgkmcnt({2*(min(36, f+PRE) - min(36, f+2))})")
            w_, x_ = v(KS + 4 * (f % NR), 4), v(XA + 4 * st_, 4)
            A_, B_ = (x_, w_) if isV else (w_, x_)
            a(f"v_mfma_f32_16x16x32_bf16 {v(ACC+4*tl,4)}, {A_}, {B_}, {'0' if st_ == 0 else v(ACC+4*tl,4)}")
            if f + PRE < 36:
                rd(f + PRE)
        a(f"ds_write_b32 {v(vFB)}, {v(vFB)} offset:{F_KVD-FL}")

    kvproj(False)
    a(f"s_mov_b32 {s(T0)}, {f32(QSCALE)}")
    a(f"s_mov_b32 {s(T0+1)}, {f32(QSCALE)}")
    xmove()
    a(f"v_pk_mul_f32 {v(ACC,2)}, {v(ACC,2)}, {s(T0,2)}")
    a(f"v_pk_mul_f32 {v(ACC+2,2)}, {v(ACC+2,2)}, {s(T0,2)}")
    a(f"v_pk_mul_f32 {v(ACC+6,2)}, {v(ACC+6,2)}, {s(T0,2)}")
    a(f"v_cvt_pk_bf16_f32 v8, {v(ACC)}, {v(ACC+1)}")
    a(f"v_cvt_pk_bf16_f32 v9, {v(ACC+2)}, {v(ACC+3)}")
    a(f"v_cvt_pk_bf16_f32 v10, {v(ACC+6)}, {v(ACC+7)}")
    a(f"global_store_dwordx2 {v(pK)}, v[8:9], {s(T0+6,2)}")
    a("s_mov_b64 exec, 0xffff")
    a(f"global_store_dword {v(pKX)}, v10, {s(T0+6,2)}")
    LATE = opts.get("late", 0)
    if LATE:
        a(f"s_mov_b64 {s(75,2)}, exec".replace("s[75:76]", "s[72:73]"))
        a("s_mov_b64 exec, -1")
        a(f"v_mov_b32 v11, v10")
        a(f"v_mov_b32 {v(pV)}, {v(pK)}")
    else:
        a(f"global_store_dword {v(pKX)}, v10, {s(pWS,2)} sc1")
        a("s_mov_b64 exec, -1")
        a(f"global_store_dwordx2 {v(pK)}, v[8:9], {s(pWS,2)} sc1")
    a("s_branch L_pub")
    a("L_pv:")
    kvproj(True)
    xmove()
    a(f"v_cvt_pk_bf16_f32 v8, {v(ACC)}, {v(ACC+1)}")
    a(f"v_cvt_pk_bf16_f32 v9, {v(ACC+2)}, {v(ACC+3)}")
    a(f"v_cvt_pk_bf16_f32 v10, {v(ACC+4)}, {v(ACC+5)}")
    a(f"v_cvt_pk_bf16_f32 v11, {v(ACC+6)}, {v(ACC+7)}")
    a(f"global_store_dwordx2 {v(pV)}, v[8:9], {s(T0+6,2)}")
    a(f"v_cndmask_b32 v10, v10, {v(pC)}, vcc")
    a(f"v_cndmask_b32 v11, v11, {v(pC)}, vcc")
    a(f"s_mov_b32 exec_lo, 0x000c000c")
    a(f"s_mov_b32 exec_hi, 0x003c003c")
    a(f"global_store_dwordx2 {v(pV)}, v[10:11], {s(T0+6,2)} offset:224")
    if LATE:
        a("s_mov_b64 s[72:73], exec")
        a("s_mov_b64 exec, -1")
    else:
        a(f"global_store_dwordx2 {v(pV)}, v[10:11], {s(pWS,2)} offset:224 sc1")
        a("s_mov_b64 exec, -1")
        a(f"global_store_dwordx2 {v(pV)}, v[8:9], {s(pWS,2)} sc1")
    a("L_pub:")
    stamp(2)
    lds_wait(F_XO, 1, 4, 1)
    xread(XB)
    lds_add(F_XC, 2)
    a(f"s_waitcnt vmcnt({0 if LATE else 2})")
    a("s_mov_b64 exec, 1")
    a(f"global_store_dword {v(pFL)}, {v(pTL)}, {s(pWS,2)}")
    a("s_mov_b64 exec, -1")
    stamp(15)
    a("s_setprio 2")
    a("s_branch L_xb")
    a("L_np:")
    lds_wait(F_XO, 1, 8, 2)
    stamp(1)
    xread(XA)
    xmove()
    lds_wait(F_B0, 1, 8, 1)
    xread(XB)
    lds_add(F_XC, 2)
    lds_wait(F_KVD, 1, 8, 1)
    gettag(4)
    a("L_xb:")
    stamp(16)

    chk = [{0: 2, 4: 4, 8: 6, 12: 7, 14: 8, 16: 9}, {0: 2, 4: 5, 10: 8, 16: 9}, {0: 3, 6: 6, 12: 9}][opts.get("chk", 0)]
    NQ, PRE = 8, 6

    def qrd(f):
        st_, k = divmod(f, 3)
        if k == 0 and st_ in chk:
            lds_wait(F_WQ + 4 * (chk[st_] - 1), 1, 2, 1)
            if st_ == 16:
                stamp(30)
            if LATE and st_ == LATE:
                a(f"s_cmp_lg_u32 {s(sPW)}, {s(sWV)}")
                a("s_cbranch_scc1 L_nogd")
                a(f"global_store_dwordx2 {v(pV)}, v[8:9], {s(pWS,2)} sc1")
                a("s_mov_b64 exec, s[72:73]")
                a(f"s_bitcmp1_b32 {s(sG)}, 0")
                a("s_cbranch_scc1 L_gdv")
                a(f"global_store_dword {v(pKX)}, v10, {s(pWS,2)} sc1")
                a("s_branch L_gde")
                a("L_gdv:")
                a(f"global_store_dwordx2 {v(pV)}, v[10:11], {s(pWS,2)} offset:224 sc1")
                a("L_gde:")
                a("s_mov_b64 exec, -1")
                a("L_nogd:")
            if not LATE and st_ == opts.get("gf", 4):
                a(f"s_cmp_lg_u32 {s(sPW)}, {s(sWV)}")
                a("s_cbranch_scc1 L_nogf")
                a("s_waitcnt vmcnt(0)")
                a("s_mov_b64 exec, 1")
                a(f"global_store_dword {v(pFG)}, {v(pTG)}, {s(pWS,2)} sc1")
                a("s_mov_b64 exec, -1")
                a("L_nogf:")
        b = ST + 4 * (f % NQ)
        gi = 8 - st_ // 2
        ar = (vW0 if gi < 5 else vW1) + (1 if k == 2 else 0)
        o = 9216 * (gi % 5) + 4608 * (st_ & 1) + (32 if k == 1 else 0)
        a(f"ds_read_b64_tr_b16 {v(b,2)}, {v(ar)} offset:{o}")
        a(f"ds_read_b64_tr_b16 {v(b+2,2)}, {v(ar)} offset:{o+144}")
    for f in range(PRE):
        qrd(f)
    for st_ in range(18):
        a(f"s_waitcnt lgkmcnt({2*(min(54, 3*st_+PRE) - (3*st_+3))})")
        for n, (k, X, acc) in enumerate(((0, XA, 0), (0, XB, 2), (1, XA, 1), (1, XB, 3), (2, XA, 4))):
            b = ST + 4 * ((3 * st_ + k) % NQ)
            c_ = '0' if st_ == 0 else v(ACC + 4 * acc, 4)
            a(f"v_mfma_f32_16x16x32_bf16 {v(ACC+4*acc,4)}, {v(b,4)}, {v(X+4*st_,4)}, {c_}")
            if n in (0, 2, 3):
                f = 3 * st_ + PRE + (0, 0, 1, 2)[n]
                if f < 54:
                    qrd(f)
    stamp(18)
    a(f"s_mul_i32 {s(T0)}, {s(T0+4)}, {16*QST}")
    a(f"s_sub_u32 {s(T0+1)}, {16*QST}, {s(T0)}")
    a(f"v_add_u32 v2, {s(T0)}, {v(vQw)}")
    a(f"v_add_u32 v3, {s(T0+1)}, {v(vQw)}")
    a(f"v_mfma_f32_32x32x4_2b_bf16 {v(OA,32)}, {v(ZZ,2)}, {v(ZZ,2)}, 0")
    for acc in (0, 2, 1, 3, 4):
        b = ACC + 4 * acc
        a(f"v_cvt_pk_bf16_f32 {v(b)}, {v(b)}, {v(b+1)}")
        a(f"v_cvt_pk_bf16_f32 {v(b+1)}, {v(b+2)}, {v(b+3)}")
        if acc == 4:
            a("s_mov_b32 exec_hi, 0")
            a(f"ds_write_b64 {v(vQw2)}, {v(b,2)} offset:128")
        else:
            a(f"ds_write_b64 v{2 + acc // 2}, {v(b,2)} offset:{32*(acc&1)}")
    a("s_mov_b64 exec, 1")
    a("v_mov_b32 v4, 1")
    a(f"ds_add_u32 {v(vQf)}, v4 offset:{F_QW-FL}")
    a("s_mov_b64 exec, -1")
    for i in range(8):
        a(f"v_mov_b32 {v(SY+24+i)}, 0")
    for i in range(4):
        a(f"v_mov_b32 {v(V1F+4+i)}, 0")
    a(f"v_mov_b32 {v(QX0+1)}, 0")
    a(f"v_mov_b32 {v(QX1)}, 0")
    lds_wait(F_QW, 2, 8, 0, base=vQf)
    a(f"ds_read_b32 {v(QX0)}, {v(vQx)} offset:32")
    a(f"ds_read2_b32 {v(QA,2)}, {v(vQa)} offset0:0 offset1:1")
    a(f"ds_read2_b32 {v(QA+2,2)}, {v(vQa)} offset0:2 offset1:3")
    a(f"ds_read2_b32 {v(QB,2)}, {v(vQa)} offset0:9 offset1:10")
    a(f"ds_read2_b32 {v(QB+2,2)}, {v(vQa)} offset0:11 offset1:12")
    a(f"ds_read_b32 {v(QX1+1)}, {v(vQx)} offset:32")
    a("s_mov_b64 exec, 1")
    a(f"ds_add_u32 {v(vFB)}, v4 offset:{F_QD-FL}")
    a("s_mov_b64 exec, -1")
    if LATE:
        a(f"s_cmp_lg_u32 {s(sPW)}, {s(sWV)}")
        a("s_cbranch_scc1 L_nogf")
        a("s_waitcnt vmcnt(0)")
        a("s_mov_b64 exec, 1")
        a(f"global_store_dword {v(pFG)}, {v(pTG)}, {s(pWS,2)} sc1")
        a("s_mov_b64 exec, -1")
        a("L_nogf:")
    stamp(4)
    lds_wait(F_RDY, 1, 8, 0)
    stamp(6)
    stamp(50)

    def m2b(D, t):
        q = QX0 if ((t >> 1) & 1) == 0 else QX1
        return f"v_mfma_f32_32x32x4_2b_bf16 {v(D,32)}, {v(KXF+2*(t>>2),2)}, {v(q,2)}, 0 cbsz:1 abid:{t&1}"

    def mS(D, t, Q):
        return f"v_mfma_f32_32x32x16_bf16 {v(D,16)}, {v(KF+4*(t&1),4)}, {v(Q,4)}, {v(D,16)}"

    def smf(O, VF, t, P):
        return f"v_smfmac_f32_32x32x32_bf16 {v(O,16)}, {v(VF+4*(t&1),4)}, {v(P,8)}, {v(IDX)}"

    a(f"ds_read_b128 {v(KXF,4)}, {v(vK)} offset:17920")
    a(f"ds_read_b128 {v(KF,4)}, {v(vK)}")
    a(f"ds_read_b128 {v(KF+4,4)}, {v(vK)} offset:2240")
    a(f"ds_read_b128 {v(V0F,4)}, {v(vV)}")
    a(f"ds_read_b128 {v(V1F,4)}, {v(vV)} offset:608")
    a(f"ds_read_b32 v8, {v(vFB)} offset:{F_LOC-FL}")
    a("s_waitcnt lgkmcnt(5)")
    a(m2b(SX, 0))
    a("s_waitcnt lgkmcnt(0)")
    a(f"v_readfirstlane_b32 {s(sLOC)}, v8")
    a("s_setprio 0")
    a(mS(SX, 0, QA))
    a(mS(SX + 16, 0, QB))
    a("s_nop 10")
    a(".p2align 3")
    a("L_att:")
    if opts.get("cst"):
        stamp(40, sI)
    for t in range(8):
        cur, nxt = (SX, SY) if t % 2 == 0 else (SY, SX)
        ex = [f"v_exp_f32 {v(cur+i)}, {v(cur+i)}" for i in range(32)]
        tn = (t + 1) & 7
        q = []
        q += ex[0:2]
        q.append(smf(OB, V1F, t - 1, nxt + 24))
        q.append("s_waitcnt lgkmcnt(0)")
        if t == 5:
            q.append(f"v_cmp_eq_u32 vcc, 0, {v(vFl)}")
        q += ex[2:5]
        q.append(m2b(nxt, tn))
        q += ex[5:13]
        q.append(smf(OA, V0F, t, cur))
        q.append(f"ds_read_b128 {v(KF+4*(t&1),4)}, {v(vK)} offset:{2240*((t+2)&7)}")
        q += ex[13:18]
        q.append(smf(OA, V1F, t, cur + 8))
        q.append(f"ds_read_b128 {v(V0F+4*(tn&1),4)}, {v(vV)} offset:{2240*tn}")
        q += ex[18:22]
        q.append(mS(nxt, tn, QA))
        q.append(f"ds_read_b128 {v(V1F+4*(tn&1),4)}, {v(vV)} offset:{2240*tn+608}")
        q += ex[22:26]
        q.append(smf(OB, V0F, t, cur + 16))
        if t == 2:
            q.append(f"s_and_b32 {s(sNB)}, {s(sSEQ)}, 15")
        if t == 3:
            q.append(f"s_add_u32 {s(sNB)}, {s(sNB)}, {SLOT0}")
        if t == 4:
            q.append(f"ds_read_b32 {v(vFl)}, {v(vFa)}")
        if t == 5:
            q.append("s_cbranch_vccnz L_rw")
            q.append("L_rwd:")
        if t == 6:
            q.append(f"ds_read_b128 {v(KXF,4)}, {v(vK)} offset:17920")
        if t == 7:
            q.append(f"ds_write_b32 {v(vCo)}, {v(vFa)} offset:{F_CONS-FL}")
        q += ex[26:29]
        q.append(mS(nxt + 16, tn, QB))
        if t == 1:
            q.append(f"s_add_u32 {s(sI)}, {s(sI)}, 1")
        if t == 2:
            q.append(f"s_mul_i32 {s(sNB)}, {s(sNB)}, {CH_SZ}")
        if t == 3:
            q.append(f"s_lshr_b32 {s(sSEQ)}, {s(sSEQ)}, 4")
        if t == 5:
            q.append(f"v_add_u32 {v(vK)}, {s(sNB)}, {v(vKl)}")
        if t == 6:
            q.append(f"v_add_u32 {v(vV)}, {s(sNB)}, {v(vVl)}")
            q.append(f"v_add_u32 {v(vFa)}, 4, {v(vFa)}")
        if t == 7:
            q.append(f"s_cmp_lt_u32 {s(sI)}, 8")
        q += ex[29:32]
        for x in q:
            a(x)
    a("s_cbranch_scc1 L_att")

    a(smf(OB, V1F, 7, SY + 24))
    stamp(9)
    stamp(51)
    a("s_setprio 3")
    LO_B, HI_B = (127 - 60) << 23, (127 + 60) << 23
    a(f"v_mov_b32 v9, {s(sTAG)}")
    a(f"v_mov_b32 {v(vCv)}, {cons(9)}")
    a(f"v_subrev_u32 v2, {LO_B}, {v(OA+10)}")
    a(f"v_subrev_u32 v3, {LO_B}, {v(OB+10)}")
    a("v_max_u32 v2, v2, v3")
    a(f"v_cmp_lt_u32 vcc, {HI_B-LO_B}, v2")
    a("s_cbranch_vccnz L_slow" if not opts.get("forceslow") else "s_branch L_slow")
    a("L_norm:")
    a(f"v_rcp_f32 v4, {v(OA+10)}")
    a(f"v_rcp_f32 v6, {v(OB+10)}")
    for T, O in enumerate((OA, OB)):
        for i in range(0, 10, 2):
            a(f"v_pk_mul_f32 {v(O+i,2)}, {v(O+i,2)}, {v(4+2*T,2)} op_sel_hi:[1,0]")
        for i in range(4):
            a(f"v_cvt_pk_bf16_f32 {v(152+4*T+i)}, {v(O+2*i)}, {v(O+2*i+1)}")
        a(f"v_cvt_pk_bf16_f32 {v(160+T)}, {v(O+8)}, {v(O+9)}")
    a(f"s_cmp_eq_u32 {s(sLOC)}, 0")
    a("s_cbranch_scc1 L_pubg")
    for fl in ("", " sc1"):
        for T in range(2):
            a(f"global_store_dwordx4 {v(vOm)}, {v(152+4*T,4)}, {s(pWS,2)} offset:{512*T}{fl}")
        a("s_mov_b32 exec_hi, 0")
        a(f"global_store_dwordx2 {v(vOx)}, v[160:161], {s(pWS,2)} offset:2048{fl}")
        a("s_mov_b64 exec, 1")
        a("s_waitcnt vmcnt(0)")
        if not fl:
            stamp(11)
        a(f"global_store_dword {v(vOf)}, v9, {s(pWS,2)}{fl}")
        a(f"ds_write_b32 {v(vCo)}, {v(vCv)} offset:{F_CONS-FL}")
        a("s_mov_b64 exec, -1")
        a("s_branch L_fin")
        if not fl:
            a("L_pubg:")
    a("L_rw:")
    a("s_sleep 1")
    a(f"ds_read_b32 {v(vFl)}, {v(vFa)}")
    a("s_waitcnt lgkmcnt(0)")
    a(f"v_cmp_eq_u32 vcc, 0, {v(vFl)}")
    a("s_cbranch_vccnz L_rw")
    a("s_branch L_rwd")
    flush_stubs()

    a("L_kgen:")
    stamp(12)
    a("s_setprio 1")
    a(f"s_mul_i32 {s(sKB)}, {s(sS)}, {S_SZ}")
    SEL, KA, U0 = 16, 24, 40
    Z1, Z8, Z256, TT = 46, 48, 50, 52
    HV, LO, ONE, PK, DT = 54, 110, 114, 116, 180
    a(f"v_and_b32 v2, 1, {v(vL)}")
    a("v_lshlrev_b32 v2, 4, v2")
    a("v_mov_b32 v3, 0x3f80")
    a("v_lshlrev_b32 v2, v2, v3")
    a(f"v_bfe_u32 v3, {v(vL)}, 1, 3")
    a(f"v_lshrrev_b32 v13, 1, {v(vL)}")
    a(f"v_xor_b32 v13, v13, {v(vL)}")
    a("v_and_b32 v13, 16, v13")
    a("v_or_b32 v3, v3, v13")
    for d in range(8):
        a(f"v_cmp_eq_u32 vcc, {d}, v3")
        a(f"v_mov_b32 {v(KA+2*d)}, 0")
        a(f"v_mov_b32 {v(KA+2*d+1)}, 0")
        a(f"v_cndmask_b32 {v(SEL+d)}, 0, v2, vcc")
    a(f"v_mov_b32 {v(ONE)}, 1.0")
    a(f"v_mov_b32 {v(ONE+1)}, 0")
    a("s_waitcnt vmcnt(0)")
    stamp(1)
    a("v_lshlrev_b32 v10, 16, v10")
    a(f"v_mul_f32 v10, {f32(LOG2E)}, v10")
    a("v_exp_f32 v10, v10")
    a("v_lshlrev_b32 v11, 16, v11")
    a("v_cvt_pk_bf16_f32 v10, v10, v10")
    a("v_lshlrev_b32 v10, 16, v10")

    def cmul(r, x, y):
        a(f"v_pk_mul_f32 {v(r,2)}, {v(x,2)}, {v(y,2)} op_sel:[0,0] op_sel_hi:[0,1]")
        a(f"v_pk_fma_f32 {v(r,2)}, {v(x,2)}, {v(y,2)}, {v(r,2)} op_sel:[1,1,0] op_sel_hi:[1,0,1] neg_lo:[0,1,0]")

    vals = [(0, e) for e in range(9)] + [(1, e) for e in (0, 2, 4, 6, 8)] + [(2, e) for e in (0, 4, 8)] + \
           [(3, e) for e in (0, 4, 8)] + [(sg, e) for sg in (4, 5, 6, 7) for e in (0, 8)]
    reg = {k: HV + 2 * n for n, k in enumerate(vals)}
    rowval = [(0, 0), (0, 1), (0, 2), (0, 3), (1, 0), (1, 0), (1, 2), (1, 4),
              (2, 0), (2, 4), (2, 8), (2, 8), (3, 0), (3, 4), (3, 8), (3, 8),
              (0, 4), (0, 5), (0, 6), (0, 7), (1, 4), (1, 4), (1, 6), (1, 8),
              (4, 0), (4, 8), (6, 0), (6, 8), (5, 0), (5, 8), (7, 0), (7, 8)]
    a(f"s_mov_b32 {s(T0+4)}, 0")
    a("L_kround:")
    for i in range(6):
        a(f"v_lshlrev_b32 {v(U0+i)}, 16, v{PR+i}")
    for i in range(6):
        a(f"v_lshrrev_b32 v{PR+i}, 16, v{PR+i}")
    for i in range(4):
        a(f"v_mul_f32 {v(U0+i)}, v10, {v(U0+i)}")
    a(f"v_mul_f32 {v(U0)}, {f32(LOG2E)}, {v(U0)}")
    a(f"v_mul_f32 {v(U0+1)}, 0.15915494, {v(U0+1)}")
    for z, pw in ((Z8, 8.0), (Z1, 1.0), (Z256, 256.0)):
        a(f"v_mul_f32 {v(TT)}, {f32(pw)}, {v(U0)}")
        a(f"v_mul_f32 {v(TT+1)}, {f32(pw)}, {v(U0+1)}")
        a(f"v_exp_f32 {v(TT)}, {v(TT)}")
        a(f"v_fract_f32 {v(TT+1)}, {v(TT+1)}")
        a(f"v_cos_f32 {v(z)}, {v(TT+1)}")
        a(f"v_sin_f32 {v(z+1)}, {v(TT+1)}")
        a(f"v_mul_f32 {v(z)}, {v(TT)}, {v(z)}")
        a(f"v_mul_f32 {v(z+1)}, {v(TT)}, {v(z+1)}")

    def tmf(blk, q):
        d = DT + 16 * (blk % 4)
        a(f"v_mfma_f32_32x32x16_bf16 {v(d,16)}, {v(PK+8*blk+4*q,4)}, {v(SEL+4*q,4)}, {'0' if q == 0 else v(d,16)}")

    def tcv(blk):
        d = DT + 16 * (blk % 4)
        for i in range(8):
            a(f"v_cvt_pk_bf16_f32 {v(PK+8*blk+i)}, {v(d+2*i)}, {v(d+2*i+1)}")

    def lopack(j, ra, rb):
        a(f"v_cvt_pk_bf16_f32 {v(PK+32+j//2)}, {v(ra)}, {v(rb)}")
        a(f"v_cvt_pk_bf16_f32 {v(PK+48+j//2)}, {v(ra+1)}, {v(rb+1)}")
    hi_ops = []
    for (sg, e) in vals:
        if sg == 0:
            if e == 0:
                hi_ops.append(lambda: cmul(reg[(0, 0)], U0 + 4, U0 + 2))
            else:
                hi_ops.append(lambda e=e: cmul(reg[(0, e)], reg[(0, e - 1)], Z1))
        else:
            hi_ops.append(lambda sg=sg, e=e: cmul(reg[(sg, e)], reg[(sg - 1, e)], Z256))
    lo_ops = [lambda: lopack(0, ONE, Z8)]
    for j in range(2, 32):
        src = Z8 if j == 2 else LO + 2 * ((j - 1) & 1)
        if j & 1:
            lo_ops.append(lambda j=j, src=src: (cmul(LO + 2, src, Z8), lopack(j - 1, LO, LO + 2)))
        else:
            lo_ops.append(lambda j=j, src=src: cmul(LO, src, Z8))
    for i in range(31):
        lo_ops[i]()
        if i < len(hi_ops):
            hi_ops[i]()
        j = i + 1
        if j >= 8 and j % 8 in (0, 2):
            o = j // 8 - 1
            tmf((4 if j % 8 == 0 else 6) + o // 2, o % 2)
    hp = []
    for j in range(0, 32, 2):
        ra, rb = reg[rowval[j]], reg[rowval[j + 1]]
        hp.append(f"v_cvt_pk_bf16_f32 {v(PK+j//2)}, {v(ra)}, {v(rb)}")
        hp.append(f"v_cvt_pk_bf16_f32 {v(PK+16+j//2)}, -{v(ra+1)}, -{v(rb+1)}")
    for x in hp[0:4]:
        a(x)
    tmf(5, 1)
    for x in hp[4:10]:
        a(x)
    tmf(7, 1)
    for x in hp[10:16]:
        a(x)
    tcv(4)
    tmf(0, 0)
    tcv(6)
    tmf(2, 0)
    for x in hp[16:24]:
        a(x)
    tmf(0, 1)
    for x in hp[24:32]:
        a(x)
    tmf(2, 1)
    tcv(5)
    tmf(1, 0)
    tcv(7)
    tmf(3, 0)
    tcv(0)
    tmf(1, 1)
    tcv(2)
    tmf(3, 1)

    def gm(ah, bh, pl, fr):
        acc = KA + 8 * ah + 4 * bh
        a(f"v_mfma_f32_16x16x32_bf16 {v(acc,4)}, {v(PK+16*pl+8*ah+4*fr,4)}, {v(PK+32+16*pl+8*bh+4*fr,4)}, {v(acc,4)}")
    for pl in range(2):
        for fr in range(2):
            for bh in range(2):
                gm(0, bh, pl, fr)
    tcv(1)
    tcv(3)
    for pl in range(2):
        for fr in range(2):
            for bh in range(2):
                gm(1, bh, pl, fr)
    a(f"s_add_u32 {s(T0+4)}, {s(T0+4)}, 1")
    a(f"s_cmp_lt_u32 {s(T0+4)}, 2")
    a("s_cbranch_scc1 L_kround")
    stamp(13)
    E = 40
    a(f"v_and_b32 v2, 15, {v(vL)}")
    a(f"v_lshrrev_b32 v3, 4, {v(vL)}")
    a(f"v_lshl_add_u32 v2, v2, 4, {s(sKB)}")
    a("v_lshl_add_u32 v6, v3, 9, v2")
    a("v_and_b32 v4, 1, v3")
    a("v_lshl_add_u32 v7, v4, 9, v2")
    a("v_lshrrev_b32 v4, 1, v3")
    a("v_lshlrev_b32 v4, 8, v4")
    a("v_sub_u32 v7, v7, v4")
    a("v_add_u32 v7, 256, v7")
    a("s_mov_b64 exec, 1")
    a(f"v_add_f32 {v(KA)}, {v(KA)}, v11")
    a("s_mov_b32 exec_lo, -1")
    for b in range(2):
        A0, A1 = KA + 4 * b, KA + 8 + 4 * b
        a(f"v_cvt_pk_bf16_f32 {v(E+4*b)}, {v(A0)}, {v(A0+1)}")
        a(f"v_cvt_pk_bf16_f32 {v(E+4*b+1)}, {v(A0+2)}, {v(A0+3)}")
        a(f"v_cvt_pk_bf16_f32 {v(E+4*b+2)}, {v(A1)}, {v(A1+1)}")
        a(f"v_cvt_pk_bf16_f32 {v(E+4*b+3)}, {v(A1+2)}, {v(A1+3)}")
    a("s_not_b64 exec, exec")
    for b in range(2):
        A0 = KA + 4 * b
        a(f"v_cvt_pk_bf16_f32 {v(E+4*b)}, {v(A0)}, {v(A0)}")
        a(f"v_cvt_pk_bf16_f32 {v(E+4*b+1)}, {v(A0)}, {v(A0+1)}")
        a(f"v_cvt_pk_bf16_f32 {v(E+4*b+2)}, {v(A0+1)}, {v(A0+1)}")
        a(f"v_cvt_pk_bf16_f32 {v(E+4*b+3)}, {v(A0+2)}, {v(A0+2)}")
    a("s_mov_b64 exec, -1")
    for r in range(4):
        a(f"v_permlane32_swap_b32 {v(KA+12+r)}, {v(KA+8+r)}")
    a("s_mov_b32 vcc_lo, 0xaaaaaaaa")
    a("s_mov_b32 vcc_hi, 0xaaaaaaaa")
    for n in range(2):
        k0, k8, b = KA + 8 + 2 * n, KA + 9 + 2 * n, E + 8 + 4 * n
        a(f"v_cndmask_b32 v4, {v(k0)}, {v(k8)}, vcc")
        a(f"v_cvt_pk_bf16_f32 {v(b)}, {v(k0)}, {v(k0)}")
        a(f"v_cvt_pk_bf16_f32 {v(b+1)}, {v(k0)}, {v(k0)}")
        a(f"v_cvt_pk_bf16_f32 {v(b+2)}, v4, {v(k8)}")
        a(f"v_cvt_pk_bf16_f32 {v(b+3)}, {v(k8)}, {v(k8)}")
    for i in range(4):
        a(f"v_mov_b32 {v(E+16+i)}, 0")
    a(f"v_lshl_add_u32 v8, {v(vL)}, 4, {s(sKB)}")
    a(f"v_cmp_eq_u32 vcc, 2, {v(vL)}")
    a(f"v_add_u32 v9, {CST-32}, v8")
    a("v_cndmask_b32 v9, v8, v9, vcc")
    for blk in hb:
        a.L += blk
    stamp(14)
    lds_wait(F_RDY, 1, 2, 2)
    stamp(28)
    a(f"ds_write_b128 v6, {v(E,4)} offset:32")
    a(f"ds_write_b128 v6, {v(E+4,4)} offset:{32+256}")
    a(f"ds_write_b128 v7, {v(E+8,4)} offset:{32+2048}")
    a(f"ds_write_b128 v7, {v(E+12,4)} offset:{32+3072}")
    a("s_mov_b64 exec, 7")
    a(f"ds_write_b128 v9, {v(E+16,4)}")
    a("s_mov_b64 exec, -1")
    goffs = (1, 65, 129, 193, 194)
    D0 = 64
    for n, go in enumerate(goffs):
        a(f"ds_read_b128 {v(D0+6*n,4)}, v8 offset:{16*go}")
        a(f"ds_read_b32 {v(D0+6*n+4)}, v8 offset:{16*go+16}")
    for n, go in enumerate(goffs):
        d = D0 + 6 * n
        a(f"s_waitcnt lgkmcnt({2*(4-n) + n})")
        for i in range(4):
            a(f"v_alignbit_b32 {v(d+i)}, {v(d+i+1)}, {v(d+i)}, 16")
        a(f"ds_write_b128 v8, {v(d,4)} offset:{CST+16*go}")
    a(f"s_mul_i32 {s(T0)}, {s(sS)}, {U_SZ}")
    a(f"s_add_u32 {s(T0)}, {s(T0)}, {UI+4096}")
    a(f"v_lshl_add_u32 v3, {v(vL)}, 2, {s(T0)}")
    a(f"ds_write2st64_b32 v3, {v(vZ)}, {v(vZ)} offset0:0 offset1:1")
    lds_add(F_U, 2)
    gettag(2)
    stamp(2)

    a("L_ssm:")
    stamp(7)
    a(f"ds_read_b32 v2, {v(vFB)} offset:{F_LOC-FL}")
    srd(SRW, pWS, 1 << 28)
    a(f"s_cmp_lg_u32 {s(sWV)}, 4")
    a("s_cbranch_scc1 L_t1")
    a(f"v_mul_u32_u24 v3, 7282, {v(vL)}")
    a("v_lshrrev_b32 v3, 16, v3")
    a("v_mul_u32_u24 v3, 63, v3")
    a(f"v_add_lshl_u32 v3, v3, {v(vL)}, 4")
    a(f"s_mul_i32 {s(T0)}, {s(sJ)}, 73728")
    a(f"s_mul_i32 {s(T0+1)}, {s(sXCD)}, 144")
    a(f"s_add_u32 {s(T0)}, {s(T0)}, {s(T0+1)}")
    a(f"s_add_u32 {s(T0+2)}, {s(pU)}, {s(T0)}")
    a(f"s_addc_u32 {s(T0+3)}, {s(pU+1)}, 0")
    for k in range(10):
        a(f"s_mov_b32 m0, {TB + 1008*k}")
        if k == 9:
            a("s_mov_b64 exec, 0x1ff")
        else:
            a("s_nop 0")
        a(f"global_load_lds_dwordx4 v3, {s(T0+2,2)}")
        if k < 9:
            a(f"s_add_u32 {s(T0+2)}, {s(T0+2)}, {7*1152}")
            a(f"s_addc_u32 {s(T0+3)}, {s(T0+3)}, 0")
    a("s_mov_b64 exec, -1")
    a(f"s_mul_i32 {s(T0+4)}, {s(sXCD)}, {72*4096}")
    a(f"s_lshl_b32 {s(T0+5)}, {s(sJ)}, 7")
    a(f"s_sub_u32 {s(T0+4)}, {s(T0+4)}, {s(T0+5)}")
    a(f"s_add_u32 {s(T0+4)}, {s(T0+4)}, {WS_UT + 3968}")
    a(f"v_lshlrev_b32 v4, 12, {v(vL)}")
    a(f"v_and_b32 v5, 0x7000, v4")
    a(f"buffer_load_dword v6, v4, {s(SRW,4)}, {s(T0+4)} offen sc1")
    a(f"s_add_u32 {s(T0+5)}, {s(T0+4)}, {64*4096}")
    a(f"buffer_load_dword v7, v5, {s(SRW,4)}, {s(T0+5)} offen sc1")
    a(f"v_bfe_u32 v8, {v(vL)}, 2, 2")
    a(f"v_lshrrev_b32 v9, 4, {v(vL)}")
    a("v_lshlrev_b32 v10, 3, v9")
    a("v_sub_u32 v8, v10, v8")
    a("v_add_u32 v8, 3, v8")
    a("v_mul_u32_u24 v8, 144, v8")
    a(f"v_and_b32 v10, 3, {v(vL)}")
    a("v_lshl_add_u32 v8, v10, 3, v8")
    a(f"v_add_u32 v8, {TB}, v8")
    a("v_and_b32 v4, 0xf000, v4")
    a("v_lshlrev_b32 v9, 4, v9")
    a("v_sub_u32 v4, v4, v9")
    a("v_add_u32 v4, 48, v4")
    a(f"s_lshl_b32 {s(T0)}, {s(sXCD)}, 7")
    a(f"s_lshl_b32 {s(T0+1)}, {s(sJ)}, 2")
    a(f"s_add_u32 {s(T0)}, {s(T0)}, {s(T0+1)}")
    a(f"s_add_u32 {s(T0)}, {s(T0)}, {WS_FU}")
    a(f"v_mov_b32 v11, {s(sTAG)}")
    a("s_waitcnt vmcnt(0) lgkmcnt(0)")
    a(f"v_readfirstlane_b32 {s(sHL)}, v2")
    for cb in range(5):
        for hf in range(2):
            b = 16 + 8 * cb + 4 * hf
            a(f"ds_read_b64_tr_b16 {v(b,2)}, v8 offset:{4608*hf + 32*cb + 576}")
            a(f"ds_read_b64_tr_b16 {v(b+2,2)}, v8 offset:{4608*hf + 32*cb}")
    a("s_waitcnt lgkmcnt(0)")
    a(f"s_cmp_eq_u32 {s(sHL)}, 0")
    a("s_cbranch_scc1 L_utg")
    for fl in ("", " sc1"):
        for cb in range(5):
            if cb == 4:
                a("s_mov_b32 exec_lo, 0x00ff00ff")
                a("s_mov_b32 exec_hi, 0x00ff00ff")
            for hf in range(2):
                a(f"buffer_store_dwordx4 {v(16+8*cb+4*hf,4)}, v4, {s(SRW,4)}, {s(T0+4)} offen offset:{64*(1-hf)}{fl}")
            a(f"s_add_u32 {s(T0+4)}, {s(T0+4)}, 65536")
        a("s_mov_b64 exec, 1")
        a("s_waitcnt vmcnt(0)")
        a(f"buffer_store_dword v11, off, {s(SRW,4)}, {s(T0)}{fl}")
        a("s_mov_b64 exec, -1")
        if not fl:
            a("s_branch L_t2")
            a("L_utg:")
    a("s_branch L_t2")
    a("L_t1:")
    a(f"s_cmp_lg_u32 {s(sWV)}, 5")
    a("s_cbranch_scc1 L_t2")
    a(f"s_lshl_b32 {s(T0)}, {s(sXCD)}, 7")
    a(f"s_add_u32 {s(T0)}, {s(T0)}, {WS_FU}")
    a(f"v_and_b32 v3, 31, {v(vL)}")
    a(f"v_lshl_add_u32 v3, v3, 2, {s(T0)}")
    poll(3, 4, "L_pu", slp=12)
    for c in range(3):
        a(f"s_lshl_b32 {s(T0+1)}, {s(sCHS if c == 2 else sCH0)}, 12")
        a(f"s_add_u32 {s(T0+1)}, {s(T0+1)}, {WS_UT + (4096 if c == 1 else 0)}")
        a(f"s_mov_b32 m0, {UI + U_SZ*c}")
        for k in range(4):
            a(f"buffer_load_dwordx4 {v(vL16)}, {s(SRW,4)}, {s(T0+1)} offen offset:{1024*k} sc1 lds")
    dflag(F_UR)
    a("L_t2:")
    stamp(18)
    a(f"s_mul_i32 {s(T0+5)}, {s(sJ)}, 20736")
    a(f"s_mul_i32 {s(T0+4)}, {s(sS)}, 5120")
    a(f"s_add_u32 {s(T0+4)}, {s(T0+4)}, {s(T0+5)}")
    a(f"v_min_u32 v3, 41, {v(vL)}")
    a(f"v_lshl_add_u32 v3, v3, 7, {s(T0+4)}")
    a(f"global_load_dword v4, v3, {s(pWO,2)}")
    a(f"global_load_dword v5, {v(vPF)}, {s(pWS,2)} sc1")
    a(f"s_lshl_b32 {s(T0+4)}, {s(sQB)}, 2")
    a(f"s_add_u32 {s(T0+4)}, {s(T0+4)}, {s(sS)}")
    a(f"s_mul_i32 {s(T0+4)}, {s(T0+4)}, 18432")
    a(f"s_lshl_b32 {s(T0+5)}, {s(sG144)}, 4")
    a(f"s_add_u32 {s(T0+4)}, {s(T0+4)}, {s(T0+5)}")
    a(f"s_add_u32 {s(T0+4)}, {s(T0+4)}, {WS_O}")
    a(f"v_min_u32 v3, 17, {v(vL)}")
    a("v_lshlrev_b32 v3, 7, v3")
    a(f"buffer_load_dword v6, v3, {s(SRW,4)}, {s(T0+4)} offen sc1")
    a("v_min_u32 v3, 1920, v3")
    a(f"buffer_load_dword v7, v3, {s(SRW,4)}, {s(sYB)} offen sc1")
    a(f"global_load_dword v8, {v(vYS)}, {s(pWS,2)} sc1")
    a(f"s_lshl_b32 {s(T0+6)}, {s(sXCD)}, 9")
    a(f"s_lshl_b32 {s(T0+5)}, {s(sJ)}, 4")
    a(f"s_add_u32 {s(T0+6)}, {s(T0+6)}, {s(T0+5)}")
    a(f"s_lshl_b32 {s(T0+5)}, {s(sS)}, 2")
    a(f"s_add_u32 {s(T0+6)}, {s(T0+6)}, {s(T0+5)}")
    a(f"s_add_u32 {s(T0+6)}, {s(T0+6)}, {WS_FY}")
    a(f"buffer_load_dword v9, off, {s(SRW,4)}, {s(T0+6)} sc1")
    srd(SRA, pOUT, 2048 * 2304)
    srd(SRB, pWO, 576 * 1152)
    a("s_waitcnt lgkmcnt(0)")
    a(f"v_readfirstlane_b32 {s(sHL)}, v2")
    lds_wait(F_UR, 1, 3, 8)
    lds_wait(F_U, 3, 3, 2)
    a(f"s_cmp_lg_u32 {s(sWV)}, 7")
    a("s_cbranch_scc1 L_s1")
    lds_wait(F_CONS, cons(2), 2, 4, base=vF4)
    chunk_dma(7)
    a("s_setprio 1")
    a("L_s1:")
    stamp(20)
    CA, CBf, CC, CS = 16, 48, 80, 112
    if opts.get("noconv"):
        a("s_branch L_csd")

    def conv_block(va, vb, rho, kmax, pairs):
        LOOK = 4
        seen = set()
        for k in range(kmax + 1 + LOOK):
            if k <= kmax:
                o = 128 * (k & 1) + 16 * rho
                a(f"ds_read_b128 {v(CBf+4*k,4)}, {v(vb)} offset:{64*rho+512*(7-k)}")
                a(f"ds_read2_b32 {v(CA+4*k,2)}, {v(va+k//2)} offset0:{o} offset1:{o+1}")
                a(f"ds_read2_b32 {v(CA+4*k+2,2)}, {v(va+k//2)} offset0:{o+2} offset1:{o+3}")
            kk = k - LOOK
            if kk >= 0:
                todo = [p for p in pairs if max(p[1], p[2]) == kk]
                if todo:
                    a(f"s_waitcnt lgkmcnt({3*(min(k, kmax)-kk)})")
                for acc, aa, jj_ in todo:
                    c_ = '0' if (rho == 0 and acc not in seen) else v(acc, 4)
                    seen.add(acc)
                    a(f"v_mfma_f32_16x16x32_bf16 {v(acc,4)}, {v(CA+4*aa,4)}, {v(CBf+4*jj_,4)}, {c_}")
                    if opts.get("cnop"):
                        a(f"s_nop {opts['cnop']}")

    for rho in range(4):
        conv_block(AO, vB0, rho, 7, [(CC + 4 * (x + y), x, y) for x in range(8) for y in range(8 - x)])
    stamp(21)
    for jj in range(4):
        if jj < 3:
            a(f"s_cmp_lg_u32 {s(sJJ)}, {jj}")
            a(f"s_cbranch_scc1 L_cs{jj+1}")
        i1, i2 = jj, 7 - jj
        pairs = [(CS + 4, x, i2 - x) for x in range(i2 + 1)] + [(CS, x, i1 - x) for x in range(i1 + 1)]
        for rho in range(2):
            conv_block(AS, vBS, rho, i2, pairs)
        if jj < 3:
            a("s_branch L_csd")
            a(f"L_cs{jj+1}:")
    a("L_csd:")
    a("s_nop 3")
    stamp(22)
    lds_wait(F_CONS, cons(3), 2, 8, base=vF4)
    for i in range(2):
        a(f"ds_write_b128 {v(vES)}, {v(CS+4*i,4)} offset:{1024*i}")
    Y, YS = 16, 56
    a(f"s_bitcmp1_b32 {s(sS)}, 0")
    a("s_cbranch_scc1 L_e1")
    for rh in range(2):
        for i in range(4):
            a(f"ds_write_b128 {v(vEW)}, {v(CC+16*(1-rh)+4*i,4)} offset:{1024*i}")
        lds_add(F_C2, 2)
        lds_wait(F_C2, 4, 3, 2)
        for i in range(4):
            a(f"ds_read_b128 {v(Y+4*i,4)}, {v(vER)} offset:{1024*i}")
        for src in range(4):
            a(f"ds_read_b64 {v(YS+2*src,2)}, {v(vESR)} offset:{2048*src}")
        a("s_mov_b64 exec, 1")
        a(f"ds_add_u32 {v(vFB)}, v2 offset:{F_C1-FL}")
        a("s_mov_b64 exec, -1")
        a("s_waitcnt lgkmcnt(5)")
        for i in range(8):
            a(f"v_pk_add_f32 {v(Y+2*i,2)}, {v(Y+2*i,2)}, {v(CC+16*rh+2*i,2)}")
        if rh == 0:
            a("s_branch L_e2")
            a("L_e1:")
    a("L_e2:")
    for i in range(8):
        a(f"v_cvt_pk_bf16_f32 {v(YP+i)}, {v(Y+2*i)}, {v(Y+2*i+1)}")
    a("s_waitcnt lgkmcnt(0)")
    a(f"v_pk_add_f32 {v(YS,2)}, {v(YS,2)}, {v(YS+2,2)}")
    a(f"v_pk_add_f32 {v(YS+4,2)}, {v(YS+4,2)}, {v(YS+6,2)}")
    a(f"v_pk_add_f32 {v(YS,2)}, {v(YS,2)}, {v(YS+4,2)}")
    a(f"v_mov_b32 v11, {s(sTAG)}")
    a(f"v_cvt_pk_bf16_f32 {v(YP+8)}, {v(YS)}, {v(YS+1)}")
    a(f"s_cmp_eq_u32 {s(sHL)}, 0")
    a("s_cbranch_scc1 L_yg")
    for fl in ("", " sc1"):
        for i in range(4):
            a(f"global_store_dwordx2 {v(vYA)}, {v(YP+2*i,2)}, {s(pWS,2)} offset:{512*i}{fl}")
        a(f"global_store_dword {v(vYS)}, {v(YP+8)}, {s(pWS,2)}{fl}")
        a("s_mov_b64 exec, 1")
        a("s_waitcnt vmcnt(0)")
        a(f"buffer_store_dword v11, off, {s(SRW,4)}, {s(T0+6)}{fl}")
        a("s_mov_b64 exec, -1")
        if not fl:
            a("s_branch L_yd")
            a("L_yg:")
    a("L_yd:")
    stamp(23)
    lds_wait(F_C1, 4, 3, 2)
    lds_wait(F_CONS, cons(4), 2, 8, base=vF4)
    a(f"s_lshl_b32 {s(T0+3)}, {s(sWOL)}, 3")
    for jj in range(18):
        gp, idx = divmod(jj, 9)
        rowbase = 72 * gp + (18 * (idx >> 1) + 8 * (idx & 1) if idx < 8 else 16)
        vr = vWOp + (jj & 1) + (2 if idx == 8 else 0)
        a(f"s_add_u32 m0, {s(T0+3)}, {WO_M + 1024*jj}")
        a(f"s_add_u32 {s(T0+5)}, {s(sWOG)}, {rowbase*1152}")
        a(f"buffer_load_dwordx4 {v(vr)}, {s(SRB,4)}, {s(T0+5)} offen lds")
        if idx == 4:
            a(f"s_add_u32 m0, {s(sWOL)}, {WO_X + 1152*gp}")
            a(f"s_add_u32 {s(T0+5)}, {s(sWOG)}, {72*gp*1152 + 128}")
            a(f"buffer_load_dwordx4 {v(vWOp+4)}, {s(SRB,4)}, {s(T0+5)} offen lds")
        if idx == 8:
            a(f"s_add_u32 m0, {s(sWOL)}, {WO_X + 1152*gp + 1024}")
            a(f"s_add_u32 {s(T0+5)}, {s(T0+5)}, 128")
            a("s_mov_b64 exec, 0xff")
            a(f"buffer_load_dwordx4 {v(vWOp+5)}, {s(SRB,4)}, {s(T0+5)} offen lds")
            a("s_mov_b64 exec, -1")
    a(f"s_lshl_b32 {s(T0)}, {s(sS)}, 2")
    dflag(f"s_add_u32 m0, {s(T0)}, {F_WO}")
    stamp(31)
    a(f"s_cmp_lg_u32 {s(sWV)}, 6")
    a("s_cbranch_scc1 L_g1")
    a(f"s_lshl_b32 {s(T0)}, {s(sXCD)}, 9")
    a(f"s_add_u32 {s(T0)}, {s(T0)}, {WS_FY}")
    a(f"v_lshl_add_u32 v3, {v(vL)}, 2, {s(T0)}")
    a("v_add_u32 v4, 256, v3")
    a(f"v_lshrrev_b32 v7, 3, {v(vL)}")
    a(f"v_and_b32 v8, 0x70, {v(vL16)}")
    a("v_lshl_add_u32 v7, v7, 12, v8")
    a(f"v_bfe_u32 v8, {v(vL)}, 2, 2")
    a(f"v_lshrrev_b32 v9, 4, {v(vL)}")
    a("v_lshlrev_b32 v8, 7, v8")
    a("v_lshl_add_u32 v8, v9, 5, v8")
    a(f"v_and_b32 v9, 3, {v(vL)}")
    a("v_lshl_add_u32 v8, v9, 3, v8")
    a(f"v_add_u32 v8, {TB2}, v8")
    a(f"v_mul_u32_u24 v9, 2304, {v(vL)}")
    lds_wait(F_CONS, cons(5), 2, 16, base=vF4)
    poll(3, 5, "L_py", n=2, slp=12)
    a(f"s_mul_i32 {s(T0+4)}, {s(sXCD)}, {72*4096}")
    a(f"s_lshl_b32 {s(T0+5)}, {s(sJ)}, 7")
    a(f"s_add_u32 {s(T0+4)}, {s(T0+4)}, {s(T0+5)}")
    for k in range(9):
        a(f"s_mov_b32 m0, {TB2 + 1024*k}")
        a(f"s_add_u32 {s(T0+5)}, {s(T0+4)}, {WS_YT + 8*4096*k}")
        a(f"buffer_load_dwordx4 v7, {s(SRW,4)}, {s(T0+5)} offen sc1 lds")
    a(f"s_mul_i32 {s(T0+4)}, {s(sJ)}, {64*2304}")
    a(f"s_mul_i32 {s(T0+5)}, {s(sXCD)}, 144")
    a(f"s_add_u32 {s(T0+4)}, {s(T0+4)}, {s(T0+5)}")
    a("s_waitcnt vmcnt(0)")
    for k in range(9):
        a(f"ds_read_b64_tr_b16 {v(16+4*k,2)}, v8 offset:{1024*k}")
        a(f"ds_read_b64_tr_b16 {v(18+4*k,2)}, v8 offset:{1024*k+512}")
    a("s_waitcnt lgkmcnt(0)")
    for k in range(9):
        a(f"buffer_store_dwordx4 {v(16+4*k,4)}, v9, {s(SRA,4)}, {s(T0+4)} offen offset:{1152+16*k}{YF}")
    a("s_waitcnt vmcnt(0)")
    a("L_g1:")
    stamp(8)
    lds_wait(F_WO, 1, 2, 8, base=vF4)

    OFR, OAC = 4, 206
    WST, NW = 36, 36

    def ord_(f):
        st_, ct = divmod(f, 5)
        b = WST + 4 * (f % NW)
        if ct < 4:
            ar = (181 if st_ < 9 else 185) + ct
            o = 4096 * (st_ % 9)
            return [f"ds_read_b64_tr_b16 {v(b,2)}, {v(ar)} offset:{o}", f"ds_read_b64_tr_b16 {v(b+2,2)}, {v(ar)} offset:{o+512}"]
        return [f"ds_read_b64_tr_b16 {v(b,2)}, v189 offset:{512*st_}", f"ds_read_b64_tr_b16 {v(b+2,2)}, v189 offset:{512*st_+64}"]

    def old(k):
        if k in (8, 16):
            a(f"v_add_u32 {v(vOL)}, 8192, {v(vOL)}")
        a(f"global_load_dwordx4 {v(OFR+4*(k%8),4)}, {v(vOL)}, {s(pWS,2)} offset:{1024*(k%8)-4096}{FLG[opts.get('lf', 2)]}")
    lds_wait(F_CONS, cons(8), 2, 8, base=vF4)
    stamp(24)
    reads = []
    for f in range(90):
        reads += ord_(f)
    for x in reads[:2 * NW]:
        a(x)
    lds_wait(F_CONS, cons(9), 2, 1, base=vF4)
    stamp(25)
    poll(vPF, 2, "L_pollo", slp=1)
    stamp(26)
    for k in range(8):
        old(k)
    nr = 2 * NW
    for f in range(90):
        st_, ct = divmod(f, 5)
        if ct == 0:
            a(f"s_waitcnt vmcnt({min(18, st_+8) - st_ - 1 - (1 if 0 < st_ <= 10 else 0)})")
        if f % 3 == 0 and 2 * min(90, f + 3) > 2 * NW:
            a(f"s_waitcnt lgkmcnt({min(15, nr - 2*min(90, f+3))})")
        b = WST + 4 * (f % NW)
        c_ = '0' if st_ == 0 else v(OAC + 4 * ct, 4)
        a(f"v_mfma_f32_16x16x32_bf16 {v(OAC+4*ct,4)}, {v(b,4)}, {v(OFR+4*(st_%8),4)}, {c_}")
        if ct == 0 and 0 < st_ <= 10:
            old(st_ + 7)
        else:
            want = min(180, 2 * NW + (f + 1) * 3 // 2, 2 * (f + NW))
            while nr < want:
                a(reads[nr])
                nr += 1
    assert nr == 180
    stamp(27)
    for ct in range(5):
        b = OAC + 4 * ct
        a(f"v_cvt_pk_bf16_f32 {v(b)}, {v(b)}, {v(b+1)}")
        a(f"v_cvt_pk_bf16_f32 {v(b+1)}, {v(b+2)}, {v(b+3)}")
        a(f"ds_write_b64 {v(vTW)}, {v(b,2)} offset:{32*ct}")
    for i in range(3):
        a(f"ds_read_b128 {v(40+4*i,4)}, {v(190+i)}")
    for i in range(3):
        a(f"s_waitcnt lgkmcnt({2-i})")
        if i == 2:
            a("s_mov_b64 exec, 0xffff")
        a(f"buffer_store_dwordx4 {v(40+4*i,4)}, {v(193+i)}, {s(SRA,4)}, {s(sOB)} offen{OF}")
    a("s_mov_b64 exec, -1")
    a("L_epoch:")
    a(f"s_cmp_lg_u32 s2, 0")
    a("s_cbranch_scc1 L_fin")
    a(f"s_cmp_lg_u32 {s(sWV)}, 7")
    a("s_cbranch_scc1 L_fin")
    a(f"v_mov_b32 v5, {s(sTAG)}")
    a("s_mov_b64 exec, 1")
    a(f"global_store_dword {v(vZ)}, v5, {s(pWS,2)} sc1")
    a("s_mov_b64 exec, -1")
    a("L_fin:")
    if probe is not None:
        a("s_waitcnt vmcnt(0)")
        stamp(10)
        a("s_sub_u32 s98, s98, s96")
        a("s_lshl_b32 s98, s98, 2")
        a("s_add_u32 s98, s98, 6000")
        a("L_probe:")
        a("s_sleep 4")
        a("s_memrealtime s[94:95]")
        a("s_waitcnt lgkmcnt(0)")
        a("s_sub_u32 s94, s94, s96")
        a("s_cmp_lt_u32 s94, s98")
        a("s_cbranch_scc1 L_probe")
    if stamps:
        a("s_waitcnt vmcnt(0)")
        stamp(10)
        if fast is not None:
            a("s_waitcnt lgkmcnt(0)")
            for k, i in enumerate(fast):
                a(f"v_writelane_b32 v255, {s(84+2*k)}, {i}")
        a(f"s_lshl_b32 {s(T0)}, s2, 11")
        a(f"s_add_u32 {s(T0)}, {s(T0)}, {WS_DBG}")
        a(f"v_lshl_add_u32 v4, v0, 2, {s(T0)}")
        a(f"global_store_dword v4, v255, {s(pWS,2)}")
    a("L_exit:")
    a("s_endpgm")
    flush_stubs()

    MB, MX = 164, 196
    sP, sC, sT, sA = T0 + 1, T0 + 2, T0 + 3, T0 + 4
    a("L_slow:")
    a("s_waitcnt lgkmcnt(0)")
    a("s_nop 15")
    for i in range(32):
        a(f"v_mov_b32 {v(MB+i)}, 0")
        a(f"v_mov_b32 {v(OA+i)}, 0")
    a(f"v_mov_b32 {v(MX)}, 0xff800000")
    a(f"v_mov_b32 {v(MX+1)}, 0xff800000")
    a(f"v_and_b32 v2, 31, {v(vL)}")
    a("v_lshlrev_b32 v2, 4, v2")
    a(f"v_mov_b32 {v(KXF+1)}, 0")
    a(f"s_mov_b32 {s(sP)}, 0")
    a("L_sp:")
    a(f"s_mov_b32 {s(sC)}, {WS_KV}")
    a("L_sc:")
    a(f"s_mov_b32 {s(sT)}, 0")
    a("L_st:")
    a(f"s_mul_i32 {s(sA)}, {s(sT)}, 2240")
    a(f"s_add_u32 {s(sA)}, {s(sA)}, {s(sC)}")
    a(f"v_add_u32 v3, {s(sA)}, {v(vKl)}")
    a(f"v_add_u32 v4, {s(sA)}, {v(vVl)}")
    a(f"s_and_b32 {s(sA)}, {s(sT)}, 1")
    a(f"s_lshl_b32 {s(sA)}, {s(sA)}, 9")
    a(f"s_lshr_b32 {s(T0)}, {s(sT)}, 1")
    a(f"s_lshl_b32 {s(T0)}, {s(T0)}, 2")
    a(f"s_add_u32 {s(sA)}, {s(sA)}, {s(T0)}")
    a(f"s_add_u32 {s(sA)}, {s(sA)}, {s(sC)}")
    a(f"s_add_u32 {s(sA)}, {s(sA)}, 17920")
    a(f"v_add_u32 v5, {s(sA)}, v2")
    a(f"global_load_dwordx4 {v(KF,4)}, v3, {s(pWS,2)} sc1")
    a(f"global_load_dword {v(KXF)}, v5, {s(pWS,2)} sc1")
    a(f"global_load_dwordx4 {v(V0F,4)}, v4, {s(pWS,2)} sc1")
    a(f"global_load_dwordx4 {v(V1F,4)}, v4, {s(pWS,2)} offset:608 sc1")
    a("s_waitcnt vmcnt(0)")
    a(f"v_mfma_f32_32x32x4_2b_bf16 {v(SX,32)}, {v(KXF,2)}, {v(QX0,2)}, {v(MB,32)}")
    a(mS(SX, 0, QA))
    a(mS(SX + 16, 0, QB))
    a("s_nop 15")
    a(f"s_cmp_eq_u32 {s(sP)}, 0")
    a("s_cbranch_scc0 L_s2")
    for T in range(2):
        for i in range(0, 16, 2):
            a(f"v_max3_f32 {v(MX+T)}, {v(SX+16*T+i)}, {v(SX+16*T+i+1)}, {v(MX+T)}")
    a("s_branch L_s3")
    a("L_s2:")
    for i in range(32):
        a(f"v_exp_f32 {v(SX+i)}, {v(SX+i)}")
    a(smf(OA, V0F, 0, SX))
    a(smf(OA, V1F, 0, SX + 8))
    a(smf(OB, V0F, 0, SX + 16))
    a(smf(OB, V1F, 0, SX + 24))
    a("L_s3:")
    a(f"s_add_u32 {s(sT)}, {s(sT)}, 1")
    a(f"s_cmp_lt_u32 {s(sT)}, 8")
    a("s_cbranch_scc1 L_st")
    a(f"s_add_u32 {s(sC)}, {s(sC)}, {CH_SZ}")
    a(f"s_cmp_lt_u32 {s(sC)}, {WS_KV + 8*CH_SZ}")
    a("s_cbranch_scc1 L_sc")
    a("s_nop 15")
    a(f"s_cmp_lg_u32 {s(sP)}, 0")
    a("s_cbranch_scc1 L_norm")
    for T in range(2):
        a(f"v_mov_b32 v6, {v(MX+T)}")
        a(f"v_permlane32_swap_b32 v6, {v(MX+T)}")
        a(f"v_max_f32 v6, v6, {v(MX+T)}")
        for i in range(16):
            a(f"v_sub_f32 {v(MB+16*T+i)}, 0, v6")
    a(f"s_mov_b32 {s(sP)}, 1")
    a("s_branch L_sp")

    lines, nins = fix_hazards(a.L, verbose=opts.get("verbose", False))
    hdr = [ln.rstrip("\n") for ln in open(REF) if ln.startswith(";") and "@launch" not in ln]
    txt = "\n".join(hdr) + f"\n; @launch grid=(256,1,1) block=(512,1,1) lds={LDS_TOTAL}\n"
    txt += '.amdgcn_target "amdgcn-amd-amdhsa--gfx950"\n.text\n'
    txt += f".globl {kname}\n.p2align 8\n.type {kname},@function\n"
    txt += "\n".join(lines) + "\n"
    txt += f""".section .rodata,"a"
.p2align 6
.amdhsa_kernel {kname}
  .amdhsa_next_free_vgpr 256
  .amdhsa_next_free_sgpr 102
  .amdhsa_accum_offset 256
  .amdhsa_group_segment_fixed_size 0
  .amdhsa_kernarg_size 136
  .amdhsa_user_sgpr_count 2
  .amdhsa_user_sgpr_kernarg_segment_ptr 1
  .amdhsa_system_sgpr_workgroup_id_x 1
.end_amdhsa_kernel
"""
    size = text_size(txt.replace("CODE_END_OFF", "0x12345"))
    txt = txt.replace("CODE_END_OFF", str((size - 256) & ~3))
    print("code bytes", size)
    return txt, nins


if __name__ == "__main__":
    out = sys.argv[1] if len(sys.argv) > 1 else f"cdna_kernels/{NAME}.s"
    opts = {}
    for x in sys.argv[2:]:
        k, _, val = x.partition("=")
        if k == "fast":
            opts[k] = [int(y) for y in val.split(",")]
            opts["stamps"] = 1
        else:
            opts[k] = int(val) if val else 1
    txt, n = gen(opts)
    open(out, "w").write(txt)
    print("wrote", out, "bytes", len(txt), "nop states inserted", n)
```
